```python
import torch

def _softmax(x, axis=-1):
    return torch.softmax(x, dim=axis)
def _gelu(x):
    return torch.nn.functional.gelu(x, approximate="tanh")
def _silu(x):
    return torch.nn.functional.silu(x)
def _sigmoid(x):
    return torch.sigmoid(x)
def _layernorm(x, axis=-1, eps=1e-5):
    m = x.mean(dim=axis, keepdim=True)
    v = x.var(dim=axis, keepdim=True, unbiased=False)
    return (x - m) / torch.sqrt(v + eps)
def _scatter_add(tgt, idx, src, axis=0):
    return tgt.clone().index_add_(axis, idx, src)
def _segment_sum(src, seg, n):
    out = torch.zeros((n,) + src.shape[1:], dtype=src.dtype)
    return out.index_add_(0, seg, src)
def _pad(x, pw):
    flat = tuple(v for pair in reversed(pw) for v in pair)
    return torch.nn.functional.pad(x, flat)

kernel_name = 'parallel_sum__ssm_conv_s4d__mixer_token_mlp__prompt'

def setup_inputs():

    _w = (lambda a: (lambda t: t.to(torch.bfloat16) if t.is_floating_point() else t)(torch.as_tensor(a)))
    def _A_setup():
        Bsz, L, D, N = 1, 2048, 576, 128
        return {
            "u": _w((lambda *s: torch.randn(*s, dtype=torch.bfloat16) * 0.05)(Bsz, L, D)),
            "log_A_real": _w((lambda *s: torch.randn(*s, dtype=torch.bfloat16) * 6.4)(D, N) * 0.5),
            "A_imag": _w((lambda *s: torch.randn(*s, dtype=torch.bfloat16) * 0.05)(D, N) * 3.14),
            "C_real": _w((lambda *s: torch.randn(*s, dtype=torch.bfloat16) * 0.05)(D, N) / N ** 0.5),
            "C_imag": _w((lambda *s: torch.randn(*s, dtype=torch.bfloat16) * 0.1)(D, N) / N ** 0.5),
            "log_dt": _w((lambda *s: torch.randn(*s, dtype=torch.bfloat16) * 0.05)(D) * 0.5 - 4.0),
            "D_skip": _w((lambda *s: torch.randn(*s, dtype=torch.bfloat16) * 0.05)(D)),
        }
    _A_in = _A_setup()

    def _B_setup():
        B, S, D, F = 1, 2048, 576, 4608
        return {
            "x": _w((lambda *s: torch.randn(*s, dtype=torch.bfloat16) * 0.05)(B, S, D)),
            "w1": _w((lambda *s: torch.randn(*s, dtype=torch.bfloat16) * 0.8)(S, F) * (S ** -0.5)),
            "b1": _w((lambda *s: torch.randn(*s, dtype=torch.bfloat16) * 12.8)(F) * 0.02),
            "w2": _w((lambda *s: torch.randn(*s, dtype=torch.bfloat16) * 0.2)(F, S) * (F ** -0.5)),
            "b2": _w((lambda *s: torch.randn(*s, dtype=torch.bfloat16) * 1.6)(S) * 0.02),
        }
    _B_in = _B_setup()

    return {
        "A_u": _A_in["u"],
        "A_log_A_real": _A_in["log_A_real"],
        "A_A_imag": _A_in["A_imag"],
        "A_C_real": _A_in["C_real"],
        "A_C_imag": _A_in["C_imag"],
        "A_log_dt": _A_in["log_dt"],
        "A_D_skip": _A_in["D_skip"],
        "B_x": _B_in["x"],
        "B_w1": _B_in["w1"],
        "B_b1": _B_in["b1"],
        "B_w2": _B_in["w2"],
        "B_b2": _B_in["b2"],
    }

def reference(A_u, A_log_A_real, A_A_imag, A_C_real, A_C_imag, A_log_dt, A_D_skip, B_x, B_w1, B_b1, B_w2, B_b2):
    def _A_ref(u, log_A_real, A_imag, C_real, C_imag, log_dt, D_skip):
        L = u.shape[1]
        dt = torch.exp(log_dt)
        A = -torch.exp(log_A_real) + 1j * A_imag
        C = (C_real + 1j * C_imag) * dt[:, None]
        pos = (lambda x, dt: x.to(dt))(torch.arange(L), log_dt.dtype)
        P = torch.exp((A * dt[:, None])[:, :, None] * pos[None, None, :])
        K = 2.0 * torch.einsum("dn,dnl->dl", C, P).real
        L2 = 2 * L
        u_t = (lambda x, *d: x.permute(*d))(u, 0, 2, 1)
        Kf = (lambda x, *a, **k: torch.fft.rfft(x.float(), *a, **k))(K, L2)
        Uf = (lambda x, *a, **k: torch.fft.rfft(x.float(), *a, **k))(u_t, L2)
        y = (lambda x, *a, **k: torch.fft.irfft(x, *a, **k).to(torch.bfloat16))(Uf * Kf[None, :, :], L2)[:, :, :L]
        y = (lambda x, *d: x.permute(*d))(y, 0, 2, 1)
        return y + u * D_skip[None, None, :]

    def _B_ref(x, w1, b1, w2, b2):
        B, S, D = x.shape
        h = _layernorm(x, axis=-1)
        u = torch.einsum("bsd,sf->bdf", h, w1) + b1
        u = _gelu(u)
        y = torch.einsum("bdf,fs->bds", u, w2) + b2
        return (lambda x, *d: x.permute(*d))(y, 0, 2, 1)

    x = A_u
    xn = _layernorm(x, axis=-1)
    return x + _A_ref(xn, A_log_A_real, A_A_imag, A_C_real, A_C_imag, A_log_dt, A_D_skip) + _B_ref(xn, B_w1, B_b1, B_w2, B_b2)
```

```python
import re

TRANS = ("v_exp_f32", "v_log_f32", "v_rcp_f32", "v_rsq_f32", "v_sqrt_f32", "v_sin_f32", "v_cos_f32")
REG = re.compile(r"(?<![\w.])(?:([vas])\[(\d+):(\d+)\]|([vas])(\d+)\b|(vcc|exec|m0)(?:_lo|_hi)?\b)")

def regs(op):
    out = set()
    for m in REG.finditer(op):
        if m.group(1):
            out |= {(m.group(1), i) for i in range(int(m.group(2)), int(m.group(3)) + 1)}
        elif m.group(4):
            out.add((m.group(4), int(m.group(5))))
        else:
            out.add(("s", m.group(6)))
    return out

def split_ops(rest):
    ops, depth, cur = [], 0, ""
    for ch in rest:
        if ch == "[": depth += 1
        if ch == "]": depth -= 1
        if ch == "," and depth == 0:
            ops.append(cur.strip()); cur = ""
        else:
            cur += ch
    if cur.strip(): ops.append(cur.strip())
    return ops

class I:
    def __init__(self, text):
        self.text = text
        t = text.split(";")[0].strip()
        self.label = t[:-1] if t.endswith(":") else None
        self.directive = t.startswith(".") or not t
        self.mn = ""; self.w = set(); self.r = set(); self.kind = None
        self.srcc = set(); self.srcab = set(); self.sdata = set(); self.ws = 1
        if self.label or self.directive:
            self.ws = 0
            return
        p = t.split(None, 1)
        mn = self.mn = p[0]
        ops = split_ops(p[1]) if len(p) > 1 else []
        if ops:
            last = ops[-1].split()
            self.mods = " ".join(last[1:])
            ops[-1] = last[0]
        else:
            self.mods = ""
        R = [regs(o) for o in ops]
        allr = set().union(*R) if R else set()
        if mn == "s_nop":
            self.kind = "nop"; self.ws = int(ops[0], 0) + 1
        elif mn.startswith("v_mfma"):
            self.kind = "mfma"; self.w = R[0]; self.srcab = R[1] | R[2]; self.srcc = R[3]; self.r = self.srcab | self.srcc
            self.passes = 8 if "32x32x16" in mn else 4
            self.dtxt = ops[0]; self.ctxt = ops[3]
        elif mn.startswith("v_"):
            self.kind = "valu"
            self.dpp = "_dpp" in mn or any(k in self.mods for k in ("quad_perm", "row_", "wave_"))
            self.trans = mn.replace("_e32", "").replace("_e64", "") in TRANS
            if mn.startswith("v_permlane"):
                self.w = allr; self.r = allr
            elif mn.startswith("v_cmp"):
                self.w = R[0]; self.r = set().union(*R[1:])
            elif "_co_" in mn:
                self.w = R[0] | R[1]; self.r = set().union(*R[2:])
            elif mn in ("v_nop",):
                pass
            else:
                self.w = R[0]; self.r = set().union(*R[1:]) if len(R) > 1 else set()
                if mn.startswith(("v_fmac", "v_writelane")) or self.dpp: self.r |= R[0]
        elif mn.startswith(("buffer_", "global_")):
            self.kind = "vmem"
            self.lds = "lds" in self.mods.split() or "load_lds" in mn
            if mn.startswith(("buffer_wbl2", "buffer_inv")):
                pass
            elif self.lds:
                self.r = allr | {("s", "m0")}
            elif "load" in mn:
                self.w = R[0]; self.r = set().union(*R[1:])
            elif "atomic" in mn and "sc0" in self.mods.split():
                self.r = allr; self.w = R[0]
            else:
                self.r = allr
                if mn.endswith(("x3", "x4")):
                    self.sdata = R[0] if mn.startswith("buffer_") else R[1]
        elif mn.startswith("ds_"):
            self.kind = "ds"
            if "read" in mn or "permute" in mn or "swizzle" in mn:
                self.w = R[0]; self.r = set().union(*R[1:])
            else:
                self.r = allr
        elif mn.startswith("s_"):
            self.kind = "salu"
            if mn.startswith(("s_cmp", "s_waitcnt", "s_barrier", "s_branch", "s_cbranch", "s_endpgm", "s_setprio", "s_sleep", "s_bitcmp")):
                self.r = allr
            elif "saveexec" in mn:
                self.w = R[0] | {("s", "exec")}; self.r = set().union(*R[1:])
            else:
                self.w = R[0] if R else set(); self.r = set().union(*R[1:]) if len(R) > 1 else set()
            self.target = ops[0] if mn.startswith(("s_branch", "s_cbranch")) else None
            if mn == "s_setpc_b64": self.w = set(); self.r = allr
        else:
            raise ValueError("unparsed: " + text)

def vg(s): return {x for x in s if x[0] in "va"}
def sg(s): return {x for x in s if x[0] == "s"}

def need(p, c):
    n = 0
    if p.kind == "valu":
        pw = vg(p.w); ps = sg(p.w)
        if c.kind == "mfma" and pw & c.r: n = max(n, 2)
        if c.kind == "mfma" and ("s", "exec") in ps: n = max(n, 4)
        if c.kind == "valu":
            if p.trans and not c.trans and pw & c.r: n = max(n, 1)
            if c.dpp and pw & c.r: n = max(n, 2)
            if c.mn.startswith("v_permlane") and pw & c.r: n = max(n, 2)
            if c.mn.startswith(("v_readlane", "v_readfirstlane")) and pw & c.r: n = max(n, 1)
            if ps & c.r: n = max(n, 4 if c.mn.startswith(("v_readlane", "v_writelane")) else 2)
            if c.mn.startswith("v_cndmask") and ("s", "vcc") in ps and ("s", "vcc") in c.r: n = max(n, 2)
        if c.kind == "vmem" and ps & c.r: n = max(n, 5)
        if c.kind == "salu" and ps & c.r: n = max(n, 2)
    if p.kind == "mfma":
        big = p.passes == 8
        if c.kind == "mfma":
            if p.w & c.srcab: n = max(n, 12 if big else 8)
            if p.w & c.srcc and not (c.ctxt == p.dtxt and c.passes == p.passes): n = max(n, 10 if big else 6)
            if p.w & c.w and not (p.w & c.srcc): n = max(n, 10 if big else 6)
        elif c.kind in ("valu", "vmem", "ds"):
            if p.w & (c.r | c.w): n = max(n, 12 if big else 8)
            if c.kind == "valu" and p.srcc & c.w: n = max(n, 7 if big else 3)
    if p.kind == "salu" and ("s", "m0") in p.w and c.kind == "vmem" and c.lds: n = max(n, 1)
    if p.kind == "vmem" and p.sdata and p.sdata & c.w: n = max(n, 2)
    return n

MAXW = 12

def fix(lines):
    ins = [I(l) for l in lines]
    added = 0
    while True:
        lab = {x.label: i for i, x in enumerate(ins) if x.label}
        worst = {}
        for i, p in enumerate(ins):
            if p.kind not in ("valu", "mfma", "salu", "vmem"): continue
            if p.kind == "salu" and ("s", "m0") not in p.w: continue
            if p.kind == "vmem" and not p.sdata: continue
            stack = [(i + 1, 0)]; seen = {}
            while stack:
                j, d = stack.pop()
                while j < len(ins) and d < MAXW:
                    if seen.get(j, 99) <= d: break
                    seen[j] = d
                    c = ins[j]
                    if c.kind:
                        k = need(p, c)
                        if k > d: worst[j] = max(worst.get(j, 0), k - d)
                        d += c.ws
                        if c.mn in ("s_endpgm", "s_setpc_b64"): break
                        if c.kind == "salu" and c.target:
                            stack.append((lab[c.target], d))
                            if c.mn == "s_branch": break
                    j += 1
        if not worst: break
        pick, lastj = [], -99
        for j in sorted(worst):
            if j - lastj > MAXW + 4:
                pick.append(j); lastj = j
        for j in reversed(pick):
            ins.insert(j, I("s_nop %d" % (worst[j] - 1)))
            added += 1
    return [x.text for x in ins], added

class Asm:
    def __init__(self): self.l = []
    def __call__(self, s, *a):
        if a: s = s % a
        for x in s.split("\n"):
            x = x.strip()
            if x: self.l.append(x)
    def text(self):
        out, n = fix(self.l)
        return "\n".join(x if x.endswith(":") or x.startswith(".") else "    " + x for x in out), n

def vr(a, n=1): return "v%d" % a if n == 1 else "v[%d:%d]" % (a, a + n - 1)
def sr(a, n=1): return "s%d" % a if n == 1 else "s[%d:%d]" % (a, a + n - 1)

def interleave(main, fill, per_gap, start=0):
    out = []; f = list(fill)
    for i, m in enumerate(main):
        out.append(m)
        if i >= start:
            for _ in range(per_gap):
                if f: out.append(f.pop(0))
    return out + f
```

```python
import sys, math, struct
from asmlib import *

NAME = "parallel_sum__ssm_conv_s4d__mixer_token_mlp__prompt"
SZ = 2359296
WS_HT, WS_XT, WS_BASE, WS_K, WS_YC = 0, SZ, 2 * SZ, 3 * SZ, 4 * SZ
WS_H = 5 * SZ
SZ_H = 5308416
WS_P = WS_H + SZ_H
SZ_P = 256 * 4 * 18432
SZ_W = 18874368
ARG = dict(x=0, loga=8, aim=16, cr=24, ci=32, logdt=40, dsk=48, w1=64, b1=72, w2=80, b2=88, out=96, dbg=104, ws=112)
OPT = dict(wflag="")

def f2u(f): return struct.unpack("<I", struct.pack("<f", f))[0]
def hx(f): return "0x%08x" % f2u(f)

def srd(A, d, b, size, off=0):
    if off:
        A("s_add_u32 s%d, s%d, %d\ns_addc_u32 s%d, s%d, 0", d, b, off, d + 1, b + 1)
    else:
        A("s_mov_b32 s%d, s%d\ns_mov_b32 s%d, s%d", d, b, d + 1, b + 1)
    A("s_mov_b32 s%d, %d\ns_mov_b32 s%d, 0x20000", d + 2, size, d + 3)

def head(A, k):
    A(".p2align 8\n.globl %s\n.type %s,@function\n%s:", k, k, k)

def kd(k, nv, ns=102):
    acc = min(256, (nv + 3) // 4 * 4)
    return (".p2align 6\n.amdhsa_kernel %s\n  .amdhsa_next_free_vgpr %d\n  .amdhsa_next_free_sgpr %d\n  .amdhsa_accum_offset %d\n"
            "  .amdhsa_group_segment_fixed_size 0\n  .amdhsa_kernarg_size 120\n  .amdhsa_user_sgpr_count 2\n"
            "  .amdhsa_user_sgpr_kernarg_segment_ptr 1\n  .amdhsa_system_sgpr_workgroup_id_x 1\n"
            "  .amdhsa_float_denorm_mode_32 3\n.end_amdhsa_kernel\n") % (k, nv, ns, acc)

def wave_id(A, s, lane=1):
    A("v_lshrrev_b32 v%d, 6, v0\nv_readfirstlane_b32 s%d, v%d\nv_and_b32 v%d, 63, v0", lane, s, lane, lane)

RS = 1216
def reduce32(A, a, b):
    for m in ("quad_perm:[1,0,3,2]", "quad_perm:[2,3,0,1]", "row_half_mirror", "row_mirror"):
        A("v_add_f32_dpp v%d, v%d, v%d %s row_mask:0xf bank_mask:0xf", a, a, a, m)
    A("v_mov_b32 v%d, v%d\nv_permlane16_swap_b32 v%d, v%d\nv_add_f32 v%d, v%d, v%d", b, a, a, b, a, a, b)

def unpack(A, lo, hi, src):
    A("v_lshlrev_b32 v%d, 16, v%d\nv_and_b32 v%d, 0xffff0000, v%d", lo, src, hi, src)

def rbf(A, d, s):
    A("v_cvt_pk_bf16_f32 v%d, v%d, v%d\nv_and_b32 v%d, 0xffff0000, v%d", d, s, s, d, d)

def layernorm(A, a, t, p, m, unpack_out):
    BC = "op_sel:[0,0] op_sel_hi:[1,0]"
    A("v_pk_add_f32 %s, %s, %s", vr(m, 2), vr(a, 2), vr(a + 2, 2))
    for i in range(2, 9): A("v_pk_add_f32 %s, %s, %s", vr(m, 2), vr(m, 2), vr(a + 2 * i, 2))
    A("v_add_f32 v%d, v%d, v%d", m, m, m + 1)
    reduce32(A, m, m + 1)
    A("v_mul_f32 v%d, %s, v%d", m, hx(1 / 576.), m)
    for i in range(9): A("v_pk_add_f32 %s, %s, %s %s neg_lo:[0,1] neg_hi:[0,1]", vr(t + 2 * i, 2), vr(a + 2 * i, 2), vr(m, 2), BC)
    A("v_pk_mul_f32 %s, %s, %s", vr(m + 2, 2), vr(t, 2), vr(t, 2))
    for i in range(1, 9): A("v_pk_fma_f32 %s, %s, %s, %s", vr(m + 2, 2), vr(t + 2 * i, 2), vr(t + 2 * i, 2), vr(m + 2, 2))
    A("v_add_f32 v%d, v%d, v%d", m + 2, m + 2, m + 3)
    rbf(A, m, m)
    for i in range(9): A("v_pk_add_f32 %s, %s, %s %s neg_lo:[0,1] neg_hi:[0,1]", vr(t + 2 * i, 2), vr(a + 2 * i, 2), vr(m, 2), BC)
    reduce32(A, m + 2, m + 3)
    A("v_mul_f32 v%d, %s, v%d", m + 2, hx(1 / 576.), m + 2)
    rbf(A, m + 2, m + 2)
    A("v_add_f32 v%d, %s, v%d", m + 2, hx(1e-5), m + 2)
    rbf(A, m + 2, m + 2)
    A("v_sqrt_f32 v%d, v%d", m + 2, m + 2)
    for i in range(9): A("v_cvt_pk_bf16_f32 v%d, v%d, v%d", p + i, t + 2 * i, t + 2 * i + 1)
    rbf(A, m + 2, m + 2)
    A("v_rcp_f32 v%d, v%d", m + 2, m + 2)
    for i in range(9): unpack(A, t + 2 * i, t + 2 * i + 1, p + i)
    for i in range(9): A("v_pk_mul_f32 %s, %s, %s %s", vr(t + 2 * i, 2), vr(t + 2 * i, 2), vr(m + 2, 2), BC)
    for i in range(9): A("v_cvt_pk_bf16_f32 v%d, v%d, v%d", p + i, t + 2 * i, t + 2 * i + 1)
    if unpack_out is not None:
        for i in range(9): unpack(A, unpack_out + 2 * i, unpack_out + 2 * i + 1, p + i)

def k1_ln(A):
    A("s_load_dwordx2 s[4:5], s[0:1], %d\ns_load_dwordx2 s[6:7], s[0:1], %d\ns_load_dwordx2 s[8:9], s[0:1], %d", ARG["x"], ARG["dsk"], ARG["ws"])
    wave_id(A, 10)
    A("s_and_b32 s11, s2, 7\ns_lshl_b32 s11, s11, 5\ns_lshr_b32 s3, s2, 3\ns_add_u32 s11, s11, s3")
    A("s_lshl_b32 s3, s11, 3\ns_lshl_b32 s28, s10, 1\ns_add_u32 s3, s3, s28")
    A("v_lshrrev_b32 v4, 5, v1\nv_add_u32 v2, s3, v4\nv_mul_u32_u24 v2, 1152, v2")
    A("v_and_b32 v3, 31, v1\nv_lshlrev_b32 v3, 2, v3\nv_add_u32 v2, v2, v3")
    A("v_add_u32 v4, s28, v4\nv_mul_u32_u24 v4, %d, v4\nv_add_u32 v4, v4, v3", RS)
    A("s_waitcnt lgkmcnt(0)")
    srd(A, 12, 4, SZ); srd(A, 16, 6, 1152); srd(A, 20, 8, SZ, WS_BASE)
    X, DS, XF, T, P, M, XN = 8, 17, 26, 44, 62, 72, 76
    for i in range(9): A("buffer_load_dword v%d, v2, s[12:15], 0 offen offset:%d", X + i, 128 * i)
    for i in range(9): A("buffer_load_dword v%d, v3, s[16:19], 0 offen offset:%d", DS + i, 128 * i)
    A("s_and_b32 s29, s10, 1\ns_lshl_b32 s29, s29, 6")
    A("v_bfe_u32 v5, v1, 2, 2\nv_mul_u32_u24 v5, %d, v5\nv_and_b32 v6, 3, v1\nv_lshl_add_u32 v5, v6, 3, v5", RS)
    A("v_lshrrev_b32 v6, 4, v1\nv_lshl_add_u32 v5, v6, 5, v5\ns_lshl_b32 s30, s29, 1\nv_add_u32 v5, s30, v5")
    AD = 94
    A("s_cmp_ge_u32 s10, 2\ns_cbranch_scc1 k1_xt")
    srd(A, 24, 8, SZ, WS_HT)
    A("v_add_u32 v5, %d, v5\ns_mul_i32 s30, s11, 2304", 8 * RS)
    for j in range(5):
        A("v_add_u32 v6, s29, v1\nv_add_u32 v6, %d, v6", 128 * j)
        A("v_mul_u32_u24 v7, 3641, v6\nv_lshrrev_b32 v7, 19, v7\nv_mul_u32_u24 v99, 144, v7\nv_sub_u32 v6, v6, v99")
        A("v_and_b32 v99, 4, v6\nv_lshlrev_b32 v99, 2, v99\nv_and_b32 v100, 24, v6\nv_lshrrev_b32 v100, 1, v100\nv_or_b32 v99, v99, v100")
        A("v_and_b32 v100, 0xe3, v6\nv_or_b32 v99, v99, v100\nv_lshrrev_b32 v100, 7, v6\nv_cmp_eq_u32 s[32:33], 0, v100\nv_cndmask_b32 v6, v6, v99, s[32:33]")
        A("v_mul_u32_u24 v7, 589824, v7\nv_lshl_add_u32 v6, v6, 4, v7\nv_add_u32 v%d, s30, v6", AD + j)
    A("s_branch k1_go\nk1_xt:")
    srd(A, 24, 8, SZ, WS_XT)
    A("s_lshl_b32 s30, s11, 4")
    for j in range(5):
        A("v_add_u32 v6, s29, v1\nv_add_u32 v6, %d, v6\nv_lshlrev_b32 v6, 12, v6\nv_add_u32 v%d, s30, v6", 128 * j, AD + j)
    A("k1_go:")
    A("s_waitcnt vmcnt(9)")
    for i in range(9): unpack(A, XF + 2 * i, XF + 2 * i + 1, X + i)
    layernorm(A, XF, T, P, M, XN)
    for i in range(9): A("ds_write_b32 v4, v%d offset:%d", P + i, 128 * i)
    A("s_waitcnt vmcnt(0)")
    for i in range(9): unpack(A, T + 2 * i, T + 2 * i + 1, DS + i)
    for i in range(9): A("v_pk_fma_f32 %s, %s, %s, %s", vr(XF + 2 * i, 2), vr(XN + 2 * i, 2), vr(T + 2 * i, 2), vr(XF + 2 * i, 2))
    for i in range(9): A("v_cvt_pk_bf16_f32 v%d, v%d, v%d", X + i, XF + 2 * i, XF + 2 * i + 1)
    for i in range(9): A("buffer_store_dword v%d, v2, s[20:23], 0 offen offset:%d", X + i, 128 * i)
    layernorm(A, XN, T, DS, M, None)
    for i in range(9): A("ds_write_b32 v4, v%d offset:%d", DS + i, 8 * RS + 128 * i)
    A("s_waitcnt lgkmcnt(0)\ns_barrier")
    for j in range(5):
        A("ds_read_b64_tr_b16 %s, v5 offset:%d", vr(XF + 4 * j + 2, 2), 256 * j)
        A("ds_read_b64_tr_b16 %s, v5 offset:%d", vr(XF + 4 * j + 4, 2), 256 * j + 4 * RS)
    for j in range(5):
        A("s_waitcnt lgkmcnt(%d)", 8 - 2 * j)
        A("buffer_store_dwordx4 %s, v%d, s[24:27], 0 offen", vr(XF + 4 * j + 2, 4), AD + j)
    A("s_endpgm")

KRS = 272
GROWS = {}
for reg, p in enumerate([0, 1, 2, 3, 256, 258, 260, 262, 264, 512, 516, 520, 768, 772, 776]): GROWS[p] = (reg & 3) + 8 * (reg >> 2)
for reg, p in enumerate([4, 5, 6, 7, 1024, 1032, 1280, 1288, 1536, 1544, 1792, 1800]): GROWS[p] = (reg & 3) + 8 * (reg >> 2) + 4

def cmul(A, z, a, b, t):
    A("v_pk_mul_f32 %s, %s, %s op_sel:[0,0] op_sel_hi:[0,1]", vr(t, 2), vr(a, 2), vr(b, 2))
    A("v_pk_fma_f32 %s, %s, %s, %s op_sel:[1,1,0] op_sel_hi:[1,0,1] neg_lo:[0,1,0]", vr(z, 2), vr(a, 2), vr(b, 2), vr(t, 2))

def k1_kgen(A):
    A("s_load_dwordx8 s[4:11], s[0:1], %d\ns_load_dwordx2 s[12:13], s[0:1], %d\ns_load_dwordx2 s[14:15], s[0:1], %d", ARG["loga"], ARG["logdt"], ARG["ws"])
    wave_id(A, 16)
    A("s_sub_u32 s3, s2, 256\ns_lshl_b32 s3, s3, 1\ns_lshr_b32 s17, s16, 1\ns_add_u32 s17, s17, s3")
    A("s_and_b32 s18, s16, 1\ns_lshl_b32 s19, s17, 8\ns_lshl_b32 s3, s18, 7\ns_add_u32 s19, s19, s3")
    A("v_lshlrev_b32 v2, 1, v1\nv_add_u32 v2, s19, v2\ns_lshl_b32 s3, s17, 1\nv_mov_b32 v3, s3")
    A("s_waitcnt lgkmcnt(0)")
    for i in range(4): srd(A, 20 + 4 * i, 4 + 2 * i, 147456)
    srd(A, 36, 12, 1152); srd(A, 40, 14, SZ, WS_K)
    A("buffer_load_ushort v8, v3, s[36:39], 0 offen")
    for i in range(4): A("buffer_load_ushort v%d, v2, s[%d:%d], 0 offen", 4 + i, 20 + 4 * i, 23 + 4 * i)
    A("s_mul_i32 s3, s16, %d\nv_lshlrev_b32 v2, 2, v1\nv_add_u32 v2, s3, v2", 32 * KRS)
    A("v_and_b32 v3, 31, v1\nv_mul_u32_u24 v3, %d, v3\nv_lshrrev_b32 v9, 5, v1\nv_lshl_add_u32 v3, v9, 4, v3\nv_add_u32 v3, s3, v3", KRS)
    LOG2E = 1.4426950408889634
    A("s_waitcnt vmcnt(3)")
    A("v_lshlrev_b32 v8, 16, v8\nv_lshlrev_b32 v4, 16, v4\nv_mul_f32 v8, %s, v8\nv_mul_f32 v4, %s, v4\nv_exp_f32 v8, v8\nv_exp_f32 v4, v4", hx(LOG2E), hx(LOG2E))
    rbf(A, 8, 8); rbf(A, 4, 4)
    A("s_waitcnt vmcnt(0)")
    for i in (5, 6, 7): A("v_lshlrev_b32 v%d, 16, v%d", i, i)
    A("v_mul_f32 v4, v4, v8\nv_mul_f32 v5, v5, v8\nv_mul_f32 v4, %s, v4\nv_mul_f32 v5, %s, v5", hx(-LOG2E), hx(1 / (2 * math.pi)))
    G0 = 10
    A("v_add_f32 v8, v8, v8\nv_mul_f32 v%d, v6, v8\nv_mul_f32 v%d, v7, v8", G0, G0 + 1)
    T = 6
    E = {}
    nxt = [12]
    def alloc():
        r = nxt[0]; nxt[0] += 2; return r
    for p in (1, 8, 64, 256, 1024):
        r = E[p] = alloc()
        A("v_mul_f32 v8, %s, v4\nv_mul_f32 v9, %s, v5\nv_exp_f32 v8, v8\nv_fract_f32 v9, v9", hx(float(p)), hx(float(p)))
        A("v_cos_f32 v%d, v9\nv_sin_f32 v%d, v9\nv_pk_mul_f32 %s, %s, v[8:9] op_sel:[0,0] op_sel_hi:[1,0]", r, r + 1, vr(r, 2), vr(r, 2))
    for p in (2, 4, 16, 32, 128, 512):
        E[p] = alloc(); cmul(A, E[p], E[p // 2], E[p // 2], T)
    E[192] = alloc(); cmul(A, E[192], E[64], E[128], T)
    PK = [8, 9]; pk = [0]
    def put(row, r, neg):
        t = PK[pk[0] & 1]; pk[0] += 1
        A("v_cvt_pk_bf16_f32 v%d, v%d, %sv%d\nds_write_b32 v2, v%d offset:%d", t, r, "-" if neg else "", r + 1, t, row * KRS)
    H = {1: E[8], 2: E[16], 4: E[32]}
    A("v_mov_b32 v8, 0x3f80\nds_write_b32 v2, v8"); pk[0] = 1
    for j, (a, b) in ((3, (1, 2)), (5, (1, 4)), (6, (2, 4)), (7, (3, 4))):
        H[j] = alloc(); cmul(A, H[j], H[a], H[b], T)
    for j in range(1, 8): put(j, H[j], False)
    Z = alloc()
    for a in (1, 2, 3):
        put(8 * a, E[64 * a], False)
        for j in range(1, 8):
            cmul(A, Z, H[j], E[64 * a], T); put(8 * a + j, Z, False)
    FB, FA, D = 96, 128, 80
    for k in range(8): A("ds_read_b128 %s, v3 offset:%d", vr(FB + 4 * k, 4), 32 * k)
    G = {0: G0}
    def gm(p, a, e, keep=True):
        r = alloc() if keep else Z
        cmul(A, r, G[a], E[e], T); G[p] = r
    for p, a, e in ((1, 0, 1), (2, 0, 2), (3, 1, 2), (4, 0, 4), (6, 2, 4), (256, 0, 256), (512, 0, 512), (516, 4, 512), (1024, 0, 1024)): gm(p, a, e)
    A("s_waitcnt lgkmcnt(0)")
    for p in (0, 1, 2, 3, 4, 6, 256, 512, 516, 1024): put(GROWS[p], G[p], True)
    for p, a, e, keep in ((5, 1, 4, 0), (7, 3, 4, 0), (258, 2, 256, 0), (260, 4, 256, 0), (262, 6, 256, 0), (264, 256, 8, 0), (520, 512, 8, 0),
                          (768, 512, 256, 1), (772, 516, 256, 0), (776, 768, 8, 0), (1032, 1024, 8, 0), (1280, 1024, 256, 1), (1288, 1280, 8, 0),
                          (1536, 1024, 512, 1), (1544, 1536, 8, 0), (1792, 1536, 256, 1), (1800, 1792, 8, 0)):
        gm(p, a, e, keep); put(GROWS[p], G[p], True)
    assert nxt[0] <= D, nxt[0]
    for k in range(8): A("ds_read_b128 %s, v3 offset:%d", vr(FA + 4 * k, 4), 32 * k)
    for k in range(8):
        A("s_waitcnt lgkmcnt(%d)", 7 - k)
        A("v_mfma_f32_32x32x16_bf16 %s, %s, %s, %s", vr(D, 16), vr(FA + 4 * k, 4), vr(FB + 4 * k, 4), vr(D, 16) if k else "0")
    A("s_or_b32 s3, s16, 1\ns_mul_i32 s3, s3, %d\nv_lshlrev_b32 v2, 4, v1\nv_add_u32 v2, s3, v2", 32 * KRS)
    A("s_cmp_eq_u32 s18, 0\ns_cbranch_scc1 kg_even")
    for i in range(4): A("ds_write_b128 v2, %s offset:%d", vr(D + 4 * i, 4), 1024 * i)
    A("s_waitcnt lgkmcnt(0)\ns_barrier\ns_endpgm\nkg_even:\ns_barrier")
    for i in range(4): A("ds_read_b128 %s, v2 offset:%d", vr(FB + 4 * i, 4), 1024 * i)
    A("v_and_b32 v3, 31, v1\nv_lshlrev_b32 v3, 4, v3\ns_lshl_b32 s3, s17, 12\nv_add_u32 v3, s3, v3\nv_lshrrev_b32 v4, 5, v1\nv_lshl_add_u32 v4, v4, 3, v3")
    A("v_and_b32 v5, 1, v1\nv_cmp_eq_u32 s[44:45], 1, v5")
    A("s_waitcnt lgkmcnt(0)")
    for i in range(8): A("v_pk_add_f32 %s, %s, %s", vr(D + 2 * i, 2), vr(D + 2 * i, 2), vr(FB + 2 * i, 2))
    def pk2(d, a, b): A("v_cvt_pk_bf16_f32 v%d, v%d, v%d", d, a, b)
    r = lambda i: D + i
    O = 12
    pk2(O, r(0), r(1)); pk2(O + 1, r(2), r(3))
    A("buffer_store_dwordx2 %s, v4, s[40:43], 0 offen", vr(O, 2))
    O = 16
    A("s_mov_b32 exec_lo, -1\ns_mov_b32 exec_hi, 0")
    for blk, seq in ((256, ((4, 4), (5, 6), (6, 6), (7, 8))), (512, ((9, 9), (9, 10), (10, 10), (11, 11))), (768, ((12, 12), (12, 13), (13, 13), (14, 14)))):
        for i, (a, b) in enumerate(seq): pk2(O + i, r(a), r(b))
        A("buffer_store_dwordx4 %s, v3, s[40:43], 0 offen offset:%d", vr(O, 4), 2 * blk); O += 4
    A("s_mov_b32 exec_lo, 0\ns_mov_b32 exec_hi, -1")
    for blk, a in ((1024, 4), (1280, 6), (1536, 8), (1792, 10)):
        A("v_cndmask_b32 v8, v%d, v%d, s[44:45]", r(a), r(a + 1))
        pk2(O, r(a), r(a)); pk2(O + 1, r(a), r(a)); pk2(O + 2, 8, r(a + 1)); pk2(O + 3, r(a + 1), r(a + 1))
        A("buffer_store_dwordx4 %s, v3, s[40:43], 0 offen offset:%d", vr(O, 4), 2 * blk); O += 4
    A("s_endpgm")

def k1(A):
    head(A, "k1_kernel")
    A("s_cmp_ge_u32 s2, 256\ns_cbranch_scc1 k1_b")
    k1_ln(A)
    A("k1_b:\ns_cmp_ge_u32 s2, 544\ns_cbranch_scc1 k1_end")
    k1_kgen(A)
    A("k1_end:\ns_endpgm")

def loader(A, tag, nstage, nslot, nB, a_stride, b_stride, b_groups, slotB, baseB):
    per = 9 + nB
    A("s_mul_i32 s22, s10, 9216\ns_add_u32 s20, s20, s22")
    A("s_mul_i32 s23, s10, %d\ns_add_u32 s23, s23, %d", slotB // 2, baseB)
    A("s_mov_b32 s24, 0")
    def issue():
        for g, n in ((0, 4), (4, 4), (8, 1)):
            A("s_add_u32 m0, s22, %d\ns_add_u32 s25, s20, %d", 1024 * g, 1024 * g)
            for i in range(n): A("buffer_load_dwordx4 v2, s[12:15], s25 offen offset:%d lds", 1024 * i)
        for regs_, so, lo in b_groups:
            A("s_add_u32 m0, s23, %d\ns_add_u32 s25, s21, %d", lo, so)
            for i, r in enumerate(regs_): A("buffer_load_dwordx4 v%d, s[16:19], s25 offen offset:%d %s lds", r, 1024 * i, OPT["wflag"])
        A("s_add_u32 s20, s20, %d\ns_add_u32 s21, s21, %d", a_stride, b_stride)
        A("s_add_u32 s22, s22, 18432\ns_add_u32 s23, s23, %d\ns_add_u32 s24, s24, 1\ns_cmp_eq_u32 s24, %d", slotB, nslot)
        A("s_cselect_b32 s25, %d, 0\ns_sub_u32 s22, s22, s25\ns_cmp_eq_u32 s24, %d\ns_cselect_b32 s25, %d, 0\ns_sub_u32 s23, s23, s25", 18432 * nslot, nslot, slotB * nslot)
        A("s_cmp_eq_u32 s24, %d\ns_cselect_b32 s24, 0, s24", nslot)
    A("s_mov_b32 s26, 0\n%s_pro:", tag)
    issue()
    A("s_add_u32 s26, s26, 1\ns_cmp_lt_u32 s26, %d\ns_cbranch_scc1 %s_pro", nslot - 1, tag)
    A("%s_loop:\ns_waitcnt vmcnt(%d)\ns_barrier", tag, per * (nslot - 2))
    issue()
    A("s_add_u32 s26, s26, 1\ns_cmp_lt_u32 s26, %d\ns_cbranch_scc1 %s_loop", nstage, tag)
    for k in range(nslot - 2, -1, -1): A("s_waitcnt vmcnt(%d)\ns_barrier", per * k)

def consumer(A, tag, nstage, nslot, reads, mfmas, per_gap=2):
    A("s_mov_b32 s26, 0\n.p2align 6\n%s_loop:", tag)
    rem = nstage % nslot
    for slot in range(nslot):
        A("s_barrier")
        for x in interleave(mfmas(1), reads(slot, 0, 0), per_gap): A(x)
        A("s_waitcnt lgkmcnt(0)")
        for x in interleave(mfmas(0), reads(slot, 1, 1), per_gap): A(x)
        if slot == (rem - 1) % nslot:
            A("s_add_u32 s26, s26, 1\ns_cmp_eq_u32 s26, %d", (nstage + nslot - 1) // nslot)
            A("s_waitcnt lgkmcnt(0)\ns_cbranch_scc1 %s_done", tag)
        else:
            A("s_waitcnt lgkmcnt(0)")
    A("s_branch %s_loop\n%s_done:", tag, tag)
    for x in mfmas(1): A(x)

def k2_gemm(A):
    A("s_load_dwordx4 s[4:7], s[0:1], %d\ns_load_dwordx2 s[8:9], s[0:1], %d", ARG["w1"], ARG["ws"])
    A("s_mul_i32 s28, s3, 6\ns_lshr_b32 s29, s11, 2\ns_add_u32 s28, s28, s29\ns_and_b32 s29, s11, 3")
    A("s_cmp_ge_u32 s10, 6\ns_cbranch_scc1 k2_end\ns_cmp_ge_u32 s10, 4\ns_cbranch_scc0 g1_cons")
    NS, SB, BB = 5, 12288, 5 * 18432
    A("s_sub_u32 s10, s10, 4\nv_lshlrev_b32 v2, 4, v1")
    for i in range(3):
        A("v_add_u32 v6, %d, v1\nv_mul_u32_u24 v7, 5462, v6\nv_lshrrev_b32 v7, 16, v7\nv_mul_u32_u24 v8, 12, v7\nv_sub_u32 v6, v6, v8", 64 * i)
        A("v_lshrrev_b32 v8, 2, v7\nv_and_b32 v8, 2, v8\nv_xor_b32 v6, v6, v8\nv_mul_u32_u24 v7, 9216, v7\nv_lshl_add_u32 v6, v6, 4, v7\nv_subrev_u32 v%d, %d, v6", 3 + i, 1024 * i)
    A("s_mul_i32 s20, s29, 589824\ns_mul_i32 s21, s28, 192\ns_mul_i32 s25, s10, %d\ns_add_u32 s21, s21, s25", 32 * 9216)
    A("s_waitcnt lgkmcnt(0)")
    srd(A, 12, 8, SZ, WS_HT); srd(A, 16, 4, SZ_W)
    loader(A, "g1l", 32, NS, 6, 18432, 64 * 9216, [((3, 4, 5), 0, 0), ((3, 4, 5), 16 * 9216, 3072)], SB, BB)
    A("s_endpgm\ng1_cons:")
    ACC, FX, FY, VA, VB, VS = 16, 72, 108, 2, 6, 12
    A("v_lshrrev_b32 v144, 4, v1\nv_and_b32 v145, 15, v1")
    A("v_mul_u32_u24 v146, 2304, v144\nv_lshl_add_u32 v146, v145, 4, v146")
    A("s_lshl_b32 s25, s10, 9\nv_add_u32 v2, s25, v146\nv_add_u32 v3, 2048, v146\nv_add_u32 v4, %d, v2\nv_add_u32 v5, %d, v3", 3 * 18432, 3 * 18432)
    A("v_bfe_u32 v147, v1, 2, 2\nv_lshl_add_u32 v147, v144, 3, v147\nv_mul_u32_u24 v147, 192, v147\nv_and_b32 v148, 3, v1\nv_lshl_add_u32 v147, v148, 3, v147")
    A("v_add_u32 v147, %d, v147\nv_and_b32 v148, 1, v144\nv_lshlrev_b32 v148, 5, v148\nv_xor_b32 v149, 32, v148\nv_add_u32 v148, v148, v147\nv_add_u32 v149, v149, v147", BB)
    A("s_waitcnt lgkmcnt(0)")
    srd(A, 12, 6, 9216); srd(A, 16, 8, SZ_H, WS_H)
    A("s_mul_i32 s27, s29, %d\ns_mul_i32 s25, s28, %d\ns_add_u32 s27, s27, s25\nv_lshlrev_b32 v150, 3, v144\ns_mul_i32 s30, s28, 192", 576 * 2304, 12 * 2304)
    for u in range(3):
        A("s_add_u32 s25, s10, %d\ns_cmp_ge_u32 s25, 3\ns_cselect_b32 s31, 3, 0\ns_sub_u32 s25, s25, s31\ns_cmp_ge_u32 s25, 3\ns_cselect_b32 s31, 3, 0\ns_sub_u32 s25, s25, s31", u)
        A("s_lshl_b32 s31, s25, 6\nv_add_u32 v%d, s31, v148\nv_add_u32 v%d, s31, v149\ns_add_u32 s31, s31, s30", VB + 2 * u, VB + 2 * u + 1)
        A("buffer_load_dwordx2 %s, v150, s[12:15], s31 offen\nbuffer_load_dwordx2 %s, v150, s[12:15], s31 offen offset:32", vr(FX + 4 * u, 2), vr(FX + 4 * u + 2, 2))
        A("s_mul_i32 s25, s25, %d\ns_add_u32 s%d, s25, s27", 4 * 2304, 32 + u)
    for r in range(FY, FY + 36): A("v_mov_b32 v%d, 0", r)
    acc = lambda t, n: ACC + 4 * (6 * t + n) if t < 2 else ACC + 48 + 4 * n
    A("s_waitcnt vmcnt(0)")
    for n in range(6):
        for h in range(2): unpack(A, acc(0, n) + 2 * h, acc(0, n) + 2 * h + 1, FX + 2 * n + h)
    for n in range(6):
        for t in ((1, 2) if n < 2 else (1,)):
            for e in range(4): A("v_mov_b32 v%d, v%d", acc(t, n) + e, acc(0, n) + e)
    def reads(slot, ks, st):
        F = FY if st else FX
        o = (slot % 3 if slot >= 3 else slot) * 18432 + ks * 9216
        va = 4 if slot >= 3 else 2
        a = ["ds_read_b128 %s, v%d offset:%d" % (vr(F + 24 + 4 * t, 4), va + (t == 2), o + (256 if t == 1 else 0)) for t in range(3)]
        b = [["ds_read_b64_tr_b16 %s, v%d offset:%d" % (vr(F + 4 * n + 2 * h, 2), VB + n, slot * SB + ks * 6144 + h * 768) for h in range(2)] for n in range(6)]
        return [a[0]] + b[0] + b[1] + [a[1]] + b[2] + b[3] + [a[2]] + b[4] + b[5]
    def mfmas(st):
        F = FY if st else FX
        order = [(0, n) for n in range(6)] + [(1, n) for n in range(6)] + [(2, 0), (2, 1)]
        return ["v_mfma_f32_16x16x32_bf16 %s, %s, %s, %s" % (vr(acc(t, n), 4), vr(F + 4 * n, 4), vr(F + 24 + 4 * t, 4), vr(acc(t, n), 4)) for t, n in order]
    consumer(A, "g1c", 32, NS, reads, mfmas)
    c0 = -2 * math.sqrt(2 / math.pi) * 1.4426950408889634
    A("v_mov_b32 v4, %s\nv_mov_b32 v5, %s\nv_mov_b32 v6, %s\nv_mov_b32 v7, %s\nv_mov_b32 v8, 1.0\nv_mov_b32 v9, 1.0", hx(c0), hx(c0), hx(c0 * 0.044715), hx(c0 * 0.044715))
    units = [(t, u) for t in range(2) for u in range(3)] + [(2, 0)]
    for k, (t, u) in enumerate(units):
        a = acc(t, 2 * u); T = FX + 8 * (k & 1); O = FY + 4 * k
        if t == 2: A("s_cmp_eq_u32 s10, 3\ns_cbranch_scc1 k2_end")
        for i in range(4): A("v_pk_mul_f32 %s, %s, %s", vr(T + 2 * i, 2), vr(a + 2 * i, 2), vr(a + 2 * i, 2))
        for i in range(4): A("v_pk_fma_f32 %s, %s, v[6:7], v[4:5]", vr(T + 2 * i, 2), vr(T + 2 * i, 2))
        for i in range(4): A("v_pk_mul_f32 %s, %s, %s", vr(T + 2 * i, 2), vr(T + 2 * i, 2), vr(a + 2 * i, 2))
        for i in range(8): A("v_exp_f32 v%d, v%d", T + i, T + i)
        for i in range(4): A("v_pk_add_f32 %s, %s, v[8:9]", vr(T + 2 * i, 2), vr(T + 2 * i, 2))
        for i in range(8): A("v_rcp_f32 v%d, v%d", T + i, T + i)
        for i in range(4): A("v_pk_mul_f32 %s, %s, %s", vr(T + 2 * i, 2), vr(T + 2 * i, 2), vr(a + 2 * i, 2))
        for i in range(4): A("v_cvt_pk_bf16_f32 v%d, v%d, v%d", O + i, T + 2 * i, T + 2 * i + 1)
        if t < 2: A("buffer_store_dwordx4 %s, v2, s[16:19], s%d offen offset:%d", vr(O, 4), 32 + u, 256 * t)
        else: A("buffer_store_dwordx4 %s, v3, s[16:19], s32 offen", vr(O, 4))
    A("s_endpgm")

CSLOT = 8768
def k2_conv(A):
    A("s_load_dwordx2 s[8:9], s[0:1], %d", ARG["ws"])
    A("s_lshl_b32 s3, s3, 3\ns_add_u32 s3, s3, s11\ns_sub_u32 s3, s3, 24\ns_mul_i32 s3, s3, 9\ns_add_u32 s28, s3, s10")
    A("s_mul_i32 s29, s10, %d", CSLOT)
    A("v_lshlrev_b32 v2, 4, v1\nv_lshrrev_b32 v3, 3, v1\nv_and_b32 v3, 2, v3\nv_xor_b32 v3, v3, v1\nv_lshlrev_b32 v3, 4, v3")
    A("s_waitcnt lgkmcnt(0)")
    srd(A, 12, 8, SZ, WS_XT); srd(A, 16, 8, SZ, WS_K); srd(A, 20, 8, SZ, WS_YC)
    def fetch(ch, slot):
        A("s_lshl_b32 s25, s%d, 12\ns_add_u32 m0, s%d, 512", ch, slot)
        for i in range(4): A("buffer_load_dwordx4 v3, s[12:15], s25 offen offset:%d lds", 1024 * i)
        A("s_add_u32 m0, s%d, %d", slot, 4608 + 64)
        for i in range(4): A("buffer_load_dwordx4 v2, s[16:19], s25 offen offset:%d lds", 1024 * i)
        A("v_lshlrev_b32 v4, 3, v1\nv_add_u32 v4, s%d, v4\nv_mov_b32 v6, 0\nv_mov_b32 v7, 0\nds_write_b64 v4, v[6:7]", slot)
        A("v_and_b32 v4, 7, v1\nv_lshlrev_b32 v4, 3, v4\nv_add_u32 v4, s%d, v4\nds_write_b64 v4, v[6:7] offset:4608", slot)
    fetch(28, 29)
    A("s_mov_b32 s27, 1\ns_cmp_lg_u32 s10, 0\ns_cbranch_scc1 cv_go")
    A("s_add_u32 s30, s28, 8\ns_mov_b32 s31, %d\ns_mov_b32 s27, 2\ns_setprio 1", 8 * CSLOT)
    fetch(30, 31)
    A("cv_go:")
    VU, VK, U, KF, ACC = 4, 12, 16, 48, 80
    A("s_mov_b32 s34, 0\ns_mov_b32 s35, 0x80000000")
    A("cv_ch:")
    A("v_lshrrev_b32 v13, 4, v1\nv_and_b32 v14, 3, v1\nv_bfe_u32 v15, v1, 2, 2")
    A("v_and_b32 v16, 1, v13\nv_lshrrev_b32 v17, 1, v13")
    A("v_lshlrev_b32 v18, 5, v16\nv_lshl_add_u32 v18, v14, 3, v18\nv_lshl_add_u32 v18, v17, 6, v18\nv_lshl_add_u32 v18, v15, 3, v18")
    A("v_add_u32 v18, %d, v18\nv_add_u32 v%d, s29, v18", 4608 + 8, VK)
    A("v_lshl_add_u32 v18, v16, 2, v14\nv_sub_u32 v18, v18, v17\nv_lshlrev_b32 v18, 1, v18")
    A("v_sub_u32 v19, 3, v15\nv_lshlrev_b32 v19, 3, v19\nv_add_u32 v19, s29, v19")
    for km in range(4):
        for sec in range(2):
            A("v_add_u32 v20, %d, v18\nv_bfe_u32 v21, v20, 3, 1\nv_xor_b32 v20, v20, v21\nv_lshl_add_u32 v%d, v20, 5, v19", 17 - 4 * km - sec, VU + 2 * km + sec)
    rdU = lambda km, d: ["ds_read_b64_tr_b16 %s, v%d offset:%d" % (vr(U + 4 * d + 2 * s, 2), VU + 2 * km + s, 512 * d) for s in range(2)]
    rdK = lambda km, k: ["ds_read_b64_tr_b16 %s, v%d offset:%d" % (vr(KF + 4 * k + 2 * s, 2), VK, 512 * k + 128 * km + 32 * s) for s in range(2)]
    A("s_waitcnt vmcnt(0) lgkmcnt(0)")
    pend = []
    def issue(key, ins):
        for x in ins: A(x); pend.append(key)
    def wait(keys):
        last = max([i for i, k in enumerate(pend) if k in keys], default=-1)
        if last >= 0:
            n = min(15, len(pend) - 1 - last)
            A("s_waitcnt lgkmcnt(%d)", n)
            del pend[:len(pend) - n]
    for i in range(8):
        issue(("K", 7 - i), rdK(0, 7 - i)); issue(("U", i), rdU(0, i))
    for km in range(4):
        for k in range(7, -1, -1):
            for d in range(8 - k):
                wait({("K", k), ("U", d)})
                a = vr(ACC + 16 * (k + d), 16)
                A("v_mfma_f32_32x32x16_bf16 %s, %s, %s, %s", a, vr(U + 4 * d, 4), vr(KF + 4 * k, 4), "0" if km == 0 and d == 0 else a)
                if km < 3 and k == 0: issue(("U", d), rdU(km + 1, d))
            if km < 3: issue(("K", k), rdK(km + 1, k))
    Zr = lambda G, s: ACC + 4 * G + s
    A("v_mov_b32 v16, 0")
    for s in (3, 2, 1):
        for G in range(31, -1, -1): A("v_cndmask_b32 v%d, v%d, v%d, s[34:35]", Zr(G, s), Zr(G, s), Zr(G - 1, s) if G else 16)
        for G in range(31, -1, -1): A("v_add_f32_dpp v%d, v%d, v%d wave_ror:1 row_mask:0xf bank_mask:0xf", Zr(G, s - 1), Zr(G, s), Zr(G, s - 1))
    A("v_lshlrev_b32 v17, 2, v1\ns_lshl_b32 s25, s28, 12")
    for p in range(15, -1, -1):
        A("v_cvt_pk_bf16_f32 v%d, v%d, v%d\nbuffer_store_dword v%d, v17, s[20:23], s25 offen offset:%d", U + 4 + p, Zr(2 * p, 0), Zr(2 * p + 1, 0), U + 4 + p, 256 * p)
    A("s_sub_u32 s27, s27, 1\ns_cmp_eq_u32 s27, 0\ns_cbranch_scc1 k2_end")
    A("s_mov_b32 s28, s30\ns_mov_b32 s29, s31\ns_branch cv_ch")

def k2(A):
    head(A, "k2_kernel")
    A("s_cmp_ge_u32 s2, 256\ns_cbranch_scc1 k2_end")
    wave_id(A, 10)
    A("s_and_b32 s3, s2, 7\ns_lshr_b32 s11, s2, 3\ns_cmp_ge_u32 s11, 24\ns_cbranch_scc1 k2_cv")
    k2_gemm(A)
    A("k2_cv:")
    k2_conv(A)
    A("k2_end:\ns_endpgm")

def k3(A):
    head(A, "k3_kernel")
    A("s_cmp_ge_u32 s2, 256\ns_cbranch_scc1 k3_end")
    A("s_load_dwordx2 s[4:5], s[0:1], %d\ns_load_dwordx2 s[8:9], s[0:1], %d", ARG["w2"], ARG["ws"])
    wave_id(A, 10)
    A("s_bfe_u32 s27, s2, 0x20001\ns_and_b32 s28, s2, 1\ns_lshl_b32 s28, s28, 3\ns_lshr_b32 s3, s2, 5\ns_add_u32 s28, s28, s3\ns_bfe_u32 s29, s2, 0x20003")
    NS, SB, BB = 4, 16384, 4 * 18432
    A("s_cmp_ge_u32 s10, 4\ns_cbranch_scc0 g2_cons")
    A("s_sub_u32 s10, s10, 4\nv_lshlrev_b32 v2, 4, v1\nv_lshrrev_b32 v7, 4, v1\nv_and_b32 v8, 15, v1")
    for i in range(4):
        A("v_add_u32 v9, %d, v7\nv_and_b32 v10, 7, v9\nv_lshlrev_b32 v10, 1, v10\nv_xor_b32 v10, v10, v8\nv_lshlrev_b32 v9, 12, v9\nv_lshl_add_u32 v9, v10, 4, v9\nv_subrev_u32 v%d, %d, v9", 4 * i, 3 + i, 1024 * i)
    A("s_mul_i32 s20, s29, %d\ns_mul_i32 s25, s27, %d\ns_add_u32 s20, s20, s25", 576 * 2304, 144 * 2304)
    A("s_mul_i32 s21, s27, %d\ns_lshl_b32 s25, s28, 8\ns_add_u32 s21, s21, s25\ns_lshl_b32 s25, s10, 17\ns_add_u32 s21, s21, s25", 1152 * 4096)
    A("s_waitcnt lgkmcnt(0)")
    srd(A, 12, 8, SZ_H, WS_H); srd(A, 16, 4, SZ_W)
    loader(A, "g2l", 18, NS, 8, 18432, 64 * 4096, [((3, 4, 5, 6), 0, 0), ((3, 4, 5, 6), 16 * 4096, 4096)], SB, BB)
    A("s_endpgm\ng2_cons:")
    ACC, FX, FY = 8, 80, 124
    A("v_lshrrev_b32 v6, 4, v1\nv_and_b32 v7, 15, v1\nv_mul_u32_u24 v2, 2304, v6\nv_lshl_add_u32 v2, v7, 4, v2\nv_add_u32 v3, %d, v2", 3 * 18432)
    A("v_lshrrev_b32 v6, 2, v1\nv_and_b32 v7, 7, v6\nv_lshlrev_b32 v6, 8, v6\nv_and_b32 v8, 3, v1\nv_lshl_add_u32 v6, v8, 3, v6\nv_add_u32 v6, %d, v6", BB)
    A("v_xor_b32 v7, s10, v7\nv_lshl_add_u32 v4, v7, 5, v6\nv_xor_b32 v7, 4, v7\nv_lshl_add_u32 v5, v7, 5, v6")
    for r in range(ACC, ACC + 72): A("v_mov_b32 v%d, 0", r)
    for r in range(FY, FY + 44): A("v_mov_b32 v%d, 0", r)
    def reads(slot, ks, st):
        F = FY if st else FX
        o = (0 if slot == 3 else slot) * 18432 + ks * 9216
        a = ["ds_read_b128 %s, v%d offset:%d" % (vr(F + 8 + 4 * t, 4), 3 if slot == 3 else 2, o + 256 * t) for t in range(9)]
        b = ["ds_read_b64_tr_b16 %s, v%d offset:%d" % (vr(F + 4 * j + 2 * h, 2), 4 + j, slot * SB + ks * 8192 + h * 4096) for j in range(2) for h in range(2)]
        return b + a
    def mfmas(st):
        F = FY if st else FX
        return ["v_mfma_f32_16x16x32_bf16 %s, %s, %s, %s" % (vr(ACC + 8 * t + 4 * j, 4), vr(F + 8 + 4 * t, 4), vr(F + 4 * j, 4), vr(ACC + 8 * t + 4 * j, 4)) for t in range(9) for j in range(2)]
    consumer(A, "g2c", 18, NS, reads, mfmas, 1)
    A("s_waitcnt lgkmcnt(0)")
    srd(A, 12, 8, SZ_P, WS_P)
    A("s_lshl_b32 s3, s28, 2\ns_add_u32 s3, s3, s29\ns_lshl_b32 s3, s3, 2\ns_add_u32 s3, s3, s10\ns_lshl_b32 s3, s3, 2\ns_add_u32 s3, s3, s27\ns_mul_i32 s3, s3, 18432")
    A("v_lshlrev_b32 v2, 4, v1")
    for tl in range(18):
        if tl % 4 == 0 and tl: A("s_add_u32 s3, s3, 4096")
        A("buffer_store_dwordx4 %s, v2, s[12:15], s3 offen offset:%d", vr(ACC + 4 * tl, 4), 1024 * (tl % 4))
    A("k3_end:\ns_endpgm")

def k4(A):
    head(A, "k4_kernel")
    A("s_cmp_ge_u32 s2, 256\ns_cbranch_scc1 k4_end")
    A("s_load_dwordx4 s[4:7], s[0:1], %d\ns_load_dwordx2 s[8:9], s[0:1], %d", ARG["b2"], ARG["ws"])
    wave_id(A, 10)
    A("s_and_b32 s27, s2, 3\ns_bfe_u32 s29, s2, 0x20002\ns_lshr_b32 s28, s2, 4")
    A("v_lshrrev_b32 v6, 4, v1\nv_and_b32 v7, 15, v1\nv_lshlrev_b32 v2, 4, v1")
    A("s_lshl_b32 s3, s27, 4\nv_add_u32 v7, s3, v7")
    A("s_lshl_b32 s3, s28, 7\nv_add_u32 v8, s3, v7\nv_lshlrev_b32 v5, 1, v8\nv_mul_u32_u24 v3, 1152, v8")
    A("s_mul_i32 s30, s29, 144\ns_lshl_b32 s3, s10, 5\ns_add_u32 s30, s30, s3")
    A("s_mul_i32 s31, s2, %d\ns_lshl_b32 s3, s10, 12\ns_add_u32 s31, s31, s3", 4 * 18432)
    A("s_waitcnt lgkmcnt(0)")
    srd(A, 12, 8, SZ_P, WS_P); srd(A, 16, 8, SZ, WS_BASE); srd(A, 20, 8, SZ, WS_YC); srd(A, 36, 4, 4096); srd(A, 40, 6, SZ)
    A("s_mov_b32 s44, %d", 64 * 1152)
    def body(nt):
        nd = 4 * nt; P, Y, B, B2 = 32, 10, 20, 28
        A("v_lshlrev_b32 v6, %d, v6\nv_add_u32 v6, s30, v6\nv_lshl_add_u32 v3, v6, 1, v3", 1 + nt)
        A("v_lshlrev_b32 v4, 12, v6\nv_lshl_add_u32 v4, v7, 2, v4\ns_lshl_b32 s3, s28, 8")
        for q in range(4):
            for i in range(2 * nt): A("buffer_load_dwordx4 %s, v2, s[12:15], s31 offen offset:%d", vr(P + 16 * q + 4 * i, 4), 1024 * i)
            A("s_add_u32 s31, s31, 18432")
        for e in range(nd):
            A("buffer_load_dword v%d, v4, s[20:23], s3 offen\ns_add_u32 s3, s3, 4096", Y + e)
        w = "x4" if nt == 2 else "x2"
        A("buffer_load_dword%s %s, v3, s[16:19], 0 offen\nbuffer_load_dword%s %s, v3, s[16:19], s44 offen", w, vr(B, 2 * nt), w, vr(B + 4, 2 * nt))
        A("buffer_load_ushort v%d, v5, s[36:39], 0 offen\nbuffer_load_ushort v%d, v5, s[36:39], 0 offen offset:128", B2, B2 + 1)
        for q in range(1, 4):
            A("s_waitcnt vmcnt(%d)", (3 - q) * 2 * nt + nd + 4)
            for i in range(4 * nt): A("v_pk_add_f32 %s, %s, %s", vr(P + 2 * i, 2), vr(P + 2 * i, 2), vr(P + 16 * q + 2 * i, 2))
        A("s_waitcnt vmcnt(0)")
        T = P + 16
        for j in range(2):
            A("v_lshlrev_b32 v%d, 16, v%d", B2 + j, B2 + j)
            for e in range(nd):
                src = P + 4 * (2 * (e >> 2) + j) + (e & 3)
                A("v_lshlrev_b32 v8, 16, v%d" % (Y + e) if j == 0 else "v_and_b32 v8, 0xffff0000, v%d" % (Y + e))
                A("v_lshlrev_b32 v9, 16, v%d" % (B + 4 * j + e // 2) if e % 2 == 0 else "v_and_b32 v9, 0xffff0000, v%d" % (B + 4 * j + e // 2))
                A("v_add_f32 v%d, v%d, v%d\nv_add_f32 v8, v8, v9\nv_add_f32 v%d, v%d, v8", src, src, B2 + j, T + e, src)
            for e in range(nd // 2): A("v_cvt_pk_bf16_f32 v%d, v%d, v%d", T + 8 + 4 * j + e, T + 2 * e, T + 2 * e + 1)
            A("buffer_store_dword%s %s, v3, s[40:43], %s offen", w, vr(T + 8 + 4 * j, 2 * nt), "s44" if j else "0")
        A("s_endpgm")
    A("s_cmp_eq_u32 s10, 4\ns_cbranch_scc1 k4_last")
    body(2)
    A("k4_last:")
    body(1)
    A("k4_end:\ns_endpgm")

def build():
    launches = [("k1_kernel", 544, 256, 4 * 32 * KRS), ("k2_kernel", 256, 512, 5 * 30720), ("k3_kernel", 256, 384, 4 * 34816), ("k4_kernel", 256, 320, 0)]
    out = ["; S4D convolution + token-mixing MLP, generated instruction stream"]
    for k, g, b, l in launches: out.append("; @launch kernel=%s grid=(%d,1,1) block=(%d,1,1) lds=%d" % (k, g, b, l))
    out.append('.amdgcn_target "amdgcn-amd-amdhsa--gfx950"\n.text')
    for f in (k1, k2, k3, k4):
        A = Asm(); f(A)
        t, n = A.text()
        sys.stderr.write("%s: %d lines, %d nops inserted\n" % (f.__name__, len(A.l), n))
        out.append(t)
    out.append('.section .rodata,"a"')
    out.append(kd("k1_kernel", 160) + kd("k2_kernel", 208) + kd("k3_kernel", 168) + kd("k4_kernel", 96))
    return "\n".join(out), launches

if __name__ == "__main__":
    for a in sys.argv[2:]:
        k, v = a.split("=", 1); OPT[k] = v
    open(sys.argv[1], "w").write(build()[0])
```

```python
import sys, math, struct
from asmlib import *

NAME = "parallel_sum__ssm_conv_s4d__mixer_token_mlp__prompt"
SZ = 2359296
WS_HT, WS_XT, WS_BASE, WS_K, WS_YC = 0, SZ, 2 * SZ, 3 * SZ, 4 * SZ
WS_H = 5 * SZ
SZ_H = 5308416
WS_P = WS_H + SZ_H
SZ_P = 256 * 4 * 18432
SZ_W = 18874368
ARG = dict(x=0, loga=8, aim=16, cr=24, ci=32, logdt=40, dsk=48, w1=64, b1=72, w2=80, b2=88, out=96, dbg=104, ws=112)
OPT = dict(wflag="", wflag2="", stamp="0", lam="4", a0="0", b0="0")
WS_ST = 128 << 20

def stamp(A, k):
    if OPT["stamp"] == "1": A("s_memrealtime s[%d:%d]", 64 + 2 * k, 65 + 2 * k)

def stamp_init(A, wave):
    if OPT["stamp"] == "1":
        for k in range(7): A("s_mov_b32 s%d, 0", 64 + 2 * k)
        A("s_mov_b32 s63, s%d\ns_load_dwordx2 s[84:85], s[0:1], %d\ns_memtime s[80:81]", wave, ARG["ws"])
        stamp(A, 0)

def endpgm(A, kidx):
    if OPT["stamp"] == "1":
        A("s_waitcnt vmcnt(0)")
        stamp(A, 6)
        A("s_memtime s[82:83]\ns_waitcnt lgkmcnt(0)\ns_sub_u32 s78, s82, s80\ns_mov_b64 exec, 1")
        srd(A, 88, 84, 1 << 20, WS_ST)
        A("s_add_u32 s62, s2, %d\ns_lshl_b32 s62, s62, 3\ns_add_u32 s62, s62, s63\ns_lshl_b32 s62, s62, 5\nv_mov_b32 v0, s62", 1024 * kidx)
        for k in range(8): A("v_mov_b32 v%d, s%d", 8 + k, 64 + 2 * k)
        A("buffer_store_dwordx4 v[8:11], v0, s[88:91], 0 offen\nbuffer_store_dwordx4 v[12:15], v0, s[88:91], 0 offen offset:16")
    A("s_endpgm")


def f2u(f): return struct.unpack("<I", struct.pack("<f", f))[0]
def hx(f): return "0x%08x" % f2u(f)

def srd(A, d, b, size, off=0):
    if off:
        A("s_add_u32 s%d, s%d, %d\ns_addc_u32 s%d, s%d, 0", d, b, off, d + 1, b + 1)
    else:
        A("s_mov_b32 s%d, s%d\ns_mov_b32 s%d, s%d", d, b, d + 1, b + 1)
    A("s_mov_b32 s%d, %d\ns_mov_b32 s%d, 0x20000", d + 2, size, d + 3)

def head(A, k):
    A(".p2align 8\n.globl %s\n.type %s,@function\n%s:", k, k, k)

def kd(k, nv, ns=102):
    acc = min(256, (nv + 3) // 4 * 4)
    return (".p2align 6\n.amdhsa_kernel %s\n  .amdhsa_next_free_vgpr %d\n  .amdhsa_next_free_sgpr %d\n  .amdhsa_accum_offset %d\n"
            "  .amdhsa_group_segment_fixed_size 0\n  .amdhsa_kernarg_size 120\n  .amdhsa_user_sgpr_count 2\n"
            "  .amdhsa_user_sgpr_kernarg_segment_ptr 1\n  .amdhsa_system_sgpr_workgroup_id_x 1\n"
            "  .amdhsa_float_denorm_mode_32 3\n.end_amdhsa_kernel\n") % (k, nv, ns, acc)

def wave_id(A, s, lane=1):
    A("v_lshrrev_b32 v%d, 6, v0\nv_readfirstlane_b32 s%d, v%d\nv_and_b32 v%d, 63, v0", lane, s, lane, lane)

RS = 1216
def reduce32(A, a, b):
    for m in ("quad_perm:[1,0,3,2]", "quad_perm:[2,3,0,1]", "row_half_mirror", "row_mirror"):
        A("v_add_f32_dpp v%d, v%d, v%d %s row_mask:0xf bank_mask:0xf", a, a, a, m)
    A("v_mov_b32 v%d, v%d\nv_permlane16_swap_b32 v%d, v%d\nv_add_f32 v%d, v%d, v%d", b, a, a, b, a, a, b)

def unpack(A, lo, hi, src):
    A("v_lshlrev_b32 v%d, 16, v%d\nv_and_b32 v%d, 0xffff0000, v%d", lo, src, hi, src)

def rbf(A, d, s):
    A("v_cvt_pk_bf16_f32 v%d, v%d, v%d\nv_and_b32 v%d, 0xffff0000, v%d", d, s, s, d, d)

def layernorm(A, a, t, p, m, unpack_out):
    BC = "op_sel:[0,0] op_sel_hi:[1,0]"
    A("v_pk_add_f32 %s, %s, %s", vr(m, 2), vr(a, 2), vr(a + 2, 2))
    for i in range(2, 9): A("v_pk_add_f32 %s, %s, %s", vr(m, 2), vr(m, 2), vr(a + 2 * i, 2))
    A("v_add_f32 v%d, v%d, v%d", m, m, m + 1)
    reduce32(A, m, m + 1)
    A("v_mul_f32 v%d, %s, v%d", m, hx(1 / 576.), m)
    for i in range(9): A("v_pk_add_f32 %s, %s, %s %s neg_lo:[0,1] neg_hi:[0,1]", vr(t + 2 * i, 2), vr(a + 2 * i, 2), vr(m, 2), BC)
    A("v_pk_mul_f32 %s, %s, %s", vr(m + 2, 2), vr(t, 2), vr(t, 2))
    for i in range(1, 9): A("v_pk_fma_f32 %s, %s, %s, %s", vr(m + 2, 2), vr(t + 2 * i, 2), vr(t + 2 * i, 2), vr(m + 2, 2))
    A("v_add_f32 v%d, v%d, v%d", m + 2, m + 2, m + 3)
    rbf(A, m, m)
    for i in range(9): A("v_pk_add_f32 %s, %s, %s %s neg_lo:[0,1] neg_hi:[0,1]", vr(t + 2 * i, 2), vr(a + 2 * i, 2), vr(m, 2), BC)
    reduce32(A, m + 2, m + 3)
    A("v_mul_f32 v%d, %s, v%d", m + 2, hx(1 / 576.), m + 2)
    rbf(A, m + 2, m + 2)
    A("v_add_f32 v%d, %s, v%d", m + 2, hx(1e-5), m + 2)
    rbf(A, m + 2, m + 2)
    A("v_sqrt_f32 v%d, v%d", m + 2, m + 2)
    for i in range(9): A("v_cvt_pk_bf16_f32 v%d, v%d, v%d", p + i, t + 2 * i, t + 2 * i + 1)
    rbf(A, m + 2, m + 2)
    A("v_rcp_f32 v%d, v%d", m + 2, m + 2)
    for i in range(9): unpack(A, t + 2 * i, t + 2 * i + 1, p + i)
    for i in range(9): A("v_pk_mul_f32 %s, %s, %s %s", vr(t + 2 * i, 2), vr(t + 2 * i, 2), vr(m + 2, 2), BC)
    for i in range(9): A("v_cvt_pk_bf16_f32 v%d, v%d, v%d", p + i, t + 2 * i, t + 2 * i + 1)
    if unpack_out is not None:
        for i in range(9): unpack(A, unpack_out + 2 * i, unpack_out + 2 * i + 1, p + i)

def k1_ln(A):
    A("s_load_dwordx2 s[4:5], s[0:1], %d\ns_load_dwordx2 s[6:7], s[0:1], %d\ns_load_dwordx2 s[8:9], s[0:1], %d", ARG["x"], ARG["dsk"], ARG["ws"])
    wave_id(A, 10); stamp_init(A, 10)
    A("s_and_b32 s11, s2, 7\ns_lshl_b32 s11, s11, 5\ns_lshr_b32 s3, s2, 3\ns_add_u32 s11, s11, s3")
    A("s_lshl_b32 s3, s11, 3\ns_lshl_b32 s28, s10, 1\ns_add_u32 s3, s3, s28")
    A("v_lshrrev_b32 v4, 5, v1\nv_add_u32 v2, s3, v4\nv_mul_u32_u24 v2, 1152, v2")
    A("v_and_b32 v3, 31, v1\nv_lshlrev_b32 v3, 2, v3\nv_add_u32 v2, v2, v3")
    A("v_add_u32 v4, s28, v4\nv_mul_u32_u24 v4, %d, v4\nv_add_u32 v4, v4, v3", RS)
    A("s_waitcnt lgkmcnt(0)")
    srd(A, 12, 4, SZ); srd(A, 16, 6, 1152); srd(A, 20, 8, SZ, WS_BASE)
    X, DS, XF, T, P, M, XN = 8, 17, 26, 44, 62, 72, 76
    for i in range(9): A("buffer_load_dword v%d, v2, s[12:15], 0 offen offset:%d", X + i, 128 * i)
    for i in range(9): A("buffer_load_dword v%d, v3, s[16:19], 0 offen offset:%d", DS + i, 128 * i)
    A("s_and_b32 s29, s10, 1\ns_lshl_b32 s29, s29, 6")
    A("v_bfe_u32 v5, v1, 2, 2\nv_mul_u32_u24 v5, %d, v5\nv_and_b32 v6, 3, v1\nv_lshl_add_u32 v5, v6, 3, v5", RS)
    A("v_lshrrev_b32 v6, 4, v1\nv_lshl_add_u32 v5, v6, 5, v5\ns_lshl_b32 s30, s29, 1\nv_add_u32 v5, s30, v5")
    AD = 94
    A("s_cmp_ge_u32 s10, 2\ns_cbranch_scc1 k1_xt")
    srd(A, 24, 8, SZ, WS_HT)
    A("v_add_u32 v5, %d, v5\ns_mul_i32 s30, s11, 2304", 8 * RS)
    for j in range(5):
        A("v_add_u32 v6, s29, v1\nv_add_u32 v6, %d, v6", 128 * j)
        A("v_mul_u32_u24 v7, 3641, v6\nv_lshrrev_b32 v7, 19, v7\nv_mul_u32_u24 v99, 144, v7\nv_sub_u32 v6, v6, v99")
        A("v_and_b32 v99, 4, v6\nv_lshlrev_b32 v99, 2, v99\nv_and_b32 v100, 24, v6\nv_lshrrev_b32 v100, 1, v100\nv_or_b32 v99, v99, v100")
        A("v_and_b32 v100, 0xe3, v6\nv_or_b32 v99, v99, v100\nv_lshrrev_b32 v100, 7, v6\nv_cmp_eq_u32 s[32:33], 0, v100\nv_cndmask_b32 v6, v6, v99, s[32:33]")
        A("v_mul_u32_u24 v7, 589824, v7\nv_lshl_add_u32 v6, v6, 4, v7\nv_add_u32 v%d, s30, v6", AD + j)
    A("s_branch k1_go\nk1_xt:")
    srd(A, 24, 8, SZ, WS_XT)
    A("s_lshl_b32 s30, s11, 4")
    for j in range(5):
        A("v_add_u32 v6, s29, v1\nv_add_u32 v6, %d, v6\nv_lshlrev_b32 v6, 12, v6\nv_add_u32 v%d, s30, v6", 128 * j, AD + j)
    A("k1_go:")
    A("s_waitcnt vmcnt(9)"); stamp(A, 1)
    for i in range(9): unpack(A, XF + 2 * i, XF + 2 * i + 1, X + i)
    layernorm(A, XF, T, P, M, XN)
    for i in range(9): A("ds_write_b32 v4, v%d offset:%d", P + i, 128 * i)
    A("s_waitcnt vmcnt(0)")
    for i in range(9): unpack(A, T + 2 * i, T + 2 * i + 1, DS + i)
    for i in range(9): A("v_pk_fma_f32 %s, %s, %s, %s", vr(XF + 2 * i, 2), vr(XN + 2 * i, 2), vr(T + 2 * i, 2), vr(XF + 2 * i, 2))
    for i in range(9): A("v_cvt_pk_bf16_f32 v%d, v%d, v%d", X + i, XF + 2 * i, XF + 2 * i + 1)
    for i in range(9): A("buffer_store_dword v%d, v2, s[20:23], 0 offen offset:%d", X + i, 128 * i)
    layernorm(A, XN, T, DS, M, None)
    for i in range(9): A("ds_write_b32 v4, v%d offset:%d", DS + i, 8 * RS + 128 * i)
    stamp(A, 2)
    A("s_waitcnt lgkmcnt(0)\ns_barrier")
    for j in range(5):
        A("ds_read_b64_tr_b16 %s, v5 offset:%d", vr(XF + 4 * j + 2, 2), 256 * j)
        A("ds_read_b64_tr_b16 %s, v5 offset:%d", vr(XF + 4 * j + 4, 2), 256 * j + 4 * RS)
    for j in range(5):
        A("s_waitcnt lgkmcnt(%d)", 8 - 2 * j)
        A("buffer_store_dwordx4 %s, v%d, s[24:27], 0 offen", vr(XF + 4 * j + 2, 4), AD + j)
    endpgm(A, 0)

KRS = 272
GROWS = {}
for reg, p in enumerate([0, 1, 2, 3, 256, 258, 260, 262, 264, 512, 516, 520, 768, 772, 776]): GROWS[p] = (reg & 3) + 8 * (reg >> 2)
for reg, p in enumerate([4, 5, 6, 7, 1024, 1032, 1280, 1288, 1536, 1544, 1792, 1800]): GROWS[p] = (reg & 3) + 8 * (reg >> 2) + 4

def cmul(A, z, a, b, t):
    A("v_pk_mul_f32 %s, %s, %s op_sel:[0,0] op_sel_hi:[0,1]", vr(t, 2), vr(a, 2), vr(b, 2))
    A("v_pk_fma_f32 %s, %s, %s, %s op_sel:[1,1,0] op_sel_hi:[1,0,1] neg_lo:[0,1,0]", vr(z, 2), vr(a, 2), vr(b, 2), vr(t, 2))

def k1_kgen(A):
    A("s_load_dwordx8 s[4:11], s[0:1], %d\ns_load_dwordx2 s[12:13], s[0:1], %d\ns_load_dwordx2 s[14:15], s[0:1], %d", ARG["loga"], ARG["logdt"], ARG["ws"])
    wave_id(A, 16); stamp_init(A, 16)
    A("s_sub_u32 s3, s2, 256\ns_lshl_b32 s3, s3, 1\ns_lshr_b32 s17, s16, 1\ns_add_u32 s17, s17, s3")
    A("s_and_b32 s18, s16, 1\ns_lshl_b32 s19, s17, 8\ns_lshl_b32 s3, s18, 7\ns_add_u32 s19, s19, s3")
    A("v_lshlrev_b32 v2, 1, v1\nv_add_u32 v2, s19, v2\ns_lshl_b32 s3, s17, 1\nv_mov_b32 v3, s3")
    A("s_waitcnt lgkmcnt(0)")
    for i in range(4): srd(A, 20 + 4 * i, 4 + 2 * i, 147456)
    srd(A, 36, 12, 1152); srd(A, 40, 14, SZ, WS_K)
    A("buffer_load_ushort v8, v3, s[36:39], 0 offen")
    for i in range(4): A("buffer_load_ushort v%d, v2, s[%d:%d], 0 offen", 4 + i, 20 + 4 * i, 23 + 4 * i)
    A("s_mul_i32 s3, s16, %d\nv_lshlrev_b32 v2, 2, v1\nv_add_u32 v2, s3, v2", 32 * KRS)
    A("v_and_b32 v3, 31, v1\nv_mul_u32_u24 v3, %d, v3\nv_lshrrev_b32 v9, 5, v1\nv_lshl_add_u32 v3, v9, 4, v3\nv_add_u32 v3, s3, v3", KRS)
    LOG2E = 1.4426950408889634
    A("s_waitcnt vmcnt(3)")
    A("v_lshlrev_b32 v8, 16, v8\nv_lshlrev_b32 v4, 16, v4\nv_mul_f32 v8, %s, v8\nv_mul_f32 v4, %s, v4\nv_exp_f32 v8, v8\nv_exp_f32 v4, v4", hx(LOG2E), hx(LOG2E))
    rbf(A, 8, 8); rbf(A, 4, 4)
    A("s_waitcnt vmcnt(0)"); stamp(A, 1)
    for i in (5, 6, 7): A("v_lshlrev_b32 v%d, 16, v%d", i, i)
    A("v_mul_f32 v4, v4, v8\nv_mul_f32 v5, v5, v8\nv_mul_f32 v4, %s, v4\nv_mul_f32 v5, %s, v5", hx(-LOG2E), hx(1 / (2 * math.pi)))
    G0 = 10
    A("v_add_f32 v8, v8, v8\nv_mul_f32 v%d, v6, v8\nv_mul_f32 v%d, v7, v8", G0, G0 + 1)
    T = 6
    E = {}
    nxt = [12]
    def alloc():
        r = nxt[0]; nxt[0] += 2; return r
    for p in (1, 8, 64, 256, 1024):
        r = E[p] = alloc()
        A("v_mul_f32 v8, %s, v4\nv_mul_f32 v9, %s, v5\nv_exp_f32 v8, v8\nv_fract_f32 v9, v9", hx(float(p)), hx(float(p)))
        A("v_cos_f32 v%d, v9\nv_sin_f32 v%d, v9\nv_pk_mul_f32 %s, %s, v[8:9] op_sel:[0,0] op_sel_hi:[1,0]", r, r + 1, vr(r, 2), vr(r, 2))
    for p in (2, 4, 16, 32, 128, 512):
        E[p] = alloc(); cmul(A, E[p], E[p // 2], E[p // 2], T)
    E[192] = alloc(); cmul(A, E[192], E[64], E[128], T)
    PK = [8, 9]; pk = [0]
    def put(row, r, neg):
        t = PK[pk[0] & 1]; pk[0] += 1
        A("v_cvt_pk_bf16_f32 v%d, v%d, %sv%d\nds_write_b32 v2, v%d offset:%d", t, r, "-" if neg else "", r + 1, t, row * KRS)
    H = {1: E[8], 2: E[16], 4: E[32]}
    A("v_mov_b32 v8, 0x3f80\nds_write_b32 v2, v8"); pk[0] = 1
    for j, (a, b) in ((3, (1, 2)), (5, (1, 4)), (6, (2, 4)), (7, (3, 4))):
        H[j] = alloc(); cmul(A, H[j], H[a], H[b], T)
    for j in range(1, 8): put(j, H[j], False)
    Z = alloc()
    for a in (1, 2, 3):
        put(8 * a, E[64 * a], False)
        for j in range(1, 8):
            cmul(A, Z, H[j], E[64 * a], T); put(8 * a + j, Z, False)
    FB, FA, D = 96, 128, 80
    for k in range(8): A("ds_read_b128 %s, v3 offset:%d", vr(FB + 4 * k, 4), 32 * k)
    G = {0: G0}
    def gm(p, a, e, keep=True):
        r = alloc() if keep else Z
        cmul(A, r, G[a], E[e], T); G[p] = r
    for p, a, e in ((1, 0, 1), (2, 0, 2), (3, 1, 2), (4, 0, 4), (6, 2, 4), (256, 0, 256), (512, 0, 512), (516, 4, 512), (1024, 0, 1024)): gm(p, a, e)
    A("s_waitcnt lgkmcnt(0)")
    for p in (0, 1, 2, 3, 4, 6, 256, 512, 516, 1024): put(GROWS[p], G[p], True)
    for p, a, e, keep in ((5, 1, 4, 0), (7, 3, 4, 0), (258, 2, 256, 0), (260, 4, 256, 0), (262, 6, 256, 0), (264, 256, 8, 0), (520, 512, 8, 0),
                          (768, 512, 256, 1), (772, 516, 256, 0), (776, 768, 8, 0), (1032, 1024, 8, 0), (1280, 1024, 256, 1), (1288, 1280, 8, 0),
                          (1536, 1024, 512, 1), (1544, 1536, 8, 0), (1792, 1536, 256, 1), (1800, 1792, 8, 0)):
        gm(p, a, e, keep); put(GROWS[p], G[p], True)
    assert nxt[0] <= D, nxt[0]
    for k in range(8): A("ds_read_b128 %s, v3 offset:%d", vr(FA + 4 * k, 4), 32 * k)
    for k in range(8):
        A("s_waitcnt lgkmcnt(%d)", 7 - k)
        A("v_mfma_f32_32x32x16_bf16 %s, %s, %s, %s", vr(D, 16), vr(FA + 4 * k, 4), vr(FB + 4 * k, 4), vr(D, 16) if k else "0")
    stamp(A, 2)
    A("s_or_b32 s3, s16, 1\ns_mul_i32 s3, s3, %d\nv_lshlrev_b32 v2, 4, v1\nv_add_u32 v2, s3, v2", 32 * KRS)
    A("s_cmp_eq_u32 s18, 0\ns_cbranch_scc1 kg_even")
    for i in range(4): A("ds_write_b128 v2, %s offset:%d", vr(D + 4 * i, 4), 1024 * i)
    A("s_waitcnt lgkmcnt(0)\ns_barrier\ns_endpgm\nkg_even:\ns_barrier")
    for i in range(4): A("ds_read_b128 %s, v2 offset:%d", vr(FB + 4 * i, 4), 1024 * i)
    A("v_and_b32 v3, 31, v1\nv_lshlrev_b32 v3, 4, v3\ns_lshl_b32 s3, s17, 12\nv_add_u32 v3, s3, v3\nv_lshrrev_b32 v4, 5, v1\nv_lshl_add_u32 v4, v4, 3, v3")
    A("v_and_b32 v5, 1, v1\nv_cmp_eq_u32 s[44:45], 1, v5")
    A("s_waitcnt lgkmcnt(0)")
    for i in range(8): A("v_pk_add_f32 %s, %s, %s", vr(D + 2 * i, 2), vr(D + 2 * i, 2), vr(FB + 2 * i, 2))
    def pk2(d, a, b): A("v_cvt_pk_bf16_f32 v%d, v%d, v%d", d, a, b)
    r = lambda i: D + i
    O = 12
    pk2(O, r(0), r(1)); pk2(O + 1, r(2), r(3))
    A("buffer_store_dwordx2 %s, v4, s[40:43], 0 offen", vr(O, 2))
    O = 16
    A("s_mov_b32 exec_lo, -1\ns_mov_b32 exec_hi, 0")
    for blk, seq in ((256, ((4, 4), (5, 6), (6, 6), (7, 8))), (512, ((9, 9), (9, 10), (10, 10), (11, 11))), (768, ((12, 12), (12, 13), (13, 13), (14, 14)))):
        for i, (a, b) in enumerate(seq): pk2(O + i, r(a), r(b))
        A("buffer_store_dwordx4 %s, v3, s[40:43], 0 offen offset:%d", vr(O, 4), 2 * blk); O += 4
    A("s_mov_b32 exec_lo, 0\ns_mov_b32 exec_hi, -1")
    for blk, a in ((1024, 4), (1280, 6), (1536, 8), (1792, 10)):
        A("v_cndmask_b32 v8, v%d, v%d, s[44:45]", r(a), r(a + 1))
        pk2(O, r(a), r(a)); pk2(O + 1, r(a), r(a)); pk2(O + 2, 8, r(a + 1)); pk2(O + 3, r(a + 1), r(a + 1))
        A("buffer_store_dwordx4 %s, v3, s[40:43], 0 offen offset:%d", vr(O, 4), 2 * blk); O += 4
    endpgm(A, 0)

def k1(A):
    head(A, "k1_kernel")
    A("s_cmp_ge_u32 s2, 256\ns_cbranch_scc1 k1_b")
    k1_ln(A)
    A("k1_b:\ns_cmp_ge_u32 s2, 544\ns_cbranch_scc1 k1_end")
    k1_kgen(A)
    A("k1_end:\ns_endpgm")

def loader(A, tag, nstage, nslot, units, lead, cfg):
    nu = len(units)
    cnt = [sum(3 if k == "A" else len(cfg["vb"]) for k, _ in u) for u in units]
    R = 40
    st = []
    for u in units:
        g = []
        for kind, si in u:
            if kind == "A":
                A("s_mul_i32 s%d, s%d, 3072\ns_add_u32 s%d, s%d, s20", R + 1, si, R, R + 1)
            else:
                A("s_mul_i32 s%d, s%d, %d\ns_add_u32 s%d, s%d, s21", R, si, cfg["bg_g"], R, R)
                A("s_mul_i32 s%d, s%d, %d\ns_add_u32 s%d, s%d, %d", R + 1, si, cfg["bg_l"], R + 1, R + 1, cfg["baseB"])
            g.append((kind, R)); R += 2
        A("s_mov_b32 s%d, 0", R); st.append((g, R)); R += 1
    assert R <= 62
    def issue(h):
        g, c = st[h]
        for kind, r in g:
            A("s_mov_b32 m0, s%d", r + 1)
            if kind == "A":
                A("s_add_u32 s%d, s%d, 18432", r + 1, r + 1)
                for i in range(3): A("buffer_load_dwordx4 v2, s[12:15], s%d offen offset:%d %s lds", r, 1024 * i, cfg["aflag"])
                A("s_add_u32 s%d, s%d, %d", r, r, 0 if OPT["a0"] == "1" else 18432)
            else:
                A("s_add_u32 s%d, s%d, %d", r + 1, r + 1, cfg["slotB"])
                for i, v in enumerate(cfg["vb"]): A("buffer_load_dwordx4 v%d, s[16:19], s%d offen offset:%d %s lds", v, r, 1024 * i, cfg["bflag"])
                A("s_add_u32 s%d, s%d, %d", r, r, 0 if OPT["b0"] == "1" else cfg["b_stride"])
        A("s_add_u32 s%d, s%d, 1\ns_cmp_lg_u32 s%d, %d\ns_cbranch_scc1 %s_w%d", c, c, c, nslot, tag, issue.n)
        A("s_mov_b32 s%d, 0", c)
        for kind, r in g: A("s_sub_u32 s%d, s%d, %d", r + 1, r + 1, nslot * (18432 if kind == "A" else cfg["slotB"]))
        A("%s_w%d:", tag, issue.n); issue.n += 1
    issue.n = 0
    total = nstage * nu
    def allowed(i, issued):
        return sum(cnt[u % nu] for u in range(nu * (i + 1), issued))
    for u in range(lead): issue(u % nu)
    stamp(A, 1)
    nloop = (total - lead) // nu
    A("s_mov_b32 s26, 0\n%s_loop:\ns_waitcnt vmcnt(%d)\ns_barrier", tag, allowed(0, lead))
    for k in range(nu): issue((lead + k) % nu)
    A("s_add_u32 s26, s26, 1\ns_cmp_lt_u32 s26, %d\ns_cbranch_scc1 %s_loop", nloop, tag)
    stamp(A, 2)
    issued = lead + nloop * nu
    for i in range(nloop, nstage):
        A("s_waitcnt vmcnt(%d)\ns_barrier", allowed(i, issued))
        while issued < total:
            issue(issued % nu); issued += 1

def modadd(A, d, s, k, m):
    A("s_add_u32 s%d, s%d, %d\ns_cmp_ge_u32 s%d, %d\ns_cselect_b32 s25, %d, 0\ns_sub_u32 s%d, s%d, s25", d, s, k, d, m, m, d, d)

def loaders(A, tag, kidx, nstage, nslot, cfg, split):
    lam = int(OPT["lam"])
    for k in range(1, 6): modadd(A, 30 + k, 30, k, 6)
    for k in range(1, 4): modadd(A, 35 + k, 29, k, 4)
    a = lambda k: ("A", 30 + k)
    b = lambda k: ("B", 35 + k)
    A("s_cmp_eq_u32 s10, 5\ns_cbranch_scc1 %s_l1\ns_cmp_eq_u32 s10, 6\ns_cbranch_scc1 %s_e", tag, tag)
    late = dict(cfg, aflag="", bflag=OPT["wflag2"]); early = dict(cfg, aflag="", bflag=OPT["wflag"])
    u0, u1 = split(a, b)
    loader(A, tag + "a", nstage, nslot, u0, lam, late); endpgm(A, kidx)
    A("%s_l1:", tag)
    loader(A, tag + "b", nstage, nslot, u1, lam, late); endpgm(A, kidx)
    A("%s_e:", tag)
    loader(A, tag + "e", nstage, nslot, [[("A", 30), ("B", 29)]], nslot - 1, early); endpgm(A, kidx)

def consumer(A, tag, nstage, nslot, reads, mfmas, per_gap=2):
    stamp(A, 1)
    A("s_mov_b32 s26, 0\n.p2align 6\n%s_loop:", tag)
    rem = nstage % nslot
    for slot in range(nslot):
        A("s_barrier")
        if slot == 0 and OPT["stamp"] == "1":
            for it, k in ((0, 2), (1, 3), (3, 4)):
                A("s_cmp_lg_u32 s26, %d\ns_cbranch_scc1 %s_ns%d", it, tag, k); stamp(A, k); A("%s_ns%d:", tag, k)
        for x in interleave(mfmas(1), reads(slot, 0, 0), per_gap): A(x)
        A("s_waitcnt lgkmcnt(0)")
        for x in interleave(mfmas(0), reads(slot, 1, 1), per_gap): A(x)
        if slot == (rem - 1) % nslot:
            A("s_add_u32 s26, s26, 1\ns_cmp_eq_u32 s26, %d", (nstage + nslot - 1) // nslot)
            A("s_waitcnt lgkmcnt(0)\ns_cbranch_scc1 %s_done", tag)
        else:
            A("s_waitcnt lgkmcnt(0)")
    A("s_branch %s_loop\n%s_done:", tag, tag)
    for x in mfmas(1): A(x)
    stamp(A, 5)

def k2_gemm(A):
    A("s_load_dwordx4 s[4:7], s[0:1], %d\ns_load_dwordx2 s[8:9], s[0:1], %d", ARG["w1"], ARG["ws"])
    A("s_mul_i32 s28, s3, 6\ns_lshr_b32 s29, s11, 2\ns_add_u32 s28, s28, s29\ns_and_b32 s29, s11, 3")
    A("s_cmp_ge_u32 s10, 7\ns_cbranch_scc1 k2_end\ns_cmp_ge_u32 s10, 4\ns_cbranch_scc0 g1_cons")
    NS, SB, BB = 5, 12288, 5 * 18432
    A("v_lshlrev_b32 v2, 4, v1\ns_lshr_b32 s30, s11, 2")
    for i in range(3):
        A("v_add_u32 v6, %d, v1\nv_mul_u32_u24 v7, 5462, v6\nv_lshrrev_b32 v7, 16, v7\nv_mul_u32_u24 v8, 12, v7\nv_sub_u32 v6, v6, v8", 64 * i)
        A("v_lshrrev_b32 v8, 2, v7\nv_and_b32 v8, 2, v8\nv_xor_b32 v6, v6, v8\nv_mul_u32_u24 v7, 9216, v7\nv_lshl_add_u32 v6, v6, 4, v7\nv_subrev_u32 v%d, %d, v6", 3 + i, 1024 * i)
    A("s_mul_i32 s20, s29, 589824\ns_mul_i32 s21, s28, 192")
    A("s_waitcnt lgkmcnt(0)")
    srd(A, 12, 8, SZ, WS_HT); srd(A, 16, 4, SZ_W)
    loaders(A, "g1l", 1, 32, NS, dict(vb=(3, 4, 5), bg_g=16 * 9216, bg_l=3072, baseB=BB, slotB=SB, b_stride=64 * 9216),
            lambda a, b: ([[a(1), a(2)], [a(3), a(4)]], [[a(5), b(1)], [b(2), b(3)]]))
    A("g1_cons:")
    ACC, FX, FY, VA, VB, VS = 16, 72, 108, 2, 6, 12
    A("v_lshrrev_b32 v144, 4, v1\nv_and_b32 v145, 15, v1")
    A("v_mul_u32_u24 v146, 2304, v144\nv_lshl_add_u32 v146, v145, 4, v146")
    A("s_lshl_b32 s25, s10, 9\nv_add_u32 v2, s25, v146\nv_add_u32 v3, 2048, v146\nv_add_u32 v4, %d, v2\nv_add_u32 v5, %d, v3", 3 * 18432, 3 * 18432)
    A("v_bfe_u32 v147, v1, 2, 2\nv_lshl_add_u32 v147, v144, 3, v147\nv_mul_u32_u24 v147, 192, v147\nv_and_b32 v148, 3, v1\nv_lshl_add_u32 v147, v148, 3, v147")
    A("v_add_u32 v147, %d, v147\nv_and_b32 v148, 1, v144\nv_lshlrev_b32 v148, 5, v148\nv_xor_b32 v149, 32, v148\nv_add_u32 v148, v148, v147\nv_add_u32 v149, v149, v147", BB)
    A("s_waitcnt lgkmcnt(0)")
    srd(A, 12, 6, 9216); srd(A, 16, 8, SZ_H, WS_H)
    A("s_mul_i32 s27, s29, %d\ns_mul_i32 s25, s28, %d\ns_add_u32 s27, s27, s25\nv_lshlrev_b32 v150, 3, v144\ns_mul_i32 s30, s28, 192", 576 * 2304, 12 * 2304)
    for u in range(3):
        A("s_add_u32 s25, s10, %d\ns_cmp_ge_u32 s25, 3\ns_cselect_b32 s31, 3, 0\ns_sub_u32 s25, s25, s31\ns_cmp_ge_u32 s25, 3\ns_cselect_b32 s31, 3, 0\ns_sub_u32 s25, s25, s31", u)
        A("s_lshl_b32 s31, s25, 6\nv_add_u32 v%d, s31, v148\nv_add_u32 v%d, s31, v149\ns_add_u32 s31, s31, s30", VB + 2 * u, VB + 2 * u + 1)
        A("buffer_load_dwordx2 %s, v150, s[12:15], s31 offen\nbuffer_load_dwordx2 %s, v150, s[12:15], s31 offen offset:32", vr(FX + 4 * u, 2), vr(FX + 4 * u + 2, 2))
        A("s_mul_i32 s25, s25, %d\ns_add_u32 s%d, s25, s27", 4 * 2304, 32 + u)
    for r in range(FY, FY + 36): A("v_mov_b32 v%d, 0", r)
    acc = lambda t, n: ACC + 4 * (6 * t + n) if t < 2 else ACC + 48 + 4 * n
    A("s_waitcnt vmcnt(0)")
    for n in range(6):
        for h in range(2): unpack(A, acc(0, n) + 2 * h, acc(0, n) + 2 * h + 1, FX + 2 * n + h)
    for n in range(6):
        for t in ((1, 2) if n < 2 else (1,)):
            for e in range(4): A("v_mov_b32 v%d, v%d", acc(t, n) + e, acc(0, n) + e)
    def reads(slot, ks, st):
        F = FY if st else FX
        o = (slot % 3 if slot >= 3 else slot) * 18432 + ks * 9216
        va = 4 if slot >= 3 else 2
        a = ["ds_read_b128 %s, v%d offset:%d" % (vr(F + 24 + 4 * t, 4), va + (t == 2), o + (256 if t == 1 else 0)) for t in range(3)]
        b = [["ds_read_b64_tr_b16 %s, v%d offset:%d" % (vr(F + 4 * n + 2 * h, 2), VB + n, slot * SB + ks * 6144 + h * 768) for h in range(2)] for n in range(6)]
        return [a[0]] + b[0] + b[1] + [a[1]] + b[2] + b[3] + [a[2]] + b[4] + b[5]
    def mfmas(st):
        F = FY if st else FX
        order = [(0, n) for n in range(6)] + [(1, n) for n in range(6)] + [(2, 0), (2, 1)]
        return ["v_mfma_f32_16x16x32_bf16 %s, %s, %s, %s" % (vr(acc(t, n), 4), vr(F + 4 * n, 4), vr(F + 24 + 4 * t, 4), vr(acc(t, n), 4)) for t, n in order]
    consumer(A, "g1c", 32, NS, reads, mfmas)
    c0 = -2 * math.sqrt(2 / math.pi) * 1.4426950408889634
    A("v_mov_b32 v4, %s\nv_mov_b32 v5, %s\nv_mov_b32 v6, %s\nv_mov_b32 v7, %s\nv_mov_b32 v8, 1.0\nv_mov_b32 v9, 1.0", hx(c0), hx(c0), hx(c0 * 0.044715), hx(c0 * 0.044715))
    units = [(t, u) for t in range(2) for u in range(3)] + [(2, 0)]
    for k, (t, u) in enumerate(units):
        a = acc(t, 2 * u); T = FX + 8 * (k & 1); O = FY + 4 * k
        if t == 2: A("s_cmp_eq_u32 s10, 3\ns_cbranch_scc1 k2_fin")
        for i in range(4): A("v_pk_mul_f32 %s, %s, %s", vr(T + 2 * i, 2), vr(a + 2 * i, 2), vr(a + 2 * i, 2))
        for i in range(4): A("v_pk_fma_f32 %s, %s, v[6:7], v[4:5]", vr(T + 2 * i, 2), vr(T + 2 * i, 2))
        for i in range(4): A("v_pk_mul_f32 %s, %s, %s", vr(T + 2 * i, 2), vr(T + 2 * i, 2), vr(a + 2 * i, 2))
        for i in range(8): A("v_exp_f32 v%d, v%d", T + i, T + i)
        for i in range(4): A("v_pk_add_f32 %s, %s, v[8:9]", vr(T + 2 * i, 2), vr(T + 2 * i, 2))
        for i in range(8): A("v_rcp_f32 v%d, v%d", T + i, T + i)
        for i in range(4): A("v_pk_mul_f32 %s, %s, %s", vr(T + 2 * i, 2), vr(T + 2 * i, 2), vr(a + 2 * i, 2))
        for i in range(4): A("v_cvt_pk_bf16_f32 v%d, v%d, v%d", O + i, T + 2 * i, T + 2 * i + 1)
        if t < 2: A("buffer_store_dwordx4 %s, v2, s[16:19], s%d offen offset:%d", vr(O, 4), 32 + u, 256 * t)
        else: A("buffer_store_dwordx4 %s, v3, s[16:19], s32 offen", vr(O, 4))
    A("k2_fin:")
    endpgm(A, 1)

CSLOT = 8768
def k2_conv(A):
    A("s_load_dwordx2 s[8:9], s[0:1], %d", ARG["ws"])
    A("s_lshl_b32 s3, s3, 3\ns_add_u32 s3, s3, s11\ns_sub_u32 s3, s3, 24\ns_mul_i32 s3, s3, 9\ns_add_u32 s28, s3, s10")
    A("s_mul_i32 s29, s10, %d", CSLOT)
    A("v_lshlrev_b32 v2, 4, v1\nv_lshrrev_b32 v3, 3, v1\nv_and_b32 v3, 2, v3\nv_xor_b32 v3, v3, v1\nv_lshlrev_b32 v3, 4, v3")
    A("s_waitcnt lgkmcnt(0)")
    srd(A, 12, 8, SZ, WS_XT); srd(A, 16, 8, SZ, WS_K); srd(A, 20, 8, SZ, WS_YC)
    def fetch(ch, slot):
        A("s_lshl_b32 s25, s%d, 12\ns_add_u32 m0, s%d, 512", ch, slot)
        for i in range(4): A("buffer_load_dwordx4 v3, s[12:15], s25 offen offset:%d lds", 1024 * i)
        A("s_add_u32 m0, s%d, %d", slot, 4608 + 64)
        for i in range(4): A("buffer_load_dwordx4 v2, s[16:19], s25 offen offset:%d lds", 1024 * i)
        A("v_lshlrev_b32 v4, 3, v1\nv_add_u32 v4, s%d, v4\nv_mov_b32 v6, 0\nv_mov_b32 v7, 0\nds_write_b64 v4, v[6:7]", slot)
        A("v_and_b32 v4, 7, v1\nv_lshlrev_b32 v4, 3, v4\nv_add_u32 v4, s%d, v4\nds_write_b64 v4, v[6:7] offset:4608", slot)
    fetch(28, 29)
    A("s_mov_b32 s27, 1\ns_cmp_lg_u32 s10, 0\ns_cbranch_scc1 cv_go")
    A("s_add_u32 s30, s28, 8\ns_mov_b32 s31, %d\ns_mov_b32 s27, 2\ns_setprio 1", 8 * CSLOT)
    fetch(30, 31)
    A("cv_go:")
    VU, VK, U, KF, ACC = 4, 12, 16, 48, 80
    A("s_mov_b32 s34, 0\ns_mov_b32 s35, 0x80000000")
    A("cv_ch:")
    A("v_lshrrev_b32 v13, 4, v1\nv_and_b32 v14, 3, v1\nv_bfe_u32 v15, v1, 2, 2")
    A("v_and_b32 v16, 1, v13\nv_lshrrev_b32 v17, 1, v13")
    A("v_lshlrev_b32 v18, 5, v16\nv_lshl_add_u32 v18, v14, 3, v18\nv_lshl_add_u32 v18, v17, 6, v18\nv_lshl_add_u32 v18, v15, 3, v18")
    A("v_add_u32 v18, %d, v18\nv_add_u32 v%d, s29, v18", 4608 + 8, VK)
    A("v_lshl_add_u32 v18, v16, 2, v14\nv_sub_u32 v18, v18, v17\nv_lshlrev_b32 v18, 1, v18")
    A("v_sub_u32 v19, 3, v15\nv_lshlrev_b32 v19, 3, v19\nv_add_u32 v19, s29, v19")
    for km in range(4):
        for sec in range(2):
            A("v_add_u32 v20, %d, v18\nv_bfe_u32 v21, v20, 3, 1\nv_xor_b32 v20, v20, v21\nv_lshl_add_u32 v%d, v20, 5, v19", 17 - 4 * km - sec, VU + 2 * km + sec)
    rdU = lambda km, d: ["ds_read_b64_tr_b16 %s, v%d offset:%d" % (vr(U + 4 * d + 2 * s, 2), VU + 2 * km + s, 512 * d) for s in range(2)]
    rdK = lambda km, k: ["ds_read_b64_tr_b16 %s, v%d offset:%d" % (vr(KF + 4 * k + 2 * s, 2), VK, 512 * k + 128 * km + 32 * s) for s in range(2)]
    A("s_waitcnt vmcnt(0) lgkmcnt(0)")
    if OPT["stamp"] == "1":
        A("s_mov_b32 s70, s66\ns_mov_b32 s72, s68"); stamp(A, 1); A("s_waitcnt lgkmcnt(0)")
    pend = []
    def issue(key, ins):
        for x in ins: A(x); pend.append(key)
    def wait(keys):
        last = max([i for i, k in enumerate(pend) if k in keys], default=-1)
        if last >= 0:
            n = min(15, len(pend) - 1 - last)
            A("s_waitcnt lgkmcnt(%d)", n)
            del pend[:len(pend) - n]
    for i in range(8):
        issue(("K", 7 - i), rdK(0, 7 - i)); issue(("U", i), rdU(0, i))
    for km in range(4):
        for k in range(7, -1, -1):
            for d in range(8 - k):
                wait({("K", k), ("U", d)})
                a = vr(ACC + 16 * (k + d), 16)
                A("v_mfma_f32_32x32x16_bf16 %s, %s, %s, %s", a, vr(U + 4 * d, 4), vr(KF + 4 * k, 4), "0" if km == 0 and d == 0 else a)
                if km < 3 and k == 0: issue(("U", d), rdU(km + 1, d))
            if km < 3: issue(("K", k), rdK(km + 1, k))
    stamp(A, 2)
    Zr = lambda G, s: ACC + 4 * G + s
    A("v_mov_b32 v16, 0")
    for s in (3, 2, 1):
        for G in range(31, -1, -1): A("v_cndmask_b32 v%d, v%d, v%d, s[34:35]", Zr(G, s), Zr(G, s), Zr(G - 1, s) if G else 16)
        for G in range(31, -1, -1): A("v_add_f32_dpp v%d, v%d, v%d wave_ror:1 row_mask:0xf bank_mask:0xf", Zr(G, s - 1), Zr(G, s), Zr(G, s - 1))
    A("v_lshlrev_b32 v17, 2, v1\ns_lshl_b32 s25, s28, 12")
    for p in range(15, -1, -1):
        A("v_cvt_pk_bf16_f32 v%d, v%d, v%d\nbuffer_store_dword v%d, v17, s[20:23], s25 offen offset:%d", U + 4 + p, Zr(2 * p, 0), Zr(2 * p + 1, 0), U + 4 + p, 256 * p)
    A("s_sub_u32 s27, s27, 1\ns_cmp_eq_u32 s27, 0\ns_cbranch_scc1 k2_fin")
    A("s_mov_b32 s28, s30\ns_mov_b32 s29, s31\ns_branch cv_ch")

def k2(A):
    head(A, "k2_kernel")
    A("s_cmp_ge_u32 s2, 256\ns_cbranch_scc1 k2_end")
    wave_id(A, 10); stamp_init(A, 10)
    A("s_and_b32 s3, s2, 7\ns_lshr_b32 s11, s2, 3\ns_cmp_ge_u32 s11, 24\ns_cbranch_scc1 k2_cv")
    k2_gemm(A)
    A("k2_cv:")
    k2_conv(A)
    A("k2_end:\ns_endpgm")

def k3(A):
    head(A, "k3_kernel")
    A("s_cmp_ge_u32 s2, 256\ns_cbranch_scc1 k3_end")
    A("s_load_dwordx2 s[4:5], s[0:1], %d\ns_load_dwordx2 s[8:9], s[0:1], %d", ARG["w2"], ARG["ws"])
    wave_id(A, 10); stamp_init(A, 10)
    A("s_bfe_u32 s27, s2, 0x20001\ns_and_b32 s28, s2, 1\ns_lshl_b32 s28, s28, 3\ns_lshr_b32 s3, s2, 5\ns_add_u32 s28, s28, s3\ns_bfe_u32 s29, s2, 0x20003")
    NS, SB, BB = 4, 16384, 4 * 18432
    A("s_cmp_ge_u32 s10, 4\ns_cbranch_scc0 g2_cons")
    A("v_lshlrev_b32 v2, 4, v1\nv_lshrrev_b32 v7, 4, v1\nv_and_b32 v8, 15, v1")
    modadd(A, 30, 3, 0, 6)
    for i in range(4):
        A("v_add_u32 v9, %d, v7\nv_and_b32 v10, 7, v9\nv_lshlrev_b32 v10, 1, v10\nv_xor_b32 v10, v10, v8\nv_lshlrev_b32 v9, 12, v9\nv_lshl_add_u32 v9, v10, 4, v9\nv_subrev_u32 v%d, %d, v9", 4 * i, 3 + i, 1024 * i)
    A("s_mul_i32 s20, s29, %d\ns_mul_i32 s25, s27, %d\ns_add_u32 s20, s20, s25", 576 * 2304, 144 * 2304)
    A("s_mul_i32 s21, s27, %d\ns_lshl_b32 s25, s28, 8\ns_add_u32 s21, s21, s25", 1152 * 4096)
    A("s_waitcnt lgkmcnt(0)")
    srd(A, 12, 8, SZ_H, WS_H); srd(A, 16, 4, SZ_W)
    loaders(A, "g2l", 2, 18, NS, dict(vb=(3, 4, 5, 6), bg_g=16 * 4096, bg_l=4096, baseB=BB, slotB=SB, b_stride=64 * 4096),
            lambda a, b: ([[a(1), a(2)], [a(3), b(1)]], [[a(4), b(2)], [a(5), b(3)]]))
    A("g2_cons:")
    ACC, FX, FY = 8, 80, 124
    A("v_lshrrev_b32 v6, 4, v1\nv_and_b32 v7, 15, v1\nv_mul_u32_u24 v2, 2304, v6\nv_lshl_add_u32 v2, v7, 4, v2\nv_add_u32 v3, %d, v2", 3 * 18432)
    A("v_lshrrev_b32 v6, 2, v1\nv_and_b32 v7, 7, v6\nv_lshlrev_b32 v6, 8, v6\nv_and_b32 v8, 3, v1\nv_lshl_add_u32 v6, v8, 3, v6\nv_add_u32 v6, %d, v6", BB)
    A("v_xor_b32 v7, s10, v7\nv_lshl_add_u32 v4, v7, 5, v6\nv_xor_b32 v7, 4, v7\nv_lshl_add_u32 v5, v7, 5, v6")
    for r in range(ACC, ACC + 72): A("v_mov_b32 v%d, 0", r)
    for r in range(FY, FY + 44): A("v_mov_b32 v%d, 0", r)
    def reads(slot, ks, st):
        F = FY if st else FX
        o = (0 if slot == 3 else slot) * 18432 + ks * 9216
        a = ["ds_read_b128 %s, v%d offset:%d" % (vr(F + 8 + 4 * t, 4), 3 if slot == 3 else 2, o + 256 * t) for t in range(9)]
        b = ["ds_read_b64_tr_b16 %s, v%d offset:%d" % (vr(F + 4 * j + 2 * h, 2), 4 + j, slot * SB + ks * 8192 + h * 4096) for j in range(2) for h in range(2)]
        return b + a
    def mfmas(st):
        F = FY if st else FX
        return ["v_mfma_f32_16x16x32_bf16 %s, %s, %s, %s" % (vr(ACC + 8 * t + 4 * j, 4), vr(F + 8 + 4 * t, 4), vr(F + 4 * j, 4), vr(ACC + 8 * t + 4 * j, 4)) for t in range(9) for j in range(2)]
    consumer(A, "g2c", 18, NS, reads, mfmas, 1)
    A("s_waitcnt lgkmcnt(0)")
    srd(A, 12, 8, SZ_P, WS_P)
    A("s_lshl_b32 s3, s28, 2\ns_add_u32 s3, s3, s29\ns_lshl_b32 s3, s3, 2\ns_add_u32 s3, s3, s10\ns_lshl_b32 s3, s3, 2\ns_add_u32 s3, s3, s27\ns_mul_i32 s3, s3, 18432")
    A("v_lshlrev_b32 v2, 4, v1")
    for tl in range(18):
        if tl % 4 == 0 and tl: A("s_add_u32 s3, s3, 4096")
        A("buffer_store_dwordx4 %s, v2, s[12:15], s3 offen offset:%d", vr(ACC + 4 * tl, 4), 1024 * (tl % 4))
    endpgm(A, 2)
    A("k3_end:\ns_endpgm")

def k4(A):
    head(A, "k4_kernel")
    A("s_cmp_ge_u32 s2, 256\ns_cbranch_scc1 k4_end")
    A("s_load_dwordx4 s[4:7], s[0:1], %d\ns_load_dwordx2 s[8:9], s[0:1], %d", ARG["b2"], ARG["ws"])
    wave_id(A, 10); stamp_init(A, 10)
    A("s_and_b32 s27, s2, 3\ns_bfe_u32 s29, s2, 0x20002\ns_lshr_b32 s28, s2, 4")
    A("v_lshrrev_b32 v6, 4, v1\nv_and_b32 v7, 15, v1\nv_lshlrev_b32 v2, 4, v1")
    A("s_lshl_b32 s3, s27, 4\nv_add_u32 v7, s3, v7")
    A("s_lshl_b32 s3, s28, 7\nv_add_u32 v8, s3, v7\nv_lshlrev_b32 v5, 1, v8\nv_mul_u32_u24 v3, 1152, v8")
    A("s_mul_i32 s30, s29, 144\ns_lshl_b32 s3, s10, 5\ns_add_u32 s30, s30, s3")
    A("s_mul_i32 s31, s2, %d\ns_lshl_b32 s3, s10, 12\ns_add_u32 s31, s31, s3", 4 * 18432)
    A("s_waitcnt lgkmcnt(0)")
    srd(A, 12, 8, SZ_P, WS_P); srd(A, 16, 8, SZ, WS_BASE); srd(A, 20, 8, SZ, WS_YC); srd(A, 36, 4, 4096); srd(A, 40, 6, SZ)
    A("s_mov_b32 s44, %d", 64 * 1152)
    def body(nt):
        nd = 4 * nt; P, Y, B, B2 = 32, 10, 20, 28
        A("v_lshlrev_b32 v6, %d, v6\nv_add_u32 v6, s30, v6\nv_lshl_add_u32 v3, v6, 1, v3", 1 + nt)
        A("v_lshlrev_b32 v4, 12, v6\nv_lshl_add_u32 v4, v7, 2, v4\ns_lshl_b32 s3, s28, 8")
        for q in range(4):
            for i in range(2 * nt): A("buffer_load_dwordx4 %s, v2, s[12:15], s31 offen offset:%d", vr(P + 16 * q + 4 * i, 4), 1024 * i)
            A("s_add_u32 s31, s31, 18432")
        for e in range(nd):
            A("buffer_load_dword v%d, v4, s[20:23], s3 offen\ns_add_u32 s3, s3, 4096", Y + e)
        w = "x4" if nt == 2 else "x2"
        A("buffer_load_dword%s %s, v3, s[16:19], 0 offen\nbuffer_load_dword%s %s, v3, s[16:19], s44 offen", w, vr(B, 2 * nt), w, vr(B + 4, 2 * nt))
        A("buffer_load_ushort v%d, v5, s[36:39], 0 offen\nbuffer_load_ushort v%d, v5, s[36:39], 0 offen offset:128", B2, B2 + 1)
        for q in range(1, 4):
            A("s_waitcnt vmcnt(%d)", (3 - q) * 2 * nt + nd + 4)
            for i in range(4 * nt): A("v_pk_add_f32 %s, %s, %s", vr(P + 2 * i, 2), vr(P + 2 * i, 2), vr(P + 16 * q + 2 * i, 2))
        A("s_waitcnt vmcnt(0)"); stamp(A, 1)
        T = P + 16
        for j in range(2):
            A("v_lshlrev_b32 v%d, 16, v%d", B2 + j, B2 + j)
            for e in range(nd):
                src = P + 4 * (2 * (e >> 2) + j) + (e & 3)
                A("v_lshlrev_b32 v8, 16, v%d" % (Y + e) if j == 0 else "v_and_b32 v8, 0xffff0000, v%d" % (Y + e))
                A("v_lshlrev_b32 v9, 16, v%d" % (B + 4 * j + e // 2) if e % 2 == 0 else "v_and_b32 v9, 0xffff0000, v%d" % (B + 4 * j + e // 2))
                A("v_add_f32 v%d, v%d, v%d\nv_add_f32 v8, v8, v9\nv_add_f32 v%d, v%d, v8", src, src, B2 + j, T + e, src)
            for e in range(nd // 2): A("v_cvt_pk_bf16_f32 v%d, v%d, v%d", T + 8 + 4 * j + e, T + 2 * e, T + 2 * e + 1)
            A("buffer_store_dword%s %s, v3, s[40:43], %s offen", w, vr(T + 8 + 4 * j, 2 * nt), "s44" if j else "0")
        endpgm(A, 3)
    A("s_cmp_eq_u32 s10, 4\ns_cbranch_scc1 k4_last")
    body(2)
    A("k4_last:")
    body(1)
    A("k4_end:\ns_endpgm")

def build():
    launches = [("k1_kernel", 544, 256, 4 * 32 * KRS), ("k2_kernel", 256, 512, 5 * 30720), ("k3_kernel", 256, 448, 4 * 34816), ("k4_kernel", 256, 320, 0)]
    out = ["; S4D convolution + token-mixing MLP, generated instruction stream"]
    for k, g, b, l in launches: out.append("; @launch kernel=%s grid=(%d,1,1) block=(%d,1,1) lds=%d" % (k, g, b, l))
    out.append('.amdgcn_target "amdgcn-amd-amdhsa--gfx950"\n.text')
    for f in (k1, k2, k3, k4):
        A = Asm(); f(A)
        t, n = A.text()
        sys.stderr.write("%s: %d lines, %d nops inserted\n" % (f.__name__, len(A.l), n))
        out.append(t)
    out.append('.section .rodata,"a"')
    out.append(kd("k1_kernel", 160) + kd("k2_kernel", 208) + kd("k3_kernel", 168) + kd("k4_kernel", 96))
    return "\n".join(out), launches

if __name__ == "__main__":
    for a in sys.argv[2:]:
        k, v = a.split("=", 1); OPT[k] = v
    open(sys.argv[1], "w").write(build()[0])
```

```python
import sys, math, struct
from asmlib import *

NAME = "parallel_sum__ssm_conv_s4d__mixer_token_mlp__prompt"
SZ = 2359296
WS_HT, WS_XT, WS_BASE, WS_K, WS_YC = 0, SZ, 2 * SZ, 3 * SZ, 4 * SZ
WS_H = 5 * SZ
SZ_H = 5308416
WS_P = WS_H + SZ_H
SZ_P = 256 * 4 * 9216
SZ_W = 18874368
ARG = dict(x=0, loga=8, aim=16, cr=24, ci=32, logdt=40, dsk=48, w1=64, b1=72, w2=80, b2=88, out=96, dbg=104, ws=112)
OPT = dict(stamp="0", cyc="0", lam1="4", lam2="4", a0="0", b0="0", adepth="3", agh="1", agw1="16", agh0="8", agw2="36", s1="2",
           gap1="21111111111111", gap2="111111111111111111", age="7", prio="0", noconv="0", lnst="0", nt1="", nt2="", dist="4", lprio="3", dist2="1", st2="0", ht="0", htb="1", gp0="0", htl="4", sched="w16,v8,wv", w2rev="0", cpf="1", rord="0", c3="3", af1="sc1", af2="sc1", gpf="0", nrep="32", psleep="2", agdelay="0")
WS_F = WS_P + SZ_P
F_EX, F_H, F_LN, F_REL, F_ALL, SZ_F = 0, 32768, 32768 + 2048, 36864, 40960, 43008
P_X, P_DSK, P_W1, P_B1, P_W2, P_B2, P_OUT, P_DBG, P_WS = 6, 8, 86, 88, 90, 92, 94, 96, 98
WS_ST = 128 << 20

def stamp(A, k):
    if OPT["stamp"] == "1": A("%s s[%d:%d]", "s_memtime" if OPT["cyc"] == "1" else "s_memrealtime", 64 + 2 * k, 65 + 2 * k)

def stamp_init(A, wave):
    if OPT["stamp"] == "1":
        for k in range(8): A("s_mov_b32 s%d, 0", 64 + 2 * k)
        A("s_mov_b32 s63, s%d\ns_load_dwordx2 s[100:101], s[0:1], %d\ns_memtime s[80:81]", wave, ARG["ws"])
        stamp(A, 0)

def endpgm(A, kidx):
    if OPT["stamp"] == "1":
        A("s_waitcnt vmcnt(0)")
        stamp(A, 6)
        A("s_memtime s[82:83]\ns_waitcnt lgkmcnt(0)\ns_sub_u32 s62, s82, s80\ns_mov_b64 exec, 1\nv_mov_b32 v16, s62")
        srd(A, 12, 100, 2 << 20, WS_ST)
        A("s_add_u32 s62, s2, %d\ns_lshl_b32 s62, s62, 3\ns_add_u32 s62, s62, s63\ns_lshl_b32 s62, s62, 6\nv_mov_b32 v0, s62", 1024 * kidx)
        for k in range(8): A("v_mov_b32 v%d, s%d", 8 + k, 64 + 2 * k)
        A("buffer_store_dwordx4 v[8:11], v0, s[12:15], 0 offen\nbuffer_store_dwordx4 v[12:15], v0, s[12:15], 0 offen offset:16\nbuffer_store_dword v16, v0, s[12:15], 0 offen offset:32")
    A("s_endpgm")


def f2u(f): return struct.unpack("<I", struct.pack("<f", f))[0]
def hx(f): return "0x%08x" % f2u(f)

def srd(A, d, b, size, off=0):
    if off:
        A("s_add_u32 s%d, s%d, %d\ns_addc_u32 s%d, s%d, 0", d, b, off, d + 1, b + 1)
    else:
        A("s_mov_b32 s%d, s%d\ns_mov_b32 s%d, s%d", d, b, d + 1, b + 1)
    A("s_mov_b32 s%d, %d\ns_mov_b32 s%d, 0x20000", d + 2, size, d + 3)

def head(A, k):
    A(".p2align 8\n.globl %s\n.type %s,@function\n%s:", k, k, k)

def kd(k, nv, ns=102):
    acc = min(256, (nv + 3) // 4 * 4)
    return (".p2align 6\n.amdhsa_kernel %s\n  .amdhsa_next_free_vgpr %d\n  .amdhsa_next_free_sgpr %d\n  .amdhsa_accum_offset %d\n"
            "  .amdhsa_group_segment_fixed_size 0\n  .amdhsa_kernarg_size 120\n  .amdhsa_user_sgpr_count 2\n"
            "  .amdhsa_user_sgpr_kernarg_segment_ptr 1\n  .amdhsa_system_sgpr_workgroup_id_x 1\n"
            "  .amdhsa_float_denorm_mode_32 3\n.end_amdhsa_kernel\n") % (k, nv, ns, acc)

def wave_id(A, s, lane=1):
    A("v_lshrrev_b32 v%d, 6, v0\nv_readfirstlane_b32 s%d, v%d\nv_and_b32 v%d, 63, v0", lane, s, lane, lane)

RS = 1216
def reduce32(A, a, b):
    for m in ("quad_perm:[1,0,3,2]", "quad_perm:[2,3,0,1]", "row_half_mirror", "row_mirror"):
        A("v_add_f32_dpp v%d, v%d, v%d %s row_mask:0xf bank_mask:0xf", a, a, a, m)
    A("v_mov_b32 v%d, v%d\nv_permlane16_swap_b32 v%d, v%d\nv_add_f32 v%d, v%d, v%d", b, a, a, b, a, a, b)

def unpack(A, lo, hi, src):
    A("v_lshlrev_b32 v%d, 16, v%d\nv_and_b32 v%d, 0xffff0000, v%d", lo, src, hi, src)

def rbf(A, d, s):
    A("v_cvt_pk_bf16_f32 v%d, v%d, v%d\nv_and_b32 v%d, 0xffff0000, v%d", d, s, s, d, d)

def layernorm(A, a, t, p, m, unpack_out):
    BC = "op_sel:[0,0] op_sel_hi:[1,0]"
    for i in range(4): A("v_pk_add_f32 %s, %s, %s", vr(t + 2 * i, 2), vr(a + 4 * i, 2), vr(a + 4 * i + 2, 2))
    A("v_pk_add_f32 %s, %s, %s\nv_pk_add_f32 %s, %s, %s", vr(t, 2), vr(t, 2), vr(a + 16, 2), vr(t + 2, 2), vr(t + 2, 2), vr(t + 4, 2))
    A("v_pk_add_f32 %s, %s, %s\nv_pk_add_f32 %s, %s, %s", vr(t, 2), vr(t, 2), vr(t + 6, 2), vr(m, 2), vr(t, 2), vr(t + 2, 2))
    A("v_add_f32 v%d, v%d, v%d", m, m, m + 1)
    reduce32(A, m, m + 1)
    A("v_mul_f32 v%d, %s, v%d", m, hx(1 / 576.), m)
    for i in range(9): A("v_pk_add_f32 %s, %s, %s %s neg_lo:[0,1] neg_hi:[0,1]", vr(t + 2 * i, 2), vr(a + 2 * i, 2), vr(m, 2), BC)
    for i in range(3): A("v_pk_mul_f32 %s, %s, %s", vr(t + 2 * i, 2), vr(t + 2 * i, 2), vr(t + 2 * i, 2))
    for i in range(3, 9): A("v_pk_fma_f32 %s, %s, %s, %s", vr(t + 2 * (i % 3), 2), vr(t + 2 * i, 2), vr(t + 2 * i, 2), vr(t + 2 * (i % 3), 2))
    A("v_pk_add_f32 %s, %s, %s\nv_pk_add_f32 %s, %s, %s", vr(t, 2), vr(t, 2), vr(t + 2, 2), vr(m + 2, 2), vr(t, 2), vr(t + 4, 2))
    A("v_add_f32 v%d, v%d, v%d", m + 2, m + 2, m + 3)
    rbf(A, m, m)
    for i in range(9): A("v_pk_add_f32 %s, %s, %s %s neg_lo:[0,1] neg_hi:[0,1]", vr(t + 2 * i, 2), vr(a + 2 * i, 2), vr(m, 2), BC)
    reduce32(A, m + 2, m + 3)
    A("v_mul_f32 v%d, %s, v%d", m + 2, hx(1 / 576.), m + 2)
    rbf(A, m + 2, m + 2)
    A("v_add_f32 v%d, %s, v%d", m + 2, hx(1e-5), m + 2)
    rbf(A, m + 2, m + 2)
    A("v_sqrt_f32 v%d, v%d", m + 2, m + 2)
    for i in range(9): A("v_cvt_pk_bf16_f32 v%d, v%d, v%d", p + i, t + 2 * i, t + 2 * i + 1)
    rbf(A, m + 2, m + 2)
    A("v_rcp_f32 v%d, v%d", m + 2, m + 2)
    for i in range(9): unpack(A, t + 2 * i, t + 2 * i + 1, p + i)
    for i in range(9): A("v_pk_mul_f32 %s, %s, %s %s", vr(t + 2 * i, 2), vr(t + 2 * i, 2), vr(m + 2, 2), BC)
    for i in range(9): A("v_cvt_pk_bf16_f32 v%d, v%d, v%d", p + i, t + 2 * i, t + 2 * i + 1)
    if unpack_out is not None:
        for i in range(9): unpack(A, unpack_out + 2 * i, unpack_out + 2 * i + 1, p + i)

def ln_phase(A):
    A("s_mul_i32 s22, s3, 24\ns_add_u32 s22, s22, s11\ns_cmp_lt_u32 s10, 4\ns_cbranch_scc1 ln_go")
    A("s_lshl_b32 s22, s3, 3\ns_add_u32 s22, s22, s11\ns_add_u32 s22, s22, 192\ns_cmp_lt_u32 s11, 8\ns_cbranch_scc1 ln_go")
    A("s_waitcnt lgkmcnt(0)\nv_mov_b32 v125, 0")
    n = int(OPT["gp0"])
    if n:
        srd(A, 12, P_W1, SZ_W)
        A("s_sub_u32 s22, s11, 8\ns_lshl_b32 s22, s22, 2\ns_add_u32 s22, s22, s10\ns_sub_u32 s22, s22, 4\ns_mul_i32 s23, s3, 1152")
        for r in range(n):
            touch_w1(A, 22, 126, 2, 12, 23)
            A("s_add_u32 s22, s22, 64")
    A("s_barrier\ns_branch ln_done\nln_go:")
    A("s_and_b32 s23, s10, 3\ns_lshl_b32 s25, s22, 3\ns_lshl_b32 s28, s23, 1\ns_add_u32 s25, s25, s28")
    A("v_lshrrev_b32 v4, 5, v1\nv_add_u32 v2, s25, v4\nv_mul_u32_u24 v2, 1152, v2")
    A("v_and_b32 v3, 31, v1\nv_lshlrev_b32 v3, 2, v3\nv_add_u32 v2, v2, v3")
    A("s_waitcnt lgkmcnt(0)")
    srd(A, 12, P_X, SZ)
    X, DS, XF, T, P, M, XN = 8, 17, 26, 44, 62, 72, 76
    for i in range(9): A("buffer_load_dword v%d, v2, s[12:15], 0 offen offset:%d", X + i, 128 * i)
    srd(A, 16, P_DSK, 1152)
    for i in range(9): A("buffer_load_dword v%d, v3, s[16:19], 0 offen offset:%d", DS + i, 128 * i)
    srd(A, 16, P_WS, SZ, WS_BASE)
    A("s_lshr_b32 s31, s10, 2\ns_mul_i32 s31, s31, %d", 16 * RS + 256)
    A("v_add_u32 v4, s28, v4\nv_mul_u32_u24 v4, %d, v4\nv_add_u32 v4, v4, v3\nv_add_u32 v4, s31, v4", RS)
    A("s_and_b32 s29, s10, 1\ns_lshl_b32 s29, s29, 6")
    A("v_bfe_u32 v5, v1, 2, 2\nv_mul_u32_u24 v5, %d, v5\nv_and_b32 v6, 3, v1\nv_lshl_add_u32 v5, v6, 3, v5", RS)
    A("v_lshrrev_b32 v6, 4, v1\nv_lshl_add_u32 v5, v6, 5, v5\ns_lshl_b32 s30, s29, 1\ns_add_u32 s30, s30, s31\nv_add_u32 v5, s30, v5")
    AD = 94
    A("s_cmp_ge_u32 s23, 2\ns_cbranch_scc1 ln_xt")
    srd(A, 12, P_WS, SZ, WS_HT)
    A("v_add_u32 v5, %d, v5\ns_mul_i32 s30, s22, 2304", 8 * RS)
    for j in range(5):
        A("v_add_u32 v6, s29, v1\nv_add_u32 v6, %d, v6", 128 * j)
        A("v_mul_u32_u24 v7, 3641, v6\nv_lshrrev_b32 v7, 19, v7\nv_mul_u32_u24 v99, 144, v7\nv_sub_u32 v6, v6, v99")
        A("v_and_b32 v99, 4, v6\nv_lshlrev_b32 v99, 2, v99\nv_and_b32 v100, 24, v6\nv_lshrrev_b32 v100, 1, v100\nv_or_b32 v99, v99, v100")
        A("v_and_b32 v100, 0xe3, v6\nv_or_b32 v99, v99, v100\nv_lshrrev_b32 v100, 7, v6\nv_cmp_eq_u32 s[32:33], 0, v100\nv_cndmask_b32 v6, v6, v99, s[32:33]")
        A("v_mul_u32_u24 v7, 589824, v7\nv_lshl_add_u32 v6, v6, 4, v7\nv_add_u32 v%d, s30, v6", AD + j)
    A("s_branch ln_c\nln_xt:")
    srd(A, 12, P_WS, SZ, WS_XT)
    A("s_lshl_b32 s30, s22, 7\nv_add_u32 v6, s29, v1\nv_lshrrev_b32 v7, 3, v6\nv_and_b32 v99, 7, v6\nv_lshlrev_b32 v99, 4, v99\nv_lshl_add_u32 v7, v7, 15, v99\nv_add_u32 v7, s30, v7")
    for j in range(4): A("v_add_u32 v%d, %d, v7", AD + j, j << 19)
    A("s_lshl_b32 s30, s22, 10\ns_lshl_b32 s32, s29, 16\ns_add_u32 s30, s30, s32\ns_add_u32 s30, s30, %d\nv_lshlrev_b32 v6, 4, v1\nv_add_u32 v%d, s30, v6", 1 << 21, AD + 4)
    A("ln_c:")
    A("s_waitcnt vmcnt(9)")
    if OPT["lnst"] == "1": stamp(A, 3)
    for i in range(9): unpack(A, XF + 2 * i, XF + 2 * i + 1, X + i)
    layernorm(A, XF, T, P, M, XN)
    for i in range(9): A("ds_write_b32 v4, v%d offset:%d", P + i, 128 * i)
    srd(A, 4, P_DBG, 256)
    A("v_mov_b32 v124, 0\nbuffer_load_dword v125, v124, s[4:7], 0 offen sc1")
    layernorm(A, XN, T, P, M, None)
    for i in range(9): A("ds_write_b32 v4, v%d offset:%d", P + i, 8 * RS + 128 * i)
    A("s_waitcnt vmcnt(0)")
    for i in range(9): unpack(A, T + 2 * i, T + 2 * i + 1, DS + i)
    if OPT["lnst"] == "1": stamp(A, 4)
    A("s_waitcnt lgkmcnt(0)\ns_barrier")
    if OPT["lnst"] == "1": stamp(A, 5); A("s_waitcnt lgkmcnt(0)")
    TR = 104
    for j in range(5):
        A("ds_read_b64_tr_b16 %s, v5 offset:%d", vr(TR + 4 * j, 2), 256 * j)
        A("ds_read_b64_tr_b16 %s, v5 offset:%d", vr(TR + 4 * j + 2, 2), 256 * j + 4 * RS)
    for i in range(9): A("v_pk_fma_f32 %s, %s, %s, %s", vr(XF + 2 * i, 2), vr(XN + 2 * i, 2), vr(T + 2 * i, 2), vr(XF + 2 * i, 2))
    for j in range(5):
        A("s_waitcnt lgkmcnt(%d)", 8 - 2 * j)
        A("buffer_store_dwordx4 %s, v%d, s[12:15], 0 offen sc1", vr(TR + 4 * j, 4), AD + j)
    for i in range(9): A("v_cvt_pk_bf16_f32 v%d, v%d, v%d", X + i, XF + 2 * i, XF + 2 * i + 1)
    for i in range(9): A("buffer_store_dword v%d, v2, s[16:19], 0 offen offset:%d sc1", X + i, 128 * i)
    A("ln_done:")

KRS = 272
GROWS = {}
for reg, p in enumerate([0, 1, 2, 3, 256, 258, 260, 262, 264, 512, 516, 520, 768, 772, 776]): GROWS[p] = (reg & 3) + 8 * (reg >> 2)
for reg, p in enumerate([4, 5, 6, 7, 1024, 1032, 1280, 1288, 1536, 1544, 1792, 1800]): GROWS[p] = (reg & 3) + 8 * (reg >> 2) + 4
KD, KFB, KFA = 80, 96, 128

def cmul(A, z, a, b, t):
    A("v_pk_mul_f32 %s, %s, %s op_sel:[0,0] op_sel_hi:[0,1]", vr(t, 2), vr(a, 2), vr(b, 2))
    A("v_pk_fma_f32 %s, %s, %s, %s op_sel:[1,1,0] op_sel_hi:[1,0,1] neg_lo:[0,1,0]", vr(z, 2), vr(a, 2), vr(b, 2), vr(t, 2))

def touch_w1(A, sn, vd, vt, rs, so):
    a, b, c = vt, vt + 1, vt + 2
    A("s_lshl_b32 s58, s%d, 6\nv_add_u32 v%d, s58, v1\nv_mul_u32_u24 v%d, 58255, v%d\nv_lshrrev_b32 v%d, 19, v%d", sn, a, b, a, b, b)
    A("v_mul_u32_u24 v%d, 9, v%d\nv_sub_u32 v%d, v%d, v%d\nv_mul_u32_u24 v%d, 9216, v%d\nv_lshl_add_u32 v%d, v%d, 7, v%d", c, b, a, a, c, b, b, a, a, b)
    A("buffer_load_dword v%d, v%d, s[%d:%d], s%d offen", vd, a, rs, rs + 3, so)

def kgen_params(A, ch, R):
    A("s_lshl_b32 s3, s%d, 1\nv_mov_b32 v3, s3\nbuffer_load_ushort v%d, v3, s[36:39], 0 offen", ch, R + 4)
    for i in range(4): A("buffer_load_ushort v%d, v2, s[%d:%d], 0 offen", R + i, 20 + 4 * i, 23 + 4 * i)

def kgen_addr(A, base):
    A("v_lshlrev_b32 v2, 2, v1\nv_add_u32 v2, s%d, v2", base)
    A("v_and_b32 v3, 31, v1\nv_mul_u32_u24 v3, %d, v3\nv_lshrrev_b32 v9, 5, v1\nv_lshl_add_u32 v3, v9, 4, v3\nv_add_u32 v3, s%d, v3", KRS, base)

def kgen_half(A, first):
    LOG2E = 1.4426950408889634
    A("v_lshlrev_b32 v8, 16, v8\nv_lshlrev_b32 v4, 16, v4\nv_mul_f32 v8, %s, v8\nv_mul_f32 v4, %s, v4\nv_exp_f32 v8, v8\nv_exp_f32 v4, v4", hx(LOG2E), hx(LOG2E))
    for i in (5, 6, 7): A("v_lshlrev_b32 v%d, 16, v%d", i, i)
    rbf(A, 8, 8); rbf(A, 4, 4)
    A("v_mul_f32 v4, v4, v8\nv_mul_f32 v5, v5, v8\nv_mul_f32 v4, %s, v4\nv_mul_f32 v5, %s, v5", hx(-LOG2E), hx(1 / (2 * math.pi)))
    G0 = 10
    A("v_add_f32 v8, v8, v8\nv_mul_f32 v%d, v6, v8\nv_mul_f32 v%d, v7, v8", G0, G0 + 1)
    E = {}
    nxt = [12]
    def alloc():
        r = nxt[0]; nxt[0] += 2; return r
    ps = (1, 8, 64, 256, 1024)
    for p in ps: E[p] = alloc()
    X = 60
    for i, p in enumerate(ps): A("v_mul_f32 v%d, %s, v4\nv_mul_f32 v%d, %s, v5", X + 2 * i, hx(float(p)), X + 2 * i + 1, hx(float(p)))
    for i, p in enumerate(ps): A("v_fract_f32 v%d, v%d", X + 2 * i + 1, X + 2 * i + 1)
    for i, p in enumerate(ps): A("v_exp_f32 v%d, v%d\nv_cos_f32 v%d, v%d\nv_sin_f32 v%d, v%d", X + 2 * i, X + 2 * i, E[p], X + 2 * i + 1, E[p] + 1, X + 2 * i + 1)
    for i, p in enumerate(ps): A("v_pk_mul_f32 %s, %s, %s op_sel:[0,0] op_sel_hi:[1,0]", vr(E[p], 2), vr(E[p], 2), vr(X + 2 * i, 2))
    TM, PKR = 128, 144
    def cmuls(jobs):
        for i, (z, a, b) in enumerate(jobs): A("v_pk_mul_f32 %s, %s, %s op_sel:[0,0] op_sel_hi:[0,1]", vr(TM + 2 * i, 2), vr(a, 2), vr(b, 2))
        for i, (z, a, b) in enumerate(jobs):
            A("v_pk_fma_f32 %s, %s, %s, %s op_sel:[1,1,0] op_sel_hi:[1,0,1] neg_lo:[0,1,0]", vr(z, 2), vr(a, 2), vr(b, 2), vr(TM + 2 * i, 2))
    def puts(rows, neg):
        for i, (row, r) in enumerate(rows): A("v_cvt_pk_bf16_f32 v%d, v%d, %sv%d", PKR + i, r, "-" if neg else "", r + 1)
        for i, (row, r) in enumerate(rows): A("ds_write_b32 v2, v%d offset:%d", PKR + i, row * KRS)
    for p in (2, 16, 128, 512, 4, 32, 192): E[p] = alloc()
    H = {1: E[8], 2: E[16], 4: E[32]}
    for j in (3, 5, 6, 7): H[j] = alloc()
    G = {0: G0}
    for p in (1, 2, 3, 4, 6, 256, 512, 516, 1024): G[p] = alloc()
    Z = [KFB + 2 * i for i in range(8)]
    cmuls([(E[p], E[p // 2], E[p // 2]) for p in (2, 16, 128, 512)] + [(G[1], G0, E[1]), (G[256], G0, E[256]), (G[1024], G0, E[1024])])
    A("v_mov_b32 v8, 0x3f80\nds_write_b32 v2, v8")
    cmuls([(E[4], E[2], E[2]), (E[32], E[16], E[16]), (E[192], E[64], E[128]), (H[3], H[1], H[2]), (G[2], G0, E[2]), (G[3], G[1], E[2]), (G[512], G0, E[512])])
    cmuls([(H[5], H[1], H[4]), (H[6], H[2], H[4]), (H[7], H[3], H[4]), (G[4], G0, E[4]), (G[6], G[2], E[4])])
    puts([(j, H[j]) for j in range(1, 8)] + [(8, E[64]), (16, E[128]), (24, E[192])], False)
    for a in (1, 2, 3):
        cmuls([(Z[j], H[j], E[64 * a]) for j in range(1, 8)])
        puts([(8 * a + j, Z[j]) for j in range(1, 8)], False)
    for p in (768, 1280, 1536, 1792): G[p] = alloc()
    assert nxt[0] <= 72, nxt[0]
    cmuls([(G[516], G[4], E[512]), (G[768], G[512], E[256]), (G[1280], G[1024], E[256]), (G[1536], G[1024], E[512])])
    for k in range(8): A("ds_read_b128 %s, v3 offset:%d", vr(KFB + 4 * k, 4), 32 * k)
    Z = [160 + 2 * i for i in range(8)]
    cmuls([(G[1792], G[1536], E[256]), (Z[0], G[1], E[4]), (Z[1], G[3], E[4]), (Z[2], G[2], E[256]), (Z[3], G[4], E[256]), (Z[4], G[6], E[256]), (Z[5], G[516], E[256])])
    puts([(GROWS[p], G[p]) for p in (0, 1, 2, 3, 4, 6, 256, 512, 516, 1024, 768, 1280, 1536, 1792)], True)
    puts([(GROWS[p], Z[i]) for i, p in enumerate((5, 7, 258, 260, 262, 772))], True)
    e8 = (256, 512, 768, 1024, 1280, 1536, 1792)
    cmuls([(Z[i], G[p], E[8]) for i, p in enumerate(e8)])
    puts([(GROWS[p + 8], Z[i]) for i, p in enumerate(e8)], True)
    for k in range(8): A("ds_read_b128 %s, v3 offset:%d", vr(KFA + 4 * k, 4), 32 * k)
    for k in range(8):
        A("s_waitcnt lgkmcnt(%d)", 7 - k)
        A("v_mfma_f32_32x32x16_bf16 %s, %s, %s, %s", vr(KD, 16), vr(KFA + 4 * k, 4), vr(KFB + 4 * k, 4), vr(KD, 16) if k or not first else "0")

def kgen_expand(A, base, store):
    A("v_and_b32 v3, 31, v1\nv_lshlrev_b32 v3, 4, v3\nv_add_u32 v3, s%d, v3\nv_lshrrev_b32 v4, 5, v1\nv_lshl_add_u32 v4, v4, 3, v3", base)
    A("v_and_b32 v5, 1, v1\nv_cmp_eq_u32 s[44:45], 1, v5")
    def pk2(d, a, b): A("v_cvt_pk_bf16_f32 v%d, v%d, v%d", d, a, b)
    r = lambda i: KD + i
    pk2(12, r(0), r(1)); pk2(13, r(2), r(3))
    store(12, 2, 4, 0)
    O = 16
    A("s_mov_b32 exec_lo, -1\ns_mov_b32 exec_hi, 0")
    for blk, seq in ((256, ((4, 4), (5, 6), (6, 6), (7, 8))), (512, ((9, 9), (9, 10), (10, 10), (11, 11))), (768, ((12, 12), (12, 13), (13, 13), (14, 14)))):
        for i, (a, b) in enumerate(seq): pk2(O + i, r(a), r(b))
        store(O, 4, 3, 2 * blk); O += 4
    A("s_mov_b32 exec_lo, 0\ns_mov_b32 exec_hi, -1")
    for blk, a in ((1024, 4), (1280, 6), (1536, 8), (1792, 10)):
        A("v_cndmask_b32 v8, v%d, v%d, s[44:45]", r(a), r(a + 1))
        pk2(O, r(a), r(a)); pk2(O + 1, r(a), r(a)); pk2(O + 2, 8, r(a + 1)); pk2(O + 3, r(a + 1), r(a + 1))
        store(O, 4, 3, 2 * blk); O += 4
    A("s_mov_b64 exec, -1")

def loader(A, tag, nstage, nslot, units, lead, cfg, gate=None):
    nu = len(units)
    R = 40
    st = []
    for u in units:
        g = []
        for kind, si, *sub in u:
            if kind == "A":
                A("s_mul_i32 s%d, s%d, 3072\ns_add_u32 s%d, s%d, s20", R + 1, si, R, R + 1)
            else:
                A("s_mul_i32 s%d, s%d, %d\ns_add_u32 s%d, s%d, s21", R, si, cfg["bg_g"], R, R)
                A("s_mul_i32 s%d, s%d, %d\ns_add_u32 s%d, s%d, %d", R + 1, si, cfg["bg_l"], R + 1, R + 1, cfg["baseB"])
            g.append((kind, R, sub[0] if sub else range(3 if kind == "A" else len(cfg["vb"])))); R += 2
        A("s_mov_b32 s%d, 0", R); st.append((g, R)); R += 1
    assert R <= 62
    q = []
    def issue(u, kinds="AB"):
        g, c = st[u % nu]
        for kind, r, sub in g:
            if kind not in kinds: continue
            A("s_mov_b32 m0, s%d", r + 1)
            if kind == "A":
                A("s_add_u32 s%d, s%d, 18432", r + 1, r + 1)
                for i in sub: A("buffer_load_dwordx4 v2, s[12:15], s%d offen offset:%d %s lds", r, 1024 * i, cfg["aflag"])
                A("s_add_u32 s%d, s%d, %d", r, r, 0 if OPT["a0"] == "1" else 18432); q.extend([u // nu] * len(sub))
            else:
                A("s_add_u32 s%d, s%d, %d", r + 1, r + 1, cfg["slotB"])
                for i in sub: A("buffer_load_dwordx4 v%d, s[16:19], s%d offen offset:%d %s lds", cfg["vb"][i], r, 1024 * i, cfg["bflag"])
                A("s_add_u32 s%d, s%d, %d", r, r, 0 if OPT["b0"] == "1" else cfg["b_stride"]); q.extend([u // nu] * len(sub))
        if "A" in kinds:
            A("s_add_u32 s%d, s%d, 1\ns_cmp_lg_u32 s%d, %d\ns_cbranch_scc1 %s_w%d", c, c, c, nslot, tag, issue.n)
            A("s_mov_b32 s%d, 0", c)
            for kind, r, sub in g: A("s_sub_u32 s%d, s%d, %d", r + 1, r + 1, nslot * (18432 if kind == "A" else cfg["slotB"]))
            A("%s_w%d:", tag, issue.n); issue.n += 1
    issue.n = 0
    def allowed(i):
        last = max([k for k, s in enumerate(q) if s <= i], default=-1)
        return len(q) - 1 - last
    total = nstage * nu
    if gate:
        for u in range(lead): issue(u, "B")
        gate()
        for u in range(lead): issue(u, "A")
    else:
        for u in range(lead): issue(u)
    hook = cfg.get("hook")
    if hook: hook(True)
    stamp(A, cfg["stamp"])
    issued, i = lead, 0
    def step(i):
        A("s_waitcnt vmcnt(%d)\ns_barrier", allowed(i))
    npeel = (lead + nu - 1) // nu - 1 if gate else 0
    for i in range(npeel):
        step(i)
        for k in range(nu): issue(issued); issued += 1
        if hook: hook(False)
    nloop = (total - issued) // nu
    A("s_mov_b32 s26, 0\n%s_loop:", tag)
    step(npeel)
    for k in range(nu): issue(issued + k)
    if hook: hook(False)
    A("s_add_u32 s26, s26, 1\ns_cmp_lt_u32 s26, %d\ns_cbranch_scc1 %s_loop", nloop, tag)
    w0 = allowed(npeel + 1)
    for it in range(1, nloop):
        for k in range(nu):
            u = issued + it * nu + k
            q.extend([u // nu] * sum(len(sub) for _, _, sub in st[u % nu][0]))
    issued += nloop * nu
    for i in range(npeel + nloop, nstage):
        step(i)
        while issued < total:
            issue(issued); issued += 1

def modadd(A, d, s, k, m):
    A("s_add_u32 s%d, s%d, %d\ns_cmp_ge_u32 s%d, %d\ns_cselect_b32 s25, %d, 0\ns_sub_u32 s%d, s%d, s25", d, s, k, d, m, m, d, d)

def loaders(A, tag, nstage, nslot, cfg, plan, after, gate=None):
    for k in range(1, 6): modadd(A, 30 + k, 30, k, 6)
    for k in range(1, 4): modadd(A, 35 + k, 29, k, 4)
    a = lambda k, *sub: ("A", 30 + k) + sub
    b = lambda k, *sub: ("B", 35 + k if k else 29) + sub
    A("s_setprio %s", OPT["lprio"])
    for w in (5, 6, 7): A("s_cmp_eq_u32 s10, %d\ns_cbranch_scc1 %s_%d", w, tag, w)
    for w, (units, lead) in zip((4, 5, 6, 7), plan(a, b)):
        if w > 4: A("%s_%d:", tag, w)
        c = dict(cfg, hook=(lambda first, w=w: cfg["touch"](w, first)) if cfg.get("touch") else None)
        loader(A, "%s%d" % (tag, w), nstage, nslot, units, lead, c, (lambda w=w: gate(w)) if gate else None)
        after(w)

def consumer(A, tag, nstage, nslot, reads, mfmas, pattern, stamps, extra=None):
    rem = nstage % nslot
    def half(pend, mf, rd, emit):
        rd = list(rd)
        for i, m in enumerate(mf):
            use = I(m).srcab
            pend[:] = [(w, age + 1) for w, age in pend]
            last = max([k for k, (w, _) in enumerate(pend) if w & use], default=-1)
            if last >= 0:
                last = max([last] + [k for k, (_, age) in enumerate(pend) if age >= int(OPT["age"])])
                n = min(15, len(pend) - 1 - last)
                if emit: A("s_waitcnt lgkmcnt(%d)", n)
                del pend[:len(pend) - n]
            if emit: A(m)
            for _ in range(pattern[i] if i < len(pattern) else 0):
                if rd:
                    x = rd.pop(0); pend.append((I(x).w, 0))
                    if emit: A(x)
        for x in rd:
            pend.append((I(x).w, 0))
            if emit: A(x)
    pend = []
    half(pend, mfmas(0), reads(0, 1, 1), False)
    A("s_mov_b32 s26, 0\n.p2align 6\n%s_loop:", tag)
    for slot in range(nslot):
        p = list(pend)
        A("s_barrier")
        if slot == 0 and OPT["stamp"] == "1":
            A("s_cmp_lg_u32 s26, 0\ns_cbranch_scc1 %s_ns", tag); stamp(A, stamps[0]); A("s_waitcnt lgkmcnt(0)\n%s_ns:", tag)
        half(p, mfmas(1), reads(slot, 0, 0), True)
        if extra: extra(slot, 0)
        half(p, mfmas(0), reads(slot, 1, 1), True)
        if extra: extra(slot, 1)
        if slot == (rem - 1) % nslot:
            A("s_add_u32 s26, s26, 1\ns_cmp_eq_u32 s26, %d\ns_cbranch_scc1 %s_done", (nstage + nslot - 1) // nslot, tag)
    A("s_branch %s_loop\n%s_done:", tag, tag)
    half(list(pend), mfmas(1), [], True)
    stamp(A, stamps[1])

def pat(s): return [int(c) for c in s]

def poll(A, tag, so, target, va=70):
    A("v_mov_b32 v%d, s%d\ns_mov_b64 exec, 1\ns_mov_b32 s24, 0\n%s_p:", va, so, tag)
    A("buffer_load_dword v%d, v%d, s[4:7], 0 offen sc1\ns_add_u32 s24, s24, 1\ns_waitcnt vmcnt(0)\nv_readfirstlane_b32 s25, v%d", va + 1, va, va + 1)
    A("s_cmp_ge_u32 s24, 0x40000\ns_cbranch_scc1 %s_g\ns_cmp_ge_u32 s25, %d\ns_cbranch_scc1 %s_g\ns_sleep %s\ns_branch %s_p\n%s_g:\ns_mov_b64 exec, -1", tag, target, tag, OPT["psleep"], tag, tag)

def poll_all(A, tag, n, base, target, rs=4, va=70):
    A("v_and_b32 v%d, %d, v1\nv_lshlrev_b32 v%d, 7, v%d\nv_add_u32 v%d, %d, v%d\ns_mov_b32 s24, 0\n%s_p:", va, n - 1, va, va, va, base, va, tag)
    A("buffer_load_dword v%d, v%d, s[%d:%d], 0 offen sc1\ns_add_u32 s24, s24, 1\ns_waitcnt vmcnt(0)\nv_cmp_gt_u32 vcc, %d, v%d", va + 1, va, rs, rs + 3, target, va + 1)
    A("s_cmp_ge_u32 s24, 0x40000\ns_cbranch_scc1 %s_g\ns_cmp_lg_u64 vcc, 0\ns_cbranch_scc1 %s_p\n%s_g:", tag, tag, tag)

def wait_ln(A, tag):
    A("s_and_b32 s24, s2, %d\ns_lshl_b32 s24, s24, 7\ns_add_u32 s62, s24, %d", int(OPT["nrep"]) - 1, F_REL)
    poll(A, tag, 62, 8)

def arrive(A, so, va=70):
    A("v_mov_b32 v%d, s%d\nv_mov_b32 v%d, 1\ns_mov_b64 exec, 1\nbuffer_atomic_add v%d, v%d, s[4:7], 0 offen sc1\ns_mov_b64 exec, -1", va, so, va + 1, va + 1, va)


def gemm1(A):
    ln_phase(A)
    A("s_mul_i32 s28, s3, 6\ns_lshr_b32 s30, s11, 2\ns_add_u32 s28, s28, s30\ns_and_b32 s29, s11, 3")
    A("s_lshr_b32 s23, s3, 1\ns_lshl_b32 s23, s23, 2\ns_add_u32 s23, s23, s29\ns_lshl_b32 s23, s23, 7\ns_add_u32 s23, s23, %d", F_H)
    A("s_cmp_ge_u32 s10, 4\ns_cbranch_scc0 g1_cons")
    NS, SB, BB = 5, 12288, 5 * 18432
    A("v_lshlrev_b32 v2, 4, v1")
    for i in range(3):
        A("v_add_u32 v6, %d, v1\nv_mul_u32_u24 v7, 5462, v6\nv_lshrrev_b32 v7, 16, v7\nv_mul_u32_u24 v8, 12, v7\nv_sub_u32 v6, v6, v8", 64 * i)
        A("v_lshrrev_b32 v8, 2, v7\nv_and_b32 v8, 2, v8\nv_xor_b32 v6, v6, v8\nv_mul_u32_u24 v7, 9216, v7\nv_lshl_add_u32 v6, v6, 4, v7\nv_subrev_u32 v%d, %d, v6", 3 + i, 1024 * i)
    A("s_mul_i32 s20, s29, 589824\ns_mul_i32 s21, s28, 192")
    srd(A, 12, P_WS, SZ, WS_HT); srd(A, 16, P_W1, SZ_W); srd(A, 4, P_DBG, 256)
    A("v_readfirstlane_b32 s25, v125\ns_cmp_lg_u32 s25, 0\ns_cbranch_scc1 g1_ng\ns_cmp_lg_u32 s10, 4\ns_cbranch_scc1 g1_ng")
    poll_all(A, "g1go", 1, 0, 1)
    A("g1_ng:")
    srd(A, 4, P_WS, SZ_F, WS_F)
    A("s_lshl_b32 s22, s3, 7\ns_add_u32 s22, s22, %d\ns_waitcnt vmcnt(9)\ns_barrier", F_LN)
    def gate(w):
        if w == 4:
            stamp(A, 7)
            A("v_mov_b32 v70, s22\nv_mov_b32 v71, 1\ns_mov_b64 exec, 1\nbuffer_atomic_add v71, v70, s[4:7], 0 offen sc0 sc1\ns_mov_b64 exec, -1")
            A("v_lshlrev_b32 v72, 7, v1\nv_add_u32 v72, %d, v72\nv_mov_b32 v73, 1\ns_waitcnt vmcnt(0)\nv_readfirstlane_b32 s25, v71", F_REL)
            stamp(A, 3)
            A("s_cmp_lg_u32 s25, 23\ns_cbranch_scc1 g1_nl\ns_mov_b64 exec, 0x%x\nbuffer_atomic_add v73, v72, s[4:7], 0 offen sc1\ns_mov_b64 exec, -1\ng1_nl:", (1 << int(OPT["nrep"])) - 1)
            wait_ln(A, "g1ln")
            stamp(A, 2)
        n = int(OPT["gpf"])
        if w in (5, 6) and n:
            A("v_lshrrev_b32 v20, 3, v1\nv_and_b32 v21, 7, v1\nv_mul_u32_u24 v22, 9216, v20\nv_lshl_add_u32 v22, v21, 7, v22")
            A("s_lshl_b32 s24, s11, 1\ns_add_u32 s24, s24, %d\ns_mul_i32 s24, s24, %d\ns_mul_i32 s25, s3, 1152\ns_add_u32 s24, s24, s25", w - 5, 8 * 9216)
            for i in range(n): A("buffer_load_dword v23, v22, s[16:19], s24 offen\ns_add_u32 s24, s24, %d", 48 * 8 * 9216)
            if w == 5:
                A("v_mul_u32_u24 v22, 9216, v1\nv_add_u32 v22, 1024, v22\ns_mul_i32 s24, s11, %d\ns_add_u32 s24, s24, s25\ns_cmp_ge_u32 s11, %d\ns_cbranch_scc1 g1_n9", 64 * 9216, 6 * n)
                A("buffer_load_dword v23, v22, s[16:19], s24 offen\ng1_n9:")
        A("s_barrier")
    lam = int(OPT["lam1"])
    if OPT["s1"] == "1":
        plan = lambda a, b: [([[a(1)], [a(2)]], lam), ([[a(3)], [a(4)]], lam), ([[a(0), b(0)]], NS - 2), ([[a(5), b(1)], [b(2), b(3)]], lam)]
    elif OPT["s1"] == "2":
        plan = lambda a, b: [([[a(1), b(0, [0])], [a(2), b(0, [1, 2])]], lam), ([[a(3), b(1, [0])], [a(4), b(1, [1, 2])]], lam), ([[a(0)]], NS - 2), ([[a(5), b(2, [0, 1])], [b(2, [2]), b(3)]], lam)]
    elif OPT["dist"] == "1":
        plan = lambda a, b: [([[a(0), a(1)], [a(2), a(3)]], lam), ([[a(4), b(0)], [b(1), b(2)]], lam), ([[a(5)], [b(3)]], lam), ([[], []], lam)]
    elif OPT["dist"] == "2":
        plan = lambda a, b: [([[a(0), b(0)], [a(1)]], lam), ([[a(2)], [a(3), b(1)]], lam), ([[a(4)], [a(5)]], lam), ([[b(2)], [b(3)]], lam)]
    elif OPT["dist"] == "4":
        plan = lambda a, b: [([[a(0), b(0, [0])], [a(1)]], lam), ([[a(2)], [a(3), b(0, [1])]], lam), ([[a(4), b(0, [2])], [a(5)]], lam), ([[b(1), b(2, [0, 1])], [b(2, [2]), b(3)]], lam)]
    elif OPT["dist"] == "5":
        plan = lambda a, b: [([[a(0), b(0, [0])], [a(1, [0]), b(1)]], lam), ([[a(2), b(0, [1])], [a(1, [1]), b(2)]], lam),
                             ([[a(3), b(0, [2])], [a(4)]], lam), ([[a(5)], [a(1, [2]), b(3)]], lam)]
    elif OPT["dist"] == "3":
        plan = lambda a, b: [([[a(0)], []], lam), ([[], [a(1)]], lam), ([[a(2)], [a(3)]], lam), ([[a(4), b(0), b(1)], [a(5), b(2), b(3)]], lam)]
    else:
        plan = lambda a, b: [([[a(0)], [a(1)]], lam), ([[a(2)], [a(3)]], lam), ([[a(4)], [a(5)]], lam), ([[b(0), b(1)], [b(2), b(3)]], lam)]
    def touch(w, first):
        if w == 7 or OPT["ht"] != "1": return
        ld = "buffer_load_dword v23, v24, s[12:15], s39 offen %s" % OPT["af1"]
        if first:
            A("v_min_u32 v24, 47, v1\nv_lshlrev_b32 v24, 7, v24\ns_and_b32 s39, s30, 1\ns_add_u32 s39, s39, 2\ns_mul_i32 s39, s39, 18432\ns_add_u32 s39, s39, s20\ns_add_u32 s39, s39, %d", 6144 * (w - 4))
            A(ld)
            A("s_add_u32 s39, s30, %s\ns_mul_i32 s39, s39, 18432\ns_add_u32 s39, s39, s20\ns_add_u32 s39, s39, %d\ns_mov_b32 s27, 0", OPT["htl"], 6144 * (w - 4))
            A(ld)
        else:
            touch.n += 1
            A("s_add_u32 s27, s27, 1\ns_cmp_lg_u32 s27, 7\ns_cbranch_scc1 g1t_%d\ns_mov_b32 s27, 1\ns_add_u32 s39, s39, %d", touch.n, 6 * 18432)
            A(ld)
            A("g1t_%d:", touch.n)
    touch.n = 0
    loaders(A, "g1l", 32, NS, dict(touch=touch, vb=(3, 4, 5), bg_g=16 * 9216, bg_l=3072, baseB=BB, slotB=SB, b_stride=64 * 9216, aflag=OPT["af1"] + " " + OPT["nt1"], bflag=OPT["nt1"], stamp=1), plan,
            lambda w: A("s_branch g2_load"), gate)
    A("g1_cons:")
    ACC, FX, FY, VB, BI = 16, 72, 108, 6, 152
    A("v_lshrrev_b32 v144, 4, v1\nv_and_b32 v145, 15, v1")
    A("v_mul_u32_u24 v146, 2304, v144\nv_lshl_add_u32 v146, v145, 4, v146")
    A("s_lshl_b32 s25, s10, 9\nv_add_u32 v192, s25, v146\nv_add_u32 v3, 2048, v146\nv_add_u32 v4, %d, v192\nv_add_u32 v5, %d, v3", 3 * 18432, 3 * 18432)
    A("v_bfe_u32 v147, v1, 2, 2\nv_lshl_add_u32 v147, v144, 3, v147\nv_mul_u32_u24 v147, 192, v147\nv_and_b32 v148, 3, v1\nv_lshl_add_u32 v147, v148, 3, v147")
    A("v_add_u32 v147, %d, v147\nv_and_b32 v148, 1, v144\nv_lshlrev_b32 v148, 5, v148\nv_xor_b32 v149, 32, v148\nv_add_u32 v148, v148, v147\nv_add_u32 v149, v149, v147", BB)
    A("s_mul_i32 s27, s29, %d\ns_mul_i32 s25, s28, %d\ns_add_u32 s27, s27, s25\nv_lshlrev_b32 v150, 3, v144\ns_mul_i32 s30, s28, 192", 576 * 2304, 12 * 2304)
    A("s_waitcnt vmcnt(9)\ns_barrier")
    stamp(A, 7)
    A("v_mov_b32 v2, v192")
    for r in range(ACC, ACC + 56): A("v_mov_b32 v%d, 0", r)
    for r in range(FY, FY + 36): A("v_mov_b32 v%d, 0", r)
    srd(A, 12, P_B1, 9216); srd(A, 16, P_WS, SZ_H, WS_H)
    for u in range(3):
        modadd(A, 31, 10, u, 3)
        A("s_lshl_b32 s25, s31, 6\nv_add_u32 v%d, s25, v148\nv_add_u32 v%d, s25, v149\ns_add_u32 s25, s25, s30", VB + 2 * u, VB + 2 * u + 1)
        A("buffer_load_dwordx2 %s, v150, s[12:15], s25 offen\nbuffer_load_dwordx2 %s, v150, s[12:15], s25 offen offset:32", vr(BI + 4 * u, 2), vr(BI + 4 * u + 2, 2))
        A("s_mul_i32 s31, s31, %d\ns_add_u32 s%d, s31, s27", 4 * 2304, 32 + u)
    acc = lambda t, n: ACC + 4 * (6 * t + n) if t < 2 else ACC + 48 + 4 * n
    def mk(nt):
        def reads(slot, ks, st):
            F = FY if st else FX
            o = (slot % 3 if slot >= 3 else slot) * 18432 + ks * 9216
            va = 4 if slot >= 3 else 2
            a = [["ds_read_b128 %s, v%d offset:%d" % (vr(F + 24 + 4 * t, 4), va + (t == 2), o + (256 if t == 1 else 0))] if t < nt else [] for t in range(3)]
            b = [["ds_read_b64_tr_b16 %s, v%d offset:%d" % (vr(F + 4 * n + 2 * h, 2), VB + n, slot * SB + ks * 6144 + h * 768) for h in range(2)] for n in range(6)]
            if OPT["rord"] == "1": return a[0] + b[0] + b[1] + a[1] + b[2] + b[3] + a[2] + b[4] + b[5]
            return a[0] + b[0] + b[1] + b[2] + b[3] + b[4] + b[5] + a[1] + a[2]
        def mfmas(st):
            F = FY if st else FX
            order = [(0, n) for n in range(6)] + [(1, n) for n in range(6)] + ([(2, 0), (2, 1)] if nt == 3 else [])
            return ["v_mfma_f32_16x16x32_bf16 %s, %s, %s, %s" % (vr(acc(t, n), 4), vr(F + 4 * n, 4), vr(F + 24 + 4 * t, 4), vr(acc(t, n), 4)) for t, n in order]
        return reads, mfmas
    if OPT["prio"] != "0": A("s_setprio %s", OPT["prio"])
    A("s_waitcnt lgkmcnt(0)\ns_barrier\ns_cmp_eq_u32 s10, %s\ns_cbranch_scc1 g1_c3", OPT["c3"])
    consumer(A, "g1c", 32, NS, *mk(3), pat(OPT["gap1"]), (1, 2))
    A("s_branch g1_epi\ng1_c3:")
    ex = None
    if OPT["ht"] == "2":
        srd(A, 36, P_WS, SZ, WS_HT)
        ld = lambda k: A("buffer_load_dword v151, v193, s[36:39], s40 offen offset:%d %s", 0, OPT["af1"])
        A("v_min_u32 v193, 47, v1\nv_lshlrev_b32 v193, 7, v193\ns_lshr_b32 s41, s11, 2\ns_mul_i32 s42, s29, 589824")
        A("s_and_b32 s40, s41, 1\ns_add_u32 s40, s40, 2\ns_mul_i32 s40, s40, 18432\ns_add_u32 s40, s40, s42")
        for k in range(3): ld(k); A("s_add_u32 s40, s40, 6144")
        A("s_min_u32 s40, s41, 4\ns_add_u32 s40, s40, %s\ns_mul_i32 s40, s40, 18432\ns_add_u32 s40, s40, s42", OPT["htl"])
        def ex(slot, h):
            k = 2 * slot + h
            if OPT["htb"] == "1":
                if k == 0:
                    for i in range(3): ld(i); A("s_add_u32 s40, s40, %d", 6144 if i < 2 else 5 * 18432 - 12288)
            elif k < 3: ld(k); A("s_add_u32 s40, s40, %d", 6144 if k < 2 else 5 * 18432 - 12288)
    consumer(A, "g1d", 32, NS, *mk(2), pat("221111111111"), (1, 2), ex)
    A("g1_epi:\ns_barrier")
    c0 = -2 * math.sqrt(2 / math.pi) * 1.4426950408889634
    A("v_mov_b32 v4, %s\nv_mov_b32 v5, %s\nv_mov_b32 v6, %s\nv_mov_b32 v7, %s\nv_mov_b32 v8, 1.0\nv_mov_b32 v9, 1.0", hx(c0), hx(c0), hx(c0 * 0.044715), hx(c0 * 0.044715))
    A("s_waitcnt vmcnt(0)")
    BF = 168
    for i in range(12): unpack(A, BF + 2 * i, BF + 2 * i + 1, BI + i)
    units = [(t, u) for t in range(2) for u in range(3)] + [(2, 0)]
    for k, (t, u) in enumerate(units):
        a = acc(t, 2 * u); T = FX + 8 * (k & 1); O = FY + 4 * k
        if t == 2: A("s_cmp_eq_u32 s10, 3\ns_cbranch_scc1 g2_cons")
        for i in range(4): A("v_pk_add_f32 %s, %s, %s", vr(a + 2 * i, 2), vr(a + 2 * i, 2), vr(BF + 8 * u + 2 * i, 2))
        for i in range(4): A("v_pk_mul_f32 %s, %s, %s", vr(T + 2 * i, 2), vr(a + 2 * i, 2), vr(a + 2 * i, 2))
        for i in range(4): A("v_pk_fma_f32 %s, %s, v[6:7], v[4:5]", vr(T + 2 * i, 2), vr(T + 2 * i, 2))
        for i in range(4): A("v_pk_mul_f32 %s, %s, %s", vr(T + 2 * i, 2), vr(T + 2 * i, 2), vr(a + 2 * i, 2))
        for i in range(8): A("v_exp_f32 v%d, v%d", T + i, T + i)
        for i in range(4): A("v_pk_add_f32 %s, %s, v[8:9]", vr(T + 2 * i, 2), vr(T + 2 * i, 2))
        for i in range(8): A("v_rcp_f32 v%d, v%d", T + i, T + i)
        for i in range(4): A("v_pk_mul_f32 %s, %s, %s", vr(T + 2 * i, 2), vr(T + 2 * i, 2), vr(a + 2 * i, 2))
        for i in range(4): A("v_cvt_pk_bf16_f32 v%d, v%d, v%d", O + i, T + 2 * i, T + 2 * i + 1)
        if t < 2: A("buffer_store_dwordx4 %s, v2, s[16:19], s%d offen offset:%d sc1", vr(O, 4), 32 + u, 256 * t)
        else: A("buffer_store_dwordx4 %s, v3, s[16:19], s32 offen sc1", vr(O, 4))
    A("s_branch g2_cons")

CSLOT = 8768
def conv(A):
    A("s_lshl_b32 s22, s3, 3\ns_add_u32 s22, s22, s11\ns_sub_u32 s22, s22, 24")
    A("s_mov_b32 s23, 0")
    LF = 9 * CSLOT + 7 * 32 * KRS
    A("v_mov_b32 v190, %d\nv_mov_b32 v191, 0\nds_write_b32 v190, v191\ns_waitcnt lgkmcnt(0)\ns_barrier", LF)
    A("s_cmp_eq_u32 s10, 7\ns_cbranch_scc1 cv_agent")
    A("s_load_dwordx8 s[52:59], s[0:1], %d\ns_load_dwordx2 s[60:61], s[0:1], %d", ARG["loga"], ARG["logdt"])
    A("s_lshl_b32 s42, s22, 3\ns_add_u32 s42, s42, s10\ns_mul_i32 s43, s10, %d\ns_mov_b32 s46, s22\ns_mov_b32 s47, s23", CSLOT)
    A("s_mov_b32 s41, 1\ns_lshr_b32 s25, s10, 1\ns_cmp_eq_u32 s25, 1\ns_cselect_b32 s41, 2, 1\ns_mov_b32 s40, 0")
    A("s_cbranch_scc0 cv_p\ns_setprio 1\ncv_p:\ns_waitcnt lgkmcnt(0)")
    for i in range(4): srd(A, 20 + 4 * i, 52 + 2 * i, 147456)
    srd(A, 36, 60, 1152)
    A("s_add_u32 s44, s42, 5\ns_add_u32 s45, s46, 512\ns_cmp_eq_u32 s10, 3\ns_cselect_b32 s44, s45, s44")
    for ch, r in ((42, 176), (44, 192)):
        A("s_lshl_b32 s3, s%d, 8\nv_lshlrev_b32 v2, 1, v1\nv_add_u32 v2, s3, v2", ch)
        kgen_params(A, ch, r)
        A("v_add_u32 v2, 128, v2")
        kgen_params(A, ch, r + 5)
        if ch == 42: A("s_cmp_eq_u32 s41, 1\ns_cbranch_scc1 cv_k")
    A("cv_k:")
    A("v_lshlrev_b32 v10, 3, v1\nv_add_u32 v10, s43, v10\nv_mov_b32 v12, 0\nv_mov_b32 v13, 0\nds_write_b64 v10, v[12:13]")
    A("v_and_b32 v10, 7, v1\nv_lshlrev_b32 v10, 3, v10\nv_add_u32 v10, s43, v10\nds_write_b64 v10, v[12:13] offset:4608")
    A("s_mul_i32 s3, s10, %d\ns_add_u32 s3, s3, %d", 32 * KRS, 9 * CSLOT)
    kgen_addr(A, 3)
    A("s_waitcnt vmcnt(0)")
    for i in range(5): A("v_mov_b32 v%d, v%d", 4 + i, 176 + i)
    kgen_half(A, True)
    for i in range(5): A("v_mov_b32 v%d, v%d", 4 + i, 181 + i)
    kgen_half(A, False)
    A("s_add_u32 s3, s43, %d", 4608 + 64)
    kgen_expand(A, 3, lambda r, n, va, off: A("ds_write_b%d v%d, %s offset:%d", 32 * n, va, vr(r, n), off))
    nxt = "s_add_u32 s%d, s%d, 5\ns_add_u32 s25, s46, 512\ns_cmp_eq_u32 s10, 3\ns_cselect_b32 s%d, s25, s%d\ns_add_u32 s%d, s%d, %d"
    A("s_add_u32 s40, s40, 1\ns_cmp_eq_u32 s40, s41\ns_cbranch_scc1 cv_kd")
    for i in range(10): A("v_mov_b32 v%d, v%d", 176 + i, 192 + i)
    A("s_add_u32 s43, s43, %d", 5 * CSLOT)
    A("s_branch cv_k\ncv_kd:\ns_lshl_b32 s28, s46, 3\ns_add_u32 s28, s28, s10\ns_mul_i32 s29, s10, %d\ns_mov_b32 s43, s29\ns_mov_b32 s23, s47", CSLOT)
    stamp(A, 7)
    A("s_cmp_lg_u32 s10, 4\ns_cbranch_scc1 cv_nw")
    srd(A, 4, P_DBG, 256)
    poll_all(A, "cvgo", 1, 0, 1)
    srd(A, 4, P_WS, SZ_F, WS_F)
    wait_ln(A, "cvln")
    A("v_mov_b32 v191, 1\nds_write_b32 v190, v191\ncv_nw:")
    A("s_mov_b32 s24, 0\ncv_w:\nds_read_b32 v191, v190\ns_add_u32 s24, s24, 1\ns_waitcnt lgkmcnt(0)\nv_readfirstlane_b32 s25, v191")
    A("s_cmp_ge_u32 s24, 0x400000\ns_cbranch_scc1 cv_wd\ns_cmp_lg_u32 s25, 0\ns_cbranch_scc1 cv_wd\ns_sleep 2\ns_branch cv_w\ncv_wd:")
    srd(A, 12, P_WS, SZ, WS_XT); srd(A, 48, P_WS, SZ, WS_YC)
    A("v_lshrrev_b32 v3, 3, v1\nv_and_b32 v3, 2, v3\nv_xor_b32 v3, v3, v1\nv_lshlrev_b32 v4, 10, v3\nv_lshlrev_b32 v3, 7, v3")
    A("s_lshl_b32 s25, s46, 15\ns_lshl_b32 s3, s10, 4\ns_add_u32 s25, s25, s3\ns_add_u32 s3, s43, 512")
    def fetch(v, base, step, slot):
        for i in range(4): A("s_add_u32 m0, s3, %d\ns_add_u32 s24, s25, %d\nbuffer_load_dwordx4 v%d, s[12:15], s24 offen lds", 1024 * i + slot, step * i + base, v)
    fetch(3, 0, 8192, 0)
    A("s_cmp_eq_u32 s41, 1\ns_cbranch_scc1 cv_ch\ns_cmp_eq_u32 s10, 3\ns_cbranch_scc1 cv_f9")
    fetch(3, 80, 8192, 5 * CSLOT)
    A("s_branch cv_ch\ncv_f9:\ns_lshl_b32 s25, s46, 4")
    fetch(4, 1 << 21, 65536, 5 * CSLOT)
    VU, VK, U, KF, ACC = 4, 12, 16, 48, 80
    A("cv_ch:")
    if OPT["noconv"] == "1": A("s_branch cv_done")
    A("s_mov_b32 s34, 0\ns_mov_b32 s35, 0x80000000")
    A("v_lshrrev_b32 v13, 4, v1\nv_and_b32 v14, 3, v1\nv_bfe_u32 v15, v1, 2, 2")
    A("v_and_b32 v16, 1, v13\nv_lshrrev_b32 v17, 1, v13")
    A("v_lshlrev_b32 v18, 5, v16\nv_lshl_add_u32 v18, v14, 3, v18\nv_lshl_add_u32 v18, v17, 6, v18\nv_lshl_add_u32 v18, v15, 3, v18")
    A("v_add_u32 v18, %d, v18\nv_add_u32 v%d, s29, v18", 4608 + 8, VK)
    A("v_lshl_add_u32 v18, v16, 2, v14\nv_sub_u32 v18, v18, v17\nv_lshlrev_b32 v18, 1, v18")
    A("v_sub_u32 v19, 3, v15\nv_lshlrev_b32 v19, 3, v19\nv_add_u32 v19, s29, v19")
    for km in range(4):
        for sec in range(2):
            A("v_add_u32 v20, %d, v18\nv_bfe_u32 v21, v20, 3, 1\nv_xor_b32 v20, v20, v21\nv_lshl_add_u32 v%d, v20, 5, v19", 17 - 4 * km - sec, VU + 2 * km + sec)
    rdU = lambda km, d: ["ds_read_b64_tr_b16 %s, v%d offset:%d" % (vr(U + 4 * d + 2 * s, 2), VU + 2 * km + s, 512 * d) for s in range(2)]
    rdK = lambda km, k: ["ds_read_b64_tr_b16 %s, v%d offset:%d" % (vr(KF + 4 * k + 2 * s, 2), VK, 512 * k + 128 * km + 32 * s) for s in range(2)]
    A("s_waitcnt vmcnt(0) lgkmcnt(0)")
    if OPT["stamp"] == "1": stamp(A, 1); A("s_waitcnt lgkmcnt(0)")
    pend = []
    def issue(key, ins):
        for x in ins: A(x); pend.append(key)
    def wait(keys):
        last = max([i for i, k in enumerate(pend) if k in keys], default=-1)
        if last >= 0:
            n = min(15, len(pend) - 1 - last)
            A("s_waitcnt lgkmcnt(%d)", n)
            del pend[:len(pend) - n]
    for i in range(8):
        issue(("K", 7 - i), rdK(0, 7 - i)); issue(("U", i), rdU(0, i))
    for km in range(4):
        for k in range(7, -1, -1):
            for d in range(8 - k):
                wait({("K", k), ("U", d)})
                a = vr(ACC + 16 * (k + d), 16)
                A("v_mfma_f32_32x32x16_bf16 %s, %s, %s, %s", a, vr(U + 4 * d, 4), vr(KF + 4 * k, 4), "0" if km == 0 and d == 0 else a)
                if km < 3 and k == 0: issue(("U", d), rdU(km + 1, d))
            if km < 3: issue(("K", k), rdK(km + 1, k))
    Zr = lambda G, s: ACC + 4 * G + s
    A("v_mov_b32 v16, 0")
    for s in (3, 2, 1):
        for G in range(31, -1, -1): A("v_cndmask_b32 v%d, v%d, v%d, s[34:35]", Zr(G, s), Zr(G, s), Zr(G - 1, s) if G else 16)
        for G in range(31, -1, -1): A("v_add_f32_dpp v%d, v%d, v%d wave_ror:1 row_mask:0xf bank_mask:0xf", Zr(G, s - 1), Zr(G, s), Zr(G, s - 1))
    A("v_lshlrev_b32 v17, 2, v1\ns_lshl_b32 s25, s28, 12")
    for p in range(15, -1, -1):
        A("v_cvt_pk_bf16_f32 v%d, v%d, v%d\nbuffer_store_dword v%d, v17, s[48:51], s25 offen offset:%d sc1", U + 4 + p, Zr(2 * p, 0), Zr(2 * p + 1, 0), U + 4 + p, 256 * p)
    A("s_sub_u32 s41, s41, 1\ns_cmp_eq_u32 s41, 0\ns_cbranch_scc1 cv_done")
    A(nxt, 28, 28, 28, 28, 29, 29, 5 * CSLOT)
    A("s_branch cv_ch")
    A("cv_agent:")
    dep = int(OPT["adepth"])
    A("s_sub_u32 s11, s11, 24\ns_waitcnt lgkmcnt(0)")
    srd(A, 12, P_W1, SZ_W); srd(A, 16, P_W2, SZ_W); srd(A, 4, P_WS, SZ_F, WS_F)
    A("s_cmp_lg_u32 s2, 255\ns_cbranch_scc1 ag_nz\nv_lshlrev_b32 v4, 7, v1\nv_mov_b32 v5, 0")
    for i in range(6): A("buffer_store_dword v5, v4, s[4:7], 0 offen sc1\nv_add_u32 v4, 8192, v4")
    srd(A, 40, P_DBG, 256)
    A("v_mov_b32 v6, 1\ns_waitcnt vmcnt(0)\ns_mov_b64 exec, 1\nbuffer_store_dword v6, v5, s[40:43], 0 offen sc1\ns_mov_b64 exec, -1\nag_nz:")
    if OPT["cpf"] == "1":
        A("s_getpc_b64 s[40:41]\nag_pc:\ns_sub_u32 s40, s40, ag_pc-%s\ns_subb_u32 s41, s41, 0", NAME + "_kernel")
        A("s_lshl_b32 s25, s11, 13\nv_lshl_add_u32 v4, v1, 7, s25\nv_min_u32 v4, k2_end-%s, v4", NAME + "_kernel")
        A("v_mov_b32 v7, s41\nv_add_co_u32 v6, vcc, s40, v4\nv_addc_co_u32 v7, vcc, 0, v7, vcc\nglobal_load_dword v20, v[6:7], off")
    A("s_setprio 3\nv_lshrrev_b32 v4, 3, v1\nv_and_b32 v5, 7, v1\nv_mul_u32_u24 v8, 9216, v4\nv_lshl_add_u32 v8, v5, 7, v8")
    A("v_lshl_add_u32 v9, v4, 6, v5\nv_mul_u32_u24 v9, 9216, v9\nv_add_u32 v9, 1024, v9")
    A("v_lshrrev_b32 v10, 4, v1\nv_lshlrev_b32 v10, 12, v10\nv_and_b32 v11, 15, v1\nv_lshl_add_u32 v10, v11, 7, v10")
    A("s_mul_i32 s56, s3, 1152\ns_mul_i32 s25, s11, %d\ns_add_u32 s56, s56, s25", 8 * 9216)
    A("s_lshr_b32 s58, s3, 1\ns_mul_i32 s58, s58, %d\ns_and_b32 s25, s3, 1\ns_lshl_b32 s25, s25, 11\ns_add_u32 s58, s58, s25\ns_lshl_b32 s25, s11, 14\ns_add_u32 s58, s58, s25", 1152 * 4096)
    A("v_lshlrev_b32 v12, 7, v1\nv_mul_u32_u24 v13, 18432, v4\nv_lshl_add_u32 v13, v5, 7, v13\nv_add_u32 v13, 8192, v13")
    A("s_lshr_b32 s57, s11, 1\ns_mul_i32 s57, s57, 589824\ns_and_b32 s25, s11, 1\ns_mul_i32 s25, s25, 9216\ns_add_u32 s57, s57, s25")
    srd(A, 36, P_WS, SZ, WS_HT)
    parts = OPT["sched"].split(",")
    seq = "".join(p if p == "S" else p[0] * int(p[1:]) for p in parts[:-1]) + parts[-1] * 80 + "hwv" * 40
    nw, nv, nh, n2 = 64 * int(OPT["gp0"]) // 9, 0, 0 if "h" in OPT["sched"] else 32, int(OPT["agw2"])
    w0 = nw
    A("s_add_u32 s56, s56, %d", nw * 64 * 9216)
    for c in seq:
        if c == "S":
            stamp(A, 7)
            srd(A, 40, P_DBG, 256)
            poll_all(A, "aggo", 1, 0, 1, 40)
            wait_ln(A, "agln")
            stamp(A, 1)
        if c == "w" and nw < 32:
            if (nw - w0) % 8 == 0: A("buffer_load_dword v20, v9, s[12:15], s56 offen\ns_waitcnt vmcnt(%d)", dep)
            A("buffer_load_dword v20, v8, s[12:15], s56 offen\ns_add_u32 s56, s56, %d\ns_waitcnt vmcnt(%d)", 64 * 9216, dep); nw += 1
            if nw == 32: stamp(A, 3)
        if c == "h" and nh < 32:
            if nh % 8 == 0: A("buffer_load_dword v20, v13, s[36:39], s57 offen %s\ns_waitcnt vmcnt(%d)", OPT["af1"], dep)
            A("buffer_load_dword v20, v12, s[36:39], s57 offen %s\ns_add_u32 s57, s57, 18432\ns_waitcnt vmcnt(%d)", OPT["af1"], dep); nh += 1
            if nh == 32: stamp(A, 5)
        if c == "v" and nv < n2:
            k = n2 - 1 - nv if OPT["w2rev"] == "1" else nv
            A("s_add_u32 s25, s58, %d\nbuffer_load_dword v20, v10, s[16:19], s25 offen\ns_waitcnt vmcnt(%d)", k * 8 * 16384, dep); nv += 1
    assert nw == 32 and nv == n2 and nh == 32
    A("cv_done:")
    stamp(A, 2)
    A("s_setprio 0\ns_cmp_ge_u32 s10, 4\ns_cbranch_scc1 g2_load\ns_barrier\ns_branch g2_cons")

def gemm2(A):
    NS, SB, BB = 4, 16384, 4 * 18432
    ids = "s_bfe_u32 s27, s2, 0x20001\ns_and_b32 s28, s2, 1\ns_lshl_b32 s28, s28, 3\ns_lshr_b32 s3, s2, 5\ns_add_u32 s28, s28, s3\ns_bfe_u32 s29, s2, 0x20003"
    A("g2_load:")
    A(ids)
    A("v_lshlrev_b32 v2, 4, v1\nv_lshrrev_b32 v7, 4, v1\nv_and_b32 v8, 15, v1")
    modadd(A, 30, 3, 0, 6)
    for i in range(4):
        A("v_add_u32 v9, %d, v7\nv_and_b32 v10, 7, v9\nv_lshlrev_b32 v10, 1, v10\nv_xor_b32 v10, v10, v8\nv_lshlrev_b32 v9, 12, v9\nv_lshl_add_u32 v9, v10, 4, v9\nv_subrev_u32 v%d, %d, v9", 4 * i, 3 + i, 1024 * i)
    A("s_mul_i32 s20, s29, %d\ns_mul_i32 s25, s27, %d\ns_add_u32 s20, s20, s25", 576 * 2304, 144 * 2304)
    A("s_mul_i32 s21, s27, %d\ns_lshl_b32 s25, s28, 8\ns_add_u32 s21, s21, s25", 1152 * 4096)
    srd(A, 12, P_WS, SZ_H, WS_H); srd(A, 16, P_W2, SZ_W); srd(A, 4, P_WS, SZ_F, WS_F)
    A("s_lshl_b32 s22, s27, 2\ns_add_u32 s22, s22, s29\ns_lshl_b32 s22, s22, 7\ns_add_u32 s22, s22, %d", F_H)
    A("s_waitcnt vmcnt(0)\ns_barrier")
    def gate(w):
        A("s_barrier")
        if w == 4:
            if OPT["st2"] == "1": stamp(A, 7)
            A("s_cmp_eq_u32 s23, 0\ns_cbranch_scc1 g2_c")
            arrive(A, 23)
            A("g2_c:")
            if OPT["st2"] == "1": A("s_waitcnt vmcnt(0)"); stamp(A, 1)
            poll(A, "g2h", 22, 12)
            if OPT["st2"] == "1": stamp(A, 2)
        A("s_barrier")
    lam = int(OPT["lam2"])
    if OPT["dist2"] == "0": plan = lambda a, b: [([[a(1)], [a(2), a(3)]], lam), ([[a(4), a(5)], [b(1)]], lam), ([[a(0), b(0)]], NS - 2), ([[b(2)], [b(3)]], lam)]
    elif OPT["dist2"] == "1": plan = lambda a, b: [([[a(1)], [a(2), a(3)]], lam), ([[a(4), a(5, [0, 1])], [b(1)]], lam), ([[a(0), b(0)]], NS - 2), ([[b(2), a(5, [2])], [b(3)]], lam)]
    else: plan = lambda a, b: [([[a(0), a(1, [0])], [b(0)]], lam), ([[a(2), a(1, [1, 2])], [b(1)]], lam), ([[a(3), a(4, [0])], [b(2)]], lam), ([[a(5), a(4, [1, 2])], [b(3)]], lam)]
    loaders(A, "g2l", 18, NS, dict(vb=(3, 4, 5, 6), bg_g=16 * 4096, bg_l=4096, baseB=BB, slotB=SB, b_stride=64 * 4096, aflag=OPT["af2"] + " " + OPT["nt2"], bflag=OPT["nt2"], stamp=4), plan,
            lambda w: A("s_branch g2_l0") if w == 4 else endpgm(A, 1), gate)
    A("g2_cons:")
    A(ids)
    ACC, FX, FY = 8, 80, 124
    A("v_lshrrev_b32 v6, 4, v1\nv_and_b32 v7, 15, v1\nv_mul_u32_u24 v76, 2304, v6\nv_lshl_add_u32 v76, v7, 4, v76\nv_add_u32 v77, %d, v76", 3 * 18432)
    A("v_lshrrev_b32 v6, 2, v1\nv_and_b32 v7, 7, v6\nv_lshlrev_b32 v6, 8, v6\nv_and_b32 v8, 3, v1\nv_lshl_add_u32 v6, v8, 3, v6\nv_add_u32 v6, %d, v6", BB)
    A("v_xor_b32 v7, s10, v7\nv_lshl_add_u32 v4, v7, 5, v6\nv_xor_b32 v7, 4, v7\nv_lshl_add_u32 v5, v7, 5, v6")
    A("s_waitcnt vmcnt(0)\ns_barrier")
    if OPT["lnst"] != "1": stamp(A, 3)
    A("v_mov_b32 v2, v76\nv_mov_b32 v3, v77")
    for r in range(ACC, ACC + 72): A("v_mov_b32 v%d, 0", r)
    for r in range(FY, FY + 44): A("v_mov_b32 v%d, 0", r)
    srd(A, 4, P_WS, SZ_F, WS_F); srd(A, 12, P_WS, SZ_P, WS_P)
    A("s_cmp_lg_u32 s10, 0\ns_cbranch_scc1 g2_na\ns_and_b32 s22, s2, 15\ns_lshl_b32 s22, s22, 7\ns_add_u32 s22, s22, %d", F_ALL)
    arrive(A, 22, 168)
    A("g2_na:\ns_waitcnt lgkmcnt(0)\ns_barrier")
    def reads(slot, ks, st):
        F = FY if st else FX
        o = (0 if slot == 3 else slot) * 18432 + ks * 9216
        a = ["ds_read_b128 %s, v%d offset:%d" % (vr(F + 8 + 4 * t, 4), 3 if slot == 3 else 2, o + 256 * t) for t in range(9)]
        b = ["ds_read_b64_tr_b16 %s, v%d offset:%d" % (vr(F + 4 * j + 2 * h, 2), 4 + j, slot * SB + ks * 8192 + h * 4096) for j in range(2) for h in range(2)]
        return b + a
    def mfmas(st):
        F = FY if st else FX
        return ["v_mfma_f32_16x16x32_bf16 %s, %s, %s, %s" % (vr(ACC + 8 * t + 4 * j, 4), vr(F + 8 + 4 * t, 4), vr(F + 4 * j, 4), vr(ACC + 8 * t + 4 * j, 4)) for t in range(9) for j in range(2)]
    consumer(A, "g2c", 18, NS, reads, mfmas, pat(OPT["gap2"]), (4, 5) if OPT["lnst"] != "1" else (6, 6))
    OWN = 2 * 18432
    A("s_lshl_b32 s33, s28, 2\ns_add_u32 s33, s33, s29\ns_lshl_b32 s33, s33, 2")
    A("v_lshlrev_b32 v2, 4, v1\ns_cmp_eq_u32 s10, s27\ns_cbranch_scc1 g2_own")
    A("s_add_u32 s22, s33, s10\ns_lshl_b32 s3, s22, 2\ns_add_u32 s3, s3, s27\ns_mul_i32 s3, s3, 9216\ns_lshl_b32 s22, s22, 7")
    for t in range(9):
        if t % 4 == 0 and t: A("s_add_u32 s3, s3, 4096")
        for i in range(4): A("v_cvt_pk_bf16_f32 v%d, v%d, v%d", FX + 4 * t + i, ACC + 8 * t + 2 * i, ACC + 8 * t + 2 * i + 1)
        A("buffer_store_dwordx4 %s, v2, s[12:15], s3 offen offset:%d sc1", vr(FX + 4 * t, 4), 1024 * (t % 4))
    A("s_waitcnt vmcnt(0)")
    if OPT["st2"] == "1": stamp(A, 7)
    arrive(A, 22)
    A("s_branch g2_fin\ng2_own:")
    for tl in range(18): A("ds_write_b128 v2, %s offset:%d", vr(ACC + 4 * tl, 4), OWN + 1024 * tl)
    A("s_branch g2_fin\ng2_l0:")
    A("s_lshl_b32 s33, s28, 2\ns_add_u32 s33, s33, s29\ns_lshl_b32 s33, s33, 2")
    srd(A, 12, P_WS, SZ_P, WS_P)
    poll_all(A, "g2y", 16, F_ALL, 16)
    A("g2_fin:")
    A("v_lshrrev_b32 v6, 4, v1\nv_and_b32 v7, 15, v1")
    A("s_lshl_b32 s3, s27, 4\nv_add_u32 v7, s3, v7")
    A("s_lshl_b32 s3, s28, 7\nv_add_u32 v8, s3, v7\nv_lshlrev_b32 v5, 1, v8\nv_mul_u32_u24 v3, 1152, v8")
    A("s_mul_i32 s30, s29, 144\ns_lshl_b32 s3, s10, 5\ns_add_u32 s30, s30, s3")
    A("s_add_u32 s22, s33, s27\ns_mul_i32 s31, s22, %d\ns_lshl_b32 s34, s10, 11\ns_add_u32 s31, s31, s34\ns_lshl_b32 s22, s22, 7", 4 * 9216)
    A("s_lshl_b32 s34, s10, 12\nv_add_u32 v9, s34, v2")
    for k in range(1, 4):
        A("s_add_u32 s3, s27, %d\ns_and_b32 s3, s3, 3\ns_mul_i32 s3, s3, 9216\ns_add_u32 s%d, s3, s31", k, 44 + k)
    srd(A, 16, P_WS, SZ, WS_BASE); srd(A, 52, P_WS, SZ, WS_YC); srd(A, 36, P_B2, 4096); srd(A, 40, P_OUT, SZ)
    A("s_mov_b32 s44, %d", 64 * 1152)
    def body(nt):
        nd = 4 * nt; P, R, Y, B, B2 = 32, 48, 12, 20, 28
        A("v_lshlrev_b32 v6, %d, v6\nv_add_u32 v6, s30, v6\nv_lshl_add_u32 v3, v6, 1, v3", 1 + nt)
        A("v_lshlrev_b32 v4, 12, v6\nv_lshl_add_u32 v4, v7, 2, v4\ns_lshl_b32 s3, s28, 8")
        w = "x4" if nt == 2 else "x2"
        A("s_waitcnt lgkmcnt(0)")
        A("buffer_load_dword%s %s, v3, s[16:19], 0 offen sc1\nbuffer_load_dword%s %s, v3, s[16:19], s44 offen sc1", w, vr(B, 2 * nt), w, vr(B + 4, 2 * nt))
        A("buffer_load_ushort v%d, v5, s[36:39], 0 offen\nbuffer_load_ushort v%d, v5, s[36:39], 0 offen offset:128", B2, B2 + 1)
        if nt == 1:
            if OPT["st2"] == "1": stamp(A, 3)
            poll(A, "g2x", 22, 3)
            if OPT["st2"] == "1": stamp(A, 5)
        A("s_barrier")
        if nt == 2 and OPT["st2"] == "1": stamp(A, 1); A("s_waitcnt lgkmcnt(0)")
        for q in range(3):
            for i in range(nt): A("buffer_load_dwordx4 %s, v2, s[12:15], s%d offen offset:%d sc1", vr(R + 8 * q + 4 * i, 4), 45 + q, 1024 * i)
        for e in range(nd):
            A("buffer_load_dword v%d, v4, s[52:55], s3 offen sc1\ns_add_u32 s3, s3, 4096", Y + e)
        for i in range(2 * nt): A("ds_read_b128 %s, v9 offset:%d", vr(P + 4 * i, 4), OWN + 1024 * i)
        A("s_waitcnt vmcnt(%d) lgkmcnt(0)", 3 * nt + nd)
        src = lambda j, e: P + 4 * (2 * (e >> 2) + j) + (e & 3)
        for j in range(2):
            A("v_lshlrev_b32 v%d, 16, v%d", B2 + j, B2 + j)
            for e in range(0, nd, 2):
                unpack(A, 10, 11, B + 4 * j + e // 2)
                A("v_pk_add_f32 %s, %s, v[10:11]\nv_pk_add_f32 %s, %s, %s op_sel:[0,%d] op_sel_hi:[1,%d]", vr(src(j, e), 2), vr(src(j, e), 2), vr(src(j, e), 2), vr(src(j, e), 2), vr(B2, 2), j, j)
        for q in range(3):
            A("s_waitcnt vmcnt(%d)", (2 - q) * nt + nd)
            for i in range(4 * nt):
                unpack(A, 10, 11, R + 8 * q + i)
                A("v_pk_add_f32 %s, %s, v[10:11]", vr(P + 2 * i, 2), vr(P + 2 * i, 2))
        A("s_waitcnt vmcnt(0)")
        if nt == 2 and OPT["st2"] == "1": stamp(A, 2)
        for e in range(nd):
            unpack(A, 10, 11, Y + e)
            A("v_add_f32 v%d, v%d, v10\nv_add_f32 v%d, v%d, v11", src(0, e), src(0, e), src(1, e), src(1, e))
        for j in range(2):
            for e in range(nd // 2): A("v_cvt_pk_bf16_f32 v%d, v%d, v%d", R + 4 * j + e, src(j, 2 * e), src(j, 2 * e) + 1)
            A("buffer_store_dword%s %s, v3, s[40:43], %s offen", w, vr(R + 4 * j, 2 * nt), "s44" if j else "0")
        endpgm(A, 1)
    A("s_cmp_eq_u32 s10, 4\ns_cbranch_scc1 g2_last")
    body(2)
    A("g2_last:")
    body(1)

def k2(A):
    head(A, NAME + "_kernel")
    A("s_cmp_ge_u32 s2, 256\ns_cbranch_scc1 k2_end")
    A("s_load_dwordx16 s[84:99], s[0:1], 56\ns_load_dwordx2 s[%d:%d], s[0:1], %d\ns_load_dwordx2 s[%d:%d], s[0:1], %d", P_X, P_X + 1, ARG["x"], P_DSK, P_DSK + 1, ARG["dsk"])
    wave_id(A, 10); stamp_init(A, 10)
    A("s_and_b32 s3, s2, 7\ns_lshr_b32 s11, s2, 3\ns_cmp_ge_u32 s11, 24\ns_cbranch_scc1 k2_cv")
    gemm1(A)
    A("k2_cv:")
    conv(A)
    gemm2(A)
    A("k2_end:\ns_endpgm")

def build():
    out = ["; S4D convolution + token-mixing MLP, generated instruction stream"]
    out.append("; @launch grid=(256,1,1) block=(512,1,1) lds=%d" % (5 * 30720))
    out.append('.amdgcn_target "amdgcn-amd-amdhsa--gfx950"\n.text')
    A = Asm(); k2(A)
    t, n = A.text()
    sys.stderr.write("%d lines, %d nops inserted\n" % (len(A.l), n))
    out.append(t)
    out.append('.section .rodata,"a"')
    out.append(kd(NAME + "_kernel", 208))
    return "\n".join(out), None

if __name__ == "__main__":
    for a in sys.argv[2:]:
        k, v = a.split("=", 1)
        assert k in OPT, k
        OPT[k] = v
    t = build()[0]
    open(sys.argv[1], "w").write(t)
```

```python
import sys, math, struct
from asmlib import *

NAME = "parallel_sum__ssm_conv_s4d__mixer_token_mlp__prompt"
SZ = 2359296
WS_HT, WS_XT, WS_BASE, WS_K, WS_YC = 0, SZ, 2 * SZ, 3 * SZ, 4 * SZ
WS_H = 5 * SZ
SZ_H = 5308416
WS_P = WS_H + SZ_H
SZ_P = 256 * 4 * 9216
SZ_W = 18874368
ARG = dict(x=0, loga=8, aim=16, cr=24, ci=32, logdt=40, dsk=48, w1=64, b1=72, w2=80, b2=88, out=96, dbg=104, ws=112)
OPT = dict(stamp="0", cyc="0", lam1="4", lam2="4", a0="0", b0="0", adepth="3", agh="1", agw1="16", agh0="8", agw2="36", s1="2",
           gap1="21111111111111", gap2="111111111111111111", age="7", prio="0", noconv="0", lnst="0", nt1="", nt2="", dist="4", lprio="3", dist2="1", st2="0", ht="0", htb="1", gp0="0", htl="4", sched="w16,v8,wv", w2rev="0", cpf="1", rord="0", c3="3", af1="sc1", af2="sc1", gpf="0", nrep="32", psleep="2", osc1="sc1", agdelay="0")
WS_F = WS_P + SZ_P
F_EX, F_H, F_LN, F_REL, F_ALL, SZ_F = 0, 32768, 32768 + 2048, 36864, 40960, 43008
P_X, P_DSK, P_W1, P_B1, P_W2, P_B2, P_OUT, P_DBG, P_WS = 6, 8, 86, 88, 90, 92, 94, 96, 98
WS_ST = 128 << 20

def stamp(A, k):
    if OPT["stamp"] == "1": A("%s s[%d:%d]", "s_memtime" if OPT["cyc"] == "1" else "s_memrealtime", 64 + 2 * k, 65 + 2 * k)

def stamp_init(A, wave):
    if OPT["stamp"] == "1":
        for k in range(8): A("s_mov_b32 s%d, 0", 64 + 2 * k)
        A("s_mov_b32 s63, s%d\ns_load_dwordx2 s[100:101], s[0:1], %d\ns_memtime s[80:81]", wave, ARG["ws"])
        stamp(A, 0)

def endpgm(A, kidx):
    if OPT["stamp"] == "1":
        A("s_waitcnt vmcnt(0)")
        stamp(A, 6)
        A("s_memtime s[82:83]\ns_waitcnt lgkmcnt(0)\ns_sub_u32 s62, s82, s80\ns_mov_b64 exec, 1\nv_mov_b32 v16, s62")
        srd(A, 12, 100, 2 << 20, WS_ST)
        A("s_add_u32 s62, s2, %d\ns_lshl_b32 s62, s62, 3\ns_add_u32 s62, s62, s63\ns_lshl_b32 s62, s62, 6\nv_mov_b32 v0, s62", 1024 * kidx)
        for k in range(8): A("v_mov_b32 v%d, s%d", 8 + k, 64 + 2 * k)
        A("buffer_store_dwordx4 v[8:11], v0, s[12:15], 0 offen\nbuffer_store_dwordx4 v[12:15], v0, s[12:15], 0 offen offset:16\nbuffer_store_dword v16, v0, s[12:15], 0 offen offset:32")
    A("s_endpgm")


def f2u(f): return struct.unpack("<I", struct.pack("<f", f))[0]
def hx(f): return "0x%08x" % f2u(f)

def srd(A, d, b, size, off=0):
    if off:
        A("s_add_u32 s%d, s%d, %d\ns_addc_u32 s%d, s%d, 0", d, b, off, d + 1, b + 1)
    else:
        A("s_mov_b32 s%d, s%d\ns_mov_b32 s%d, s%d", d, b, d + 1, b + 1)
    A("s_mov_b32 s%d, %d\ns_mov_b32 s%d, 0x20000", d + 2, size, d + 3)

def head(A, k):
    A(".p2align 8\n.globl %s\n.type %s,@function\n%s:", k, k, k)

def kd(k, nv, ns=102):
    acc = min(256, (nv + 3) // 4 * 4)
    return (".p2align 6\n.amdhsa_kernel %s\n  .amdhsa_next_free_vgpr %d\n  .amdhsa_next_free_sgpr %d\n  .amdhsa_accum_offset %d\n"
            "  .amdhsa_group_segment_fixed_size 0\n  .amdhsa_kernarg_size 120\n  .amdhsa_user_sgpr_count 2\n"
            "  .amdhsa_user_sgpr_kernarg_segment_ptr 1\n  .amdhsa_system_sgpr_workgroup_id_x 1\n"
            "  .amdhsa_float_denorm_mode_32 3\n.end_amdhsa_kernel\n") % (k, nv, ns, acc)

def wave_id(A, s, lane=1):
    A("v_lshrrev_b32 v%d, 6, v0\nv_readfirstlane_b32 s%d, v%d\nv_and_b32 v%d, 63, v0", lane, s, lane, lane)

RS = 1216
def reduce32(A, a, b):
    for m in ("quad_perm:[1,0,3,2]", "quad_perm:[2,3,0,1]", "row_half_mirror", "row_mirror"):
        A("v_add_f32_dpp v%d, v%d, v%d %s row_mask:0xf bank_mask:0xf", a, a, a, m)
    A("v_mov_b32 v%d, v%d\nv_permlane16_swap_b32 v%d, v%d\nv_add_f32 v%d, v%d, v%d", b, a, a, b, a, a, b)

def unpack(A, lo, hi, src):
    A("v_lshlrev_b32 v%d, 16, v%d\nv_and_b32 v%d, 0xffff0000, v%d", lo, src, hi, src)

def rbf(A, d, s):
    A("v_cvt_pk_bf16_f32 v%d, v%d, v%d\nv_and_b32 v%d, 0xffff0000, v%d", d, s, s, d, d)

def layernorm(A, a, t, p, m, unpack_out):
    BC = "op_sel:[0,0] op_sel_hi:[1,0]"
    for i in range(4): A("v_pk_add_f32 %s, %s, %s", vr(t + 2 * i, 2), vr(a + 4 * i, 2), vr(a + 4 * i + 2, 2))
    A("v_pk_add_f32 %s, %s, %s\nv_pk_add_f32 %s, %s, %s", vr(t, 2), vr(t, 2), vr(a + 16, 2), vr(t + 2, 2), vr(t + 2, 2), vr(t + 4, 2))
    A("v_pk_add_f32 %s, %s, %s\nv_pk_add_f32 %s, %s, %s", vr(t, 2), vr(t, 2), vr(t + 6, 2), vr(m, 2), vr(t, 2), vr(t + 2, 2))
    A("v_add_f32 v%d, v%d, v%d", m, m, m + 1)
    reduce32(A, m, m + 1)
    A("v_mul_f32 v%d, %s, v%d", m, hx(1 / 576.), m)
    for i in range(9): A("v_pk_add_f32 %s, %s, %s %s neg_lo:[0,1] neg_hi:[0,1]", vr(t + 2 * i, 2), vr(a + 2 * i, 2), vr(m, 2), BC)
    for i in range(3): A("v_pk_mul_f32 %s, %s, %s", vr(t + 2 * i, 2), vr(t + 2 * i, 2), vr(t + 2 * i, 2))
    for i in range(3, 9): A("v_pk_fma_f32 %s, %s, %s, %s", vr(t + 2 * (i % 3), 2), vr(t + 2 * i, 2), vr(t + 2 * i, 2), vr(t + 2 * (i % 3), 2))
    A("v_pk_add_f32 %s, %s, %s\nv_pk_add_f32 %s, %s, %s", vr(t, 2), vr(t, 2), vr(t + 2, 2), vr(m + 2, 2), vr(t, 2), vr(t + 4, 2))
    A("v_add_f32 v%d, v%d, v%d", m + 2, m + 2, m + 3)
    rbf(A, m, m)
    for i in range(9): A("v_pk_add_f32 %s, %s, %s %s neg_lo:[0,1] neg_hi:[0,1]", vr(t + 2 * i, 2), vr(a + 2 * i, 2), vr(m, 2), BC)
    reduce32(A, m + 2, m + 3)
    A("v_mul_f32 v%d, %s, v%d", m + 2, hx(1 / 576.), m + 2)
    rbf(A, m + 2, m + 2)
    A("v_add_f32 v%d, %s, v%d", m + 2, hx(1e-5), m + 2)
    rbf(A, m + 2, m + 2)
    A("v_sqrt_f32 v%d, v%d", m + 2, m + 2)
    for i in range(9): A("v_cvt_pk_bf16_f32 v%d, v%d, v%d", p + i, t + 2 * i, t + 2 * i + 1)
    rbf(A, m + 2, m + 2)
    A("v_rcp_f32 v%d, v%d", m + 2, m + 2)
    for i in range(9): unpack(A, t + 2 * i, t + 2 * i + 1, p + i)
    for i in range(9): A("v_pk_mul_f32 %s, %s, %s %s", vr(t + 2 * i, 2), vr(t + 2 * i, 2), vr(m + 2, 2), BC)
    for i in range(9): A("v_cvt_pk_bf16_f32 v%d, v%d, v%d", p + i, t + 2 * i, t + 2 * i + 1)
    if unpack_out is not None:
        for i in range(9): unpack(A, unpack_out + 2 * i, unpack_out + 2 * i + 1, p + i)

def ln_phase(A):
    A("s_mul_i32 s22, s3, 24\ns_add_u32 s22, s22, s11\ns_cmp_lt_u32 s10, 4\ns_cbranch_scc1 ln_go")
    A("s_lshl_b32 s22, s3, 3\ns_add_u32 s22, s22, s11\ns_add_u32 s22, s22, 192\ns_cmp_lt_u32 s11, 8\ns_cbranch_scc1 ln_go")
    A("s_waitcnt lgkmcnt(0)\nv_mov_b32 v125, 0")
    n = int(OPT["gp0"])
    if n:
        srd(A, 12, P_W1, SZ_W)
        A("s_sub_u32 s22, s11, 8\ns_lshl_b32 s22, s22, 2\ns_add_u32 s22, s22, s10\ns_sub_u32 s22, s22, 4\ns_mul_i32 s23, s3, 1152")
        for r in range(n):
            touch_w1(A, 22, 126, 2, 12, 23)
            A("s_add_u32 s22, s22, 64")
    A("s_barrier\ns_branch ln_done\nln_go:")
    A("s_and_b32 s23, s10, 3\ns_lshl_b32 s25, s22, 3\ns_lshl_b32 s28, s23, 1\ns_add_u32 s25, s25, s28")
    A("v_lshrrev_b32 v4, 5, v1\nv_add_u32 v2, s25, v4\nv_mul_u32_u24 v2, 1152, v2")
    A("v_and_b32 v3, 31, v1\nv_lshlrev_b32 v3, 2, v3\nv_add_u32 v2, v2, v3")
    A("s_waitcnt lgkmcnt(0)")
    srd(A, 12, P_X, SZ)
    X, DS, XF, T, P, M, XN = 8, 17, 26, 44, 62, 72, 76
    for i in range(9): A("buffer_load_dword v%d, v2, s[12:15], 0 offen offset:%d", X + i, 128 * i)
    srd(A, 16, P_DSK, 1152)
    for i in range(9): A("buffer_load_dword v%d, v3, s[16:19], 0 offen offset:%d", DS + i, 128 * i)
    srd(A, 16, P_WS, SZ, WS_BASE)
    A("s_lshr_b32 s31, s10, 2\ns_mul_i32 s31, s31, %d", 16 * RS + 256)
    A("v_add_u32 v4, s28, v4\nv_mul_u32_u24 v4, %d, v4\nv_add_u32 v4, v4, v3\nv_add_u32 v4, s31, v4", RS)
    A("s_and_b32 s29, s10, 1\ns_lshl_b32 s29, s29, 6")
    A("v_bfe_u32 v5, v1, 2, 2\nv_mul_u32_u24 v5, %d, v5\nv_and_b32 v6, 3, v1\nv_lshl_add_u32 v5, v6, 3, v5", RS)
    A("v_lshrrev_b32 v6, 4, v1\nv_lshl_add_u32 v5, v6, 5, v5\ns_lshl_b32 s30, s29, 1\ns_add_u32 s30, s30, s31\nv_add_u32 v5, s30, v5")
    AD = 94
    A("s_cmp_ge_u32 s23, 2\ns_cbranch_scc1 ln_xt")
    srd(A, 12, P_WS, SZ, WS_HT)
    A("v_add_u32 v5, %d, v5\ns_mul_i32 s30, s22, 2304", 8 * RS)
    for j in range(5):
        A("v_add_u32 v6, s29, v1\nv_add_u32 v6, %d, v6", 128 * j)
        A("v_mul_u32_u24 v7, 3641, v6\nv_lshrrev_b32 v7, 19, v7\nv_mul_u32_u24 v99, 144, v7\nv_sub_u32 v6, v6, v99")
        A("v_and_b32 v99, 4, v6\nv_lshlrev_b32 v99, 2, v99\nv_and_b32 v100, 24, v6\nv_lshrrev_b32 v100, 1, v100\nv_or_b32 v99, v99, v100")
        A("v_and_b32 v100, 0xe3, v6\nv_or_b32 v99, v99, v100\nv_lshrrev_b32 v100, 7, v6\nv_cmp_eq_u32 s[32:33], 0, v100\nv_cndmask_b32 v6, v6, v99, s[32:33]")
        A("v_mul_u32_u24 v7, 589824, v7\nv_lshl_add_u32 v6, v6, 4, v7\nv_add_u32 v%d, s30, v6", AD + j)
    A("s_branch ln_c\nln_xt:")
    srd(A, 12, P_WS, SZ, WS_XT)
    A("s_lshl_b32 s30, s22, 7\nv_add_u32 v6, s29, v1\nv_lshrrev_b32 v7, 3, v6\nv_and_b32 v99, 7, v6\nv_lshlrev_b32 v99, 4, v99\nv_lshl_add_u32 v7, v7, 15, v99\nv_add_u32 v7, s30, v7")
    for j in range(4): A("v_add_u32 v%d, %d, v7", AD + j, j << 19)
    A("s_lshl_b32 s30, s22, 10\ns_lshl_b32 s32, s29, 16\ns_add_u32 s30, s30, s32\ns_add_u32 s30, s30, %d\nv_lshlrev_b32 v6, 4, v1\nv_add_u32 v%d, s30, v6", 1 << 21, AD + 4)
    A("ln_c:")
    A("s_waitcnt vmcnt(9)")
    if OPT["lnst"] == "1": stamp(A, 3)
    for i in range(9): unpack(A, XF + 2 * i, XF + 2 * i + 1, X + i)
    layernorm(A, XF, T, P, M, XN)
    for i in range(9): A("ds_write_b32 v4, v%d offset:%d", P + i, 128 * i)
    srd(A, 4, P_DBG, 256)
    A("v_mov_b32 v124, 0\nbuffer_load_dword v125, v124, s[4:7], 0 offen sc1")
    layernorm(A, XN, T, P, M, None)
    for i in range(9): A("ds_write_b32 v4, v%d offset:%d", P + i, 8 * RS + 128 * i)
    A("s_waitcnt vmcnt(0)")
    for i in range(9): unpack(A, T + 2 * i, T + 2 * i + 1, DS + i)
    if OPT["lnst"] == "1": stamp(A, 4)
    A("s_waitcnt lgkmcnt(0)\ns_barrier")
    if OPT["lnst"] == "1": stamp(A, 5); A("s_waitcnt lgkmcnt(0)")
    TR = 104
    for j in range(5):
        A("ds_read_b64_tr_b16 %s, v5 offset:%d", vr(TR + 4 * j, 2), 256 * j)
        A("ds_read_b64_tr_b16 %s, v5 offset:%d", vr(TR + 4 * j + 2, 2), 256 * j + 4 * RS)
    for i in range(9): A("v_pk_fma_f32 %s, %s, %s, %s", vr(XF + 2 * i, 2), vr(XN + 2 * i, 2), vr(T + 2 * i, 2), vr(XF + 2 * i, 2))
    for j in range(5):
        A("s_waitcnt lgkmcnt(%d)", 8 - 2 * j)
        A("buffer_store_dwordx4 %s, v%d, s[12:15], 0 offen sc1", vr(TR + 4 * j, 4), AD + j)
    for i in range(9): A("v_cvt_pk_bf16_f32 v%d, v%d, v%d", X + i, XF + 2 * i, XF + 2 * i + 1)
    for i in range(9): A("buffer_store_dword v%d, v2, s[16:19], 0 offen offset:%d sc1", X + i, 128 * i)
    A("ln_done:")

KRS = 272
GROWS = {}
for reg, p in enumerate([0, 1, 2, 3, 256, 258, 260, 262, 264, 512, 516, 520, 768, 772, 776]): GROWS[p] = (reg & 3) + 8 * (reg >> 2)
for reg, p in enumerate([4, 5, 6, 7, 1024, 1032, 1280, 1288, 1536, 1544, 1792, 1800]): GROWS[p] = (reg & 3) + 8 * (reg >> 2) + 4
KD, KFB, KFA = 80, 96, 128

def cmul(A, z, a, b, t):
    A("v_pk_mul_f32 %s, %s, %s op_sel:[0,0] op_sel_hi:[0,1]", vr(t, 2), vr(a, 2), vr(b, 2))
    A("v_pk_fma_f32 %s, %s, %s, %s op_sel:[1,1,0] op_sel_hi:[1,0,1] neg_lo:[0,1,0]", vr(z, 2), vr(a, 2), vr(b, 2), vr(t, 2))

def touch_w1(A, sn, vd, vt, rs, so):
    a, b, c = vt, vt + 1, vt + 2
    A("s_lshl_b32 s58, s%d, 6\nv_add_u32 v%d, s58, v1\nv_mul_u32_u24 v%d, 58255, v%d\nv_lshrrev_b32 v%d, 19, v%d", sn, a, b, a, b, b)
    A("v_mul_u32_u24 v%d, 9, v%d\nv_sub_u32 v%d, v%d, v%d\nv_mul_u32_u24 v%d, 9216, v%d\nv_lshl_add_u32 v%d, v%d, 7, v%d", c, b, a, a, c, b, b, a, a, b)
    A("buffer_load_dword v%d, v%d, s[%d:%d], s%d offen", vd, a, rs, rs + 3, so)

def kgen_params(A, ch, R):
    A("s_lshl_b32 s3, s%d, 1\nv_mov_b32 v3, s3\nbuffer_load_ushort v%d, v3, s[36:39], 0 offen", ch, R + 4)
    for i in range(4): A("buffer_load_ushort v%d, v2, s[%d:%d], 0 offen", R + i, 20 + 4 * i, 23 + 4 * i)

def kgen_addr(A, base):
    A("v_lshlrev_b32 v2, 2, v1\nv_add_u32 v2, s%d, v2", base)
    A("v_and_b32 v3, 31, v1\nv_mul_u32_u24 v3, %d, v3\nv_lshrrev_b32 v9, 5, v1\nv_lshl_add_u32 v3, v9, 4, v3\nv_add_u32 v3, s%d, v3", KRS, base)

def kgen_half(A, first):
    LOG2E = 1.4426950408889634
    A("v_lshlrev_b32 v8, 16, v8\nv_lshlrev_b32 v4, 16, v4\nv_mul_f32 v8, %s, v8\nv_mul_f32 v4, %s, v4\nv_exp_f32 v8, v8\nv_exp_f32 v4, v4", hx(LOG2E), hx(LOG2E))
    for i in (5, 6, 7): A("v_lshlrev_b32 v%d, 16, v%d", i, i)
    rbf(A, 8, 8); rbf(A, 4, 4)
    A("v_mul_f32 v4, v4, v8\nv_mul_f32 v5, v5, v8\nv_mul_f32 v4, %s, v4\nv_mul_f32 v5, %s, v5", hx(-LOG2E), hx(1 / (2 * math.pi)))
    G0 = 10
    A("v_add_f32 v8, v8, v8\nv_mul_f32 v%d, v6, v8\nv_mul_f32 v%d, v7, v8", G0, G0 + 1)
    E = {}
    nxt = [12]
    def alloc():
        r = nxt[0]; nxt[0] += 2; return r
    ps = (1, 8, 64, 256, 1024)
    for p in ps: E[p] = alloc()
    X = 60
    for i, p in enumerate(ps): A("v_mul_f32 v%d, %s, v4\nv_mul_f32 v%d, %s, v5", X + 2 * i, hx(float(p)), X + 2 * i + 1, hx(float(p)))
    for i, p in enumerate(ps): A("v_fract_f32 v%d, v%d", X + 2 * i + 1, X + 2 * i + 1)
    for i, p in enumerate(ps): A("v_exp_f32 v%d, v%d\nv_cos_f32 v%d, v%d\nv_sin_f32 v%d, v%d", X + 2 * i, X + 2 * i, E[p], X + 2 * i + 1, E[p] + 1, X + 2 * i + 1)
    for i, p in enumerate(ps): A("v_pk_mul_f32 %s, %s, %s op_sel:[0,0] op_sel_hi:[1,0]", vr(E[p], 2), vr(E[p], 2), vr(X + 2 * i, 2))
    TM, PKR = 128, 144
    def cmuls(jobs):
        for i, (z, a, b) in enumerate(jobs): A("v_pk_mul_f32 %s, %s, %s op_sel:[0,0] op_sel_hi:[0,1]", vr(TM + 2 * i, 2), vr(a, 2), vr(b, 2))
        for i, (z, a, b) in enumerate(jobs):
            A("v_pk_fma_f32 %s, %s, %s, %s op_sel:[1,1,0] op_sel_hi:[1,0,1] neg_lo:[0,1,0]", vr(z, 2), vr(a, 2), vr(b, 2), vr(TM + 2 * i, 2))
    def puts(rows, neg):
        for i, (row, r) in enumerate(rows): A("v_cvt_pk_bf16_f32 v%d, v%d, %sv%d", PKR + i, r, "-" if neg else "", r + 1)
        for i, (row, r) in enumerate(rows): A("ds_write_b32 v2, v%d offset:%d", PKR + i, row * KRS)
    for p in (2, 16, 128, 512, 4, 32, 192): E[p] = alloc()
    H = {1: E[8], 2: E[16], 4: E[32]}
    for j in (3, 5, 6, 7): H[j] = alloc()
    G = {0: G0}
    for p in (1, 2, 3, 4, 6, 256, 512, 516, 1024): G[p] = alloc()
    Z = [KFB + 2 * i for i in range(8)]
    cmuls([(E[p], E[p // 2], E[p // 2]) for p in (2, 16, 128, 512)] + [(G[1], G0, E[1]), (G[256], G0, E[256]), (G[1024], G0, E[1024])])
    A("v_mov_b32 v8, 0x3f80\nds_write_b32 v2, v8")
    cmuls([(E[4], E[2], E[2]), (E[32], E[16], E[16]), (E[192], E[64], E[128]), (H[3], H[1], H[2]), (G[2], G0, E[2]), (G[3], G[1], E[2]), (G[512], G0, E[512])])
    cmuls([(H[5], H[1], H[4]), (H[6], H[2], H[4]), (H[7], H[3], H[4]), (G[4], G0, E[4]), (G[6], G[2], E[4])])
    puts([(j, H[j]) for j in range(1, 8)] + [(8, E[64]), (16, E[128]), (24, E[192])], False)
    for a in (1, 2, 3):
        cmuls([(Z[j], H[j], E[64 * a]) for j in range(1, 8)])
        puts([(8 * a + j, Z[j]) for j in range(1, 8)], False)
    for p in (768, 1280, 1536, 1792): G[p] = alloc()
    assert nxt[0] <= 72, nxt[0]
    cmuls([(G[516], G[4], E[512]), (G[768], G[512], E[256]), (G[1280], G[1024], E[256]), (G[1536], G[1024], E[512])])
    for k in range(8): A("ds_read_b128 %s, v3 offset:%d", vr(KFB + 4 * k, 4), 32 * k)
    Z = [160 + 2 * i for i in range(8)]
    cmuls([(G[1792], G[1536], E[256]), (Z[0], G[1], E[4]), (Z[1], G[3], E[4]), (Z[2], G[2], E[256]), (Z[3], G[4], E[256]), (Z[4], G[6], E[256]), (Z[5], G[516], E[256])])
    puts([(GROWS[p], G[p]) for p in (0, 1, 2, 3, 4, 6, 256, 512, 516, 1024, 768, 1280, 1536, 1792)], True)
    puts([(GROWS[p], Z[i]) for i, p in enumerate((5, 7, 258, 260, 262, 772))], True)
    e8 = (256, 512, 768, 1024, 1280, 1536, 1792)
    cmuls([(Z[i], G[p], E[8]) for i, p in enumerate(e8)])
    puts([(GROWS[p + 8], Z[i]) for i, p in enumerate(e8)], True)
    for k in range(8): A("ds_read_b128 %s, v3 offset:%d", vr(KFA + 4 * k, 4), 32 * k)
    for k in range(8):
        A("s_waitcnt lgkmcnt(%d)", 7 - k)
        A("v_mfma_f32_32x32x16_bf16 %s, %s, %s, %s", vr(KD, 16), vr(KFA + 4 * k, 4), vr(KFB + 4 * k, 4), vr(KD, 16) if k or not first else "0")

def kgen_expand(A, base, store):
    A("v_and_b32 v3, 31, v1\nv_lshlrev_b32 v3, 4, v3\nv_add_u32 v3, s%d, v3\nv_lshrrev_b32 v4, 5, v1\nv_lshl_add_u32 v4, v4, 3, v3", base)
    A("v_and_b32 v5, 1, v1\nv_cmp_eq_u32 s[44:45], 1, v5")
    def pk2(d, a, b): A("v_cvt_pk_bf16_f32 v%d, v%d, v%d", d, a, b)
    r = lambda i: KD + i
    pk2(12, r(0), r(1)); pk2(13, r(2), r(3))
    store(12, 2, 4, 0)
    O = 16
    A("s_mov_b32 exec_lo, -1\ns_mov_b32 exec_hi, 0")
    for blk, seq in ((256, ((4, 4), (5, 6), (6, 6), (7, 8))), (512, ((9, 9), (9, 10), (10, 10), (11, 11))), (768, ((12, 12), (12, 13), (13, 13), (14, 14)))):
        for i, (a, b) in enumerate(seq): pk2(O + i, r(a), r(b))
        store(O, 4, 3, 2 * blk); O += 4
    A("s_mov_b32 exec_lo, 0\ns_mov_b32 exec_hi, -1")
    for blk, a in ((1024, 4), (1280, 6), (1536, 8), (1792, 10)):
        A("v_cndmask_b32 v8, v%d, v%d, s[44:45]", r(a), r(a + 1))
        pk2(O, r(a), r(a)); pk2(O + 1, r(a), r(a)); pk2(O + 2, 8, r(a + 1)); pk2(O + 3, r(a + 1), r(a + 1))
        store(O, 4, 3, 2 * blk); O += 4
    A("s_mov_b64 exec, -1")

def loader(A, tag, nstage, nslot, units, lead, cfg, gate=None):
    nu = len(units)
    R = 40
    st = []
    for u in units:
        g = []
        for kind, si, *sub in u:
            if kind == "A":
                A("s_mul_i32 s%d, s%d, 3072\ns_add_u32 s%d, s%d, s20", R + 1, si, R, R + 1)
            else:
                A("s_mul_i32 s%d, s%d, %d\ns_add_u32 s%d, s%d, s21", R, si, cfg["bg_g"], R, R)
                A("s_mul_i32 s%d, s%d, %d\ns_add_u32 s%d, s%d, %d", R + 1, si, cfg["bg_l"], R + 1, R + 1, cfg["baseB"])
            g.append((kind, R, sub[0] if sub else range(3 if kind == "A" else len(cfg["vb"])))); R += 2
        A("s_mov_b32 s%d, 0", R); st.append((g, R)); R += 1
    assert R <= 62
    q = []
    def issue(u, kinds="AB"):
        g, c = st[u % nu]
        for kind, r, sub in g:
            if kind not in kinds: continue
            A("s_mov_b32 m0, s%d", r + 1)
            if kind == "A":
                A("s_add_u32 s%d, s%d, 18432", r + 1, r + 1)
                for i in sub: A("buffer_load_dwordx4 v2, s[12:15], s%d offen offset:%d %s lds", r, 1024 * i, cfg["aflag"])
                A("s_add_u32 s%d, s%d, %d", r, r, 0 if OPT["a0"] == "1" else 18432); q.extend([u // nu] * len(sub))
            else:
                A("s_add_u32 s%d, s%d, %d", r + 1, r + 1, cfg["slotB"])
                for i in sub: A("buffer_load_dwordx4 v%d, s[16:19], s%d offen offset:%d %s lds", cfg["vb"][i], r, 1024 * i, cfg["bflag"])
                A("s_add_u32 s%d, s%d, %d", r, r, 0 if OPT["b0"] == "1" else cfg["b_stride"]); q.extend([u // nu] * len(sub))
        if "A" in kinds:
            A("s_add_u32 s%d, s%d, 1\ns_cmp_lg_u32 s%d, %d\ns_cbranch_scc1 %s_w%d", c, c, c, nslot, tag, issue.n)
            A("s_mov_b32 s%d, 0", c)
            for kind, r, sub in g: A("s_sub_u32 s%d, s%d, %d", r + 1, r + 1, nslot * (18432 if kind == "A" else cfg["slotB"]))
            A("%s_w%d:", tag, issue.n); issue.n += 1
    issue.n = 0
    def allowed(i):
        last = max([k for k, s in enumerate(q) if s <= i], default=-1)
        return len(q) - 1 - last
    total = nstage * nu
    if gate:
        for u in range(lead): issue(u, "B")
        gate()
        for u in range(lead): issue(u, "A")
    else:
        for u in range(lead): issue(u)
    hook = cfg.get("hook")
    if hook: hook(True)
    stamp(A, cfg["stamp"])
    issued, i = lead, 0
    def step(i):
        A("s_waitcnt vmcnt(%d)\ns_barrier", allowed(i))
    npeel = (lead + nu - 1) // nu - 1 if gate else 0
    for i in range(npeel):
        step(i)
        for k in range(nu): issue(issued); issued += 1
        if hook: hook(False)
    nloop = (total - issued) // nu
    A("s_mov_b32 s26, 0\n%s_loop:", tag)
    step(npeel)
    for k in range(nu): issue(issued + k)
    if hook: hook(False)
    A("s_add_u32 s26, s26, 1\ns_cmp_lt_u32 s26, %d\ns_cbranch_scc1 %s_loop", nloop, tag)
    w0 = allowed(npeel + 1)
    for it in range(1, nloop):
        for k in range(nu):
            u = issued + it * nu + k
            q.extend([u // nu] * sum(len(sub) for _, _, sub in st[u % nu][0]))
    issued += nloop * nu
    for i in range(npeel + nloop, nstage):
        if i == nstage - 1 and cfg.get("last"): cfg["last"]()
        step(i)
        while issued < total:
            issue(issued); issued += 1

def modadd(A, d, s, k, m):
    A("s_add_u32 s%d, s%d, %d\ns_cmp_ge_u32 s%d, %d\ns_cselect_b32 s25, %d, 0\ns_sub_u32 s%d, s%d, s25", d, s, k, d, m, m, d, d)

def loaders(A, tag, nstage, nslot, cfg, plan, after, gate=None):
    for k in range(1, 6): modadd(A, 30 + k, 30, k, 6)
    for k in range(1, 4): modadd(A, 35 + k, 29, k, 4)
    a = lambda k, *sub: ("A", 30 + k) + sub
    b = lambda k, *sub: ("B", 35 + k if k else 29) + sub
    A("s_setprio %s", OPT["lprio"])
    for w in (5, 6, 7): A("s_cmp_eq_u32 s10, %d\ns_cbranch_scc1 %s_%d", w, tag, w)
    for w, (units, lead) in zip((4, 5, 6, 7), plan(a, b)):
        if w > 4: A("%s_%d:", tag, w)
        c = dict(cfg, last=cfg.get("last") if w == 4 else None, hook=(lambda first, w=w: cfg["touch"](w, first)) if cfg.get("touch") else None)
        loader(A, "%s%d" % (tag, w), nstage, nslot, units, lead, c, (lambda w=w: gate(w)) if gate else None)
        after(w)

def consumer(A, tag, nstage, nslot, reads, mfmas, pattern, stamps, extra=None):
    rem = nstage % nslot
    def half(pend, mf, rd, emit):
        rd = list(rd)
        for i, m in enumerate(mf):
            use = I(m).srcab
            pend[:] = [(w, age + 1) for w, age in pend]
            last = max([k for k, (w, _) in enumerate(pend) if w & use], default=-1)
            if last >= 0:
                last = max([last] + [k for k, (_, age) in enumerate(pend) if age >= int(OPT["age"])])
                n = min(15, len(pend) - 1 - last)
                if emit: A("s_waitcnt lgkmcnt(%d)", n)
                del pend[:len(pend) - n]
            if emit: A(m)
            for _ in range(pattern[i] if i < len(pattern) else 0):
                if rd:
                    x = rd.pop(0); pend.append((I(x).w, 0))
                    if emit: A(x)
        for x in rd:
            pend.append((I(x).w, 0))
            if emit: A(x)
    pend = []
    half(pend, mfmas(0), reads(0, 1, 1), False)
    A("s_mov_b32 s26, 0\ns_barrier")
    if OPT["stamp"] == "1": stamp(A, stamps[0]); A("s_waitcnt lgkmcnt(0)")
    for x in reads(0, 0, 0): A(x)
    A("s_waitcnt lgkmcnt(0)\ns_branch %s_mid\n.p2align 6\n%s_loop:", tag, tag)
    for slot in range(nslot):
        p = list(pend)
        A("s_barrier")
        half(p, mfmas(1), reads(slot, 0, 0), True)
        if slot == 0: A("%s_mid:", tag)
        if extra: extra(slot, 0)
        half(p, mfmas(0), reads(slot, 1, 1), True)
        if extra: extra(slot, 1)
        if slot == (rem - 1) % nslot:
            A("s_add_u32 s26, s26, 1\ns_cmp_eq_u32 s26, %d\ns_cbranch_scc1 %s_done", (nstage + nslot - 1) // nslot, tag)
    A("s_branch %s_loop\n%s_done:", tag, tag)
    half(list(pend), mfmas(1), [], True)
    stamp(A, stamps[1])

def pat(s): return [int(c) for c in s]

def poll(A, tag, so, target, va=70, sleep="0"):
    A("v_mov_b32 v%d, s%d\ns_mov_b64 exec, 1\ns_mov_b32 s24, 0\n%s_p:", va, so, tag)
    A("buffer_load_dword v%d, v%d, s[4:7], 0 offen sc1\ns_add_u32 s24, s24, 1\ns_waitcnt vmcnt(0)\nv_readfirstlane_b32 s25, v%d", va + 1, va, va + 1)
    A("s_cmp_ge_u32 s24, 0x40000\ns_cbranch_scc1 %s_g\ns_cmp_ge_u32 s25, %d\ns_cbranch_scc1 %s_g\n%s\ns_branch %s_p\n%s_g:\ns_mov_b64 exec, -1", tag, target, tag, "s_sleep " + sleep if sleep != "0" else "", tag, tag)

def poll_all(A, tag, n, base, target, rs=4, va=70):
    A("v_and_b32 v%d, %d, v1\nv_lshlrev_b32 v%d, 7, v%d\nv_add_u32 v%d, %d, v%d\ns_mov_b32 s24, 0\n%s_p:", va, n - 1, va, va, va, base, va, tag)
    A("buffer_load_dword v%d, v%d, s[%d:%d], 0 offen sc1\ns_add_u32 s24, s24, 1\ns_waitcnt vmcnt(0)\nv_cmp_gt_u32 vcc, %d, v%d", va + 1, va, rs, rs + 3, target, va + 1)
    A("s_cmp_ge_u32 s24, 0x40000\ns_cbranch_scc1 %s_g\ns_cmp_lg_u64 vcc, 0\ns_cbranch_scc1 %s_p\n%s_g:", tag, tag, tag)

def wait_ln(A, tag):
    A("s_and_b32 s24, s2, %d\ns_lshl_b32 s24, s24, 7\ns_add_u32 s62, s24, %d", int(OPT["nrep"]) - 1, F_REL)
    poll(A, tag, 62, 8, sleep=OPT["psleep"])

def arrive(A, so, va=70):
    A("v_mov_b32 v%d, s%d\nv_mov_b32 v%d, 1\ns_mov_b64 exec, 1\nbuffer_atomic_add v%d, v%d, s[4:7], 0 offen sc1\ns_mov_b64 exec, -1", va, so, va + 1, va + 1, va)


def gemm1(A):
    ln_phase(A)
    A("s_mul_i32 s28, s3, 6\ns_lshr_b32 s30, s11, 2\ns_add_u32 s28, s28, s30\ns_and_b32 s29, s11, 3")
    A("s_lshr_b32 s23, s3, 1\ns_lshl_b32 s23, s23, 2\ns_add_u32 s23, s23, s29\ns_lshl_b32 s23, s23, 7\ns_add_u32 s23, s23, %d", F_H)
    A("s_cmp_ge_u32 s10, 4\ns_cbranch_scc0 g1_cons")
    NS, SB, BB = 5, 12288, 5 * 18432
    A("v_lshlrev_b32 v2, 4, v1")
    for i in range(3):
        A("v_add_u32 v6, %d, v1\nv_mul_u32_u24 v7, 5462, v6\nv_lshrrev_b32 v7, 16, v7\nv_mul_u32_u24 v8, 12, v7\nv_sub_u32 v6, v6, v8", 64 * i)
        A("v_lshrrev_b32 v8, 2, v7\nv_and_b32 v8, 2, v8\nv_xor_b32 v6, v6, v8\nv_mul_u32_u24 v7, 9216, v7\nv_lshl_add_u32 v6, v6, 4, v7\nv_subrev_u32 v%d, %d, v6", 3 + i, 1024 * i)
    A("s_mul_i32 s20, s29, 589824\ns_mul_i32 s21, s28, 192")
    srd(A, 12, P_WS, SZ, WS_HT); srd(A, 16, P_W1, SZ_W); srd(A, 4, P_DBG, 256)
    A("v_readfirstlane_b32 s25, v125\ns_cmp_lg_u32 s25, 0\ns_cbranch_scc1 g1_ng\ns_cmp_lg_u32 s10, 4\ns_cbranch_scc1 g1_ng")
    poll_all(A, "g1go", 1, 0, 1)
    A("g1_ng:")
    srd(A, 4, P_WS, SZ_F, WS_F)
    A("s_lshl_b32 s22, s3, 7\ns_add_u32 s22, s22, %d\ns_waitcnt vmcnt(9)\ns_barrier", F_LN)
    def gate(w):
        if w == 4:
            stamp(A, 7)
            A("v_mov_b32 v70, s22\nv_mov_b32 v71, 1\ns_mov_b64 exec, 1\nbuffer_atomic_add v71, v70, s[4:7], 0 offen sc0 sc1\ns_mov_b64 exec, -1")
            A("v_lshlrev_b32 v72, 7, v1\nv_add_u32 v72, %d, v72\nv_mov_b32 v73, 1\ns_waitcnt vmcnt(0)\nv_readfirstlane_b32 s25, v71", F_REL)
            stamp(A, 3)
            A("s_cmp_lg_u32 s25, 23\ns_cbranch_scc1 g1_nl\ns_mov_b64 exec, 0x%x\nbuffer_atomic_add v73, v72, s[4:7], 0 offen sc1\ns_mov_b64 exec, -1\ng1_nl:", (1 << int(OPT["nrep"])) - 1)
            wait_ln(A, "g1ln")
            stamp(A, 2)
        n = int(OPT["gpf"])
        if w in (5, 6) and n:
            A("v_lshrrev_b32 v20, 3, v1\nv_and_b32 v21, 7, v1\nv_mul_u32_u24 v22, 9216, v20\nv_lshl_add_u32 v22, v21, 7, v22")
            A("s_lshl_b32 s24, s11, 1\ns_add_u32 s24, s24, %d\ns_mul_i32 s24, s24, %d\ns_mul_i32 s25, s3, 1152\ns_add_u32 s24, s24, s25", w - 5, 8 * 9216)
            for i in range(n): A("buffer_load_dword v23, v22, s[16:19], s24 offen\ns_add_u32 s24, s24, %d", 48 * 8 * 9216)
            if w == 5:
                A("v_mul_u32_u24 v22, 9216, v1\nv_add_u32 v22, 1024, v22\ns_mul_i32 s24, s11, %d\ns_add_u32 s24, s24, s25\ns_cmp_ge_u32 s11, %d\ns_cbranch_scc1 g1_n9", 64 * 9216, 6 * n)
                A("buffer_load_dword v23, v22, s[16:19], s24 offen\ng1_n9:")
        A("s_barrier")
    lam = int(OPT["lam1"])
    if OPT["s1"] == "1":
        plan = lambda a, b: [([[a(1)], [a(2)]], lam), ([[a(3)], [a(4)]], lam), ([[a(0), b(0)]], NS - 2), ([[a(5), b(1)], [b(2), b(3)]], lam)]
    elif OPT["s1"] == "2":
        plan = lambda a, b: [([[a(1), b(0, [0])], [a(2), b(0, [1, 2])]], lam), ([[a(3), b(1, [0])], [a(4), b(1, [1, 2])]], lam), ([[a(0)]], NS - 2), ([[a(5), b(2, [0, 1])], [b(2, [2]), b(3)]], lam)]
    elif OPT["dist"] == "1":
        plan = lambda a, b: [([[a(0), a(1)], [a(2), a(3)]], lam), ([[a(4), b(0)], [b(1), b(2)]], lam), ([[a(5)], [b(3)]], lam), ([[], []], lam)]
    elif OPT["dist"] == "2":
        plan = lambda a, b: [([[a(0), b(0)], [a(1)]], lam), ([[a(2)], [a(3), b(1)]], lam), ([[a(4)], [a(5)]], lam), ([[b(2)], [b(3)]], lam)]
    elif OPT["dist"] == "4":
        plan = lambda a, b: [([[a(0), b(0, [0])], [a(1)]], lam), ([[a(2)], [a(3), b(0, [1])]], lam), ([[a(4), b(0, [2])], [a(5)]], lam), ([[b(1), b(2, [0, 1])], [b(2, [2]), b(3)]], lam)]
    elif OPT["dist"] == "5":
        plan = lambda a, b: [([[a(0), b(0, [0])], [a(1, [0]), b(1)]], lam), ([[a(2), b(0, [1])], [a(1, [1]), b(2)]], lam),
                             ([[a(3), b(0, [2])], [a(4)]], lam), ([[a(5)], [a(1, [2]), b(3)]], lam)]
    elif OPT["dist"] == "3":
        plan = lambda a, b: [([[a(0)], []], lam), ([[], [a(1)]], lam), ([[a(2)], [a(3)]], lam), ([[a(4), b(0), b(1)], [a(5), b(2), b(3)]], lam)]
    else:
        plan = lambda a, b: [([[a(0)], [a(1)]], lam), ([[a(2)], [a(3)]], lam), ([[a(4)], [a(5)]], lam), ([[b(0), b(1)], [b(2), b(3)]], lam)]
    def touch(w, first):
        if w == 7 or OPT["ht"] != "1": return
        ld = "buffer_load_dword v23, v24, s[12:15], s39 offen %s" % OPT["af1"]
        if first:
            A("v_min_u32 v24, 47, v1\nv_lshlrev_b32 v24, 7, v24\ns_and_b32 s39, s30, 1\ns_add_u32 s39, s39, 2\ns_mul_i32 s39, s39, 18432\ns_add_u32 s39, s39, s20\ns_add_u32 s39, s39, %d", 6144 * (w - 4))
            A(ld)
            A("s_add_u32 s39, s30, %s\ns_mul_i32 s39, s39, 18432\ns_add_u32 s39, s39, s20\ns_add_u32 s39, s39, %d\ns_mov_b32 s27, 0", OPT["htl"], 6144 * (w - 4))
            A(ld)
        else:
            touch.n += 1
            A("s_add_u32 s27, s27, 1\ns_cmp_lg_u32 s27, 7\ns_cbranch_scc1 g1t_%d\ns_mov_b32 s27, 1\ns_add_u32 s39, s39, %d", touch.n, 6 * 18432)
            A(ld)
            A("g1t_%d:", touch.n)
    touch.n = 0
    loaders(A, "g1l", 32, NS, dict(touch=touch, vb=(3, 4, 5), bg_g=16 * 9216, bg_l=3072, baseB=BB, slotB=SB, b_stride=64 * 9216, aflag=OPT["af1"] + " " + OPT["nt1"], bflag=OPT["nt1"], stamp=1), plan,
            lambda w: A("s_branch g2_load"), gate)
    A("g1_cons:")
    ACC, FX, FY, VB, BI = 16, 72, 108, 6, 152
    A("v_lshrrev_b32 v144, 4, v1\nv_and_b32 v145, 15, v1")
    A("v_mul_u32_u24 v146, 2304, v144\nv_lshl_add_u32 v146, v145, 4, v146")
    A("s_lshl_b32 s25, s10, 9\nv_add_u32 v192, s25, v146\nv_add_u32 v3, 2048, v146\nv_add_u32 v4, %d, v192\nv_add_u32 v5, %d, v3", 3 * 18432, 3 * 18432)
    A("v_bfe_u32 v147, v1, 2, 2\nv_lshl_add_u32 v147, v144, 3, v147\nv_mul_u32_u24 v147, 192, v147\nv_and_b32 v148, 3, v1\nv_lshl_add_u32 v147, v148, 3, v147")
    A("v_add_u32 v147, %d, v147\nv_and_b32 v148, 1, v144\nv_lshlrev_b32 v148, 5, v148\nv_xor_b32 v149, 32, v148\nv_add_u32 v148, v148, v147\nv_add_u32 v149, v149, v147", BB)
    A("s_mul_i32 s27, s29, %d\ns_mul_i32 s25, s28, %d\ns_add_u32 s27, s27, s25\nv_lshlrev_b32 v150, 3, v144\ns_mul_i32 s30, s28, 192", 576 * 2304, 12 * 2304)
    A("s_waitcnt vmcnt(9)\ns_barrier")
    stamp(A, 7)
    A("v_mov_b32 v2, v192")
    srd(A, 12, P_B1, 9216); srd(A, 16, P_WS, SZ_H, WS_H)
    for u in range(3):
        modadd(A, 31, 10, u, 3)
        A("s_lshl_b32 s25, s31, 6\nv_add_u32 v%d, s25, v148\nv_add_u32 v%d, s25, v149\ns_add_u32 s25, s25, s30", VB + 2 * u, VB + 2 * u + 1)
        A("buffer_load_dwordx2 %s, v150, s[12:15], s25 offen\nbuffer_load_dwordx2 %s, v150, s[12:15], s25 offen offset:32", vr(BI + 4 * u, 2), vr(BI + 4 * u + 2, 2))
        A("s_mul_i32 s31, s31, %d\ns_add_u32 s%d, s31, s27", 4 * 2304, 32 + u)
    acc = lambda t, n: ACC + 4 * (6 * t + n) if t < 2 else ACC + 48 + 4 * n
    A("s_waitcnt vmcnt(0)")
    for n in range(6):
        for h in range(2): unpack(A, acc(0, n) + 2 * h, acc(0, n) + 2 * h + 1, BI + 2 * n + h)
    for n in range(6):
        for t in ((1, 2) if n < 2 else (1,)):
            for e in range(4): A("v_mov_b32 v%d, v%d", acc(t, n) + e, acc(0, n) + e)
    def mk(nt):
        def reads(slot, ks, st):
            F = FY if st else FX
            o = (slot % 3 if slot >= 3 else slot) * 18432 + ks * 9216
            va = 4 if slot >= 3 else 2
            a = [["ds_read_b128 %s, v%d offset:%d" % (vr(F + 24 + 4 * t, 4), va + (t == 2), o + (256 if t == 1 else 0))] if t < nt else [] for t in range(3)]
            b = [["ds_read_b64_tr_b16 %s, v%d offset:%d" % (vr(F + 4 * n + 2 * h, 2), VB + n, slot * SB + ks * 6144 + h * 768) for h in range(2)] for n in range(6)]
            if OPT["rord"] == "1": return a[0] + b[0] + b[1] + a[1] + b[2] + b[3] + a[2] + b[4] + b[5]
            return a[0] + b[0] + b[1] + b[2] + b[3] + b[4] + b[5] + a[1] + a[2]
        def mfmas(st):
            F = FY if st else FX
            order = [(0, n) for n in range(6)] + [(1, n) for n in range(6)] + ([(2, 0), (2, 1)] if nt == 3 else [])
            return ["v_mfma_f32_16x16x32_bf16 %s, %s, %s, %s" % (vr(acc(t, n), 4), vr(F + 4 * n, 4), vr(F + 24 + 4 * t, 4), vr(acc(t, n), 4)) for t, n in order]
        return reads, mfmas
    if OPT["prio"] != "0": A("s_setprio %s", OPT["prio"])
    A("s_waitcnt lgkmcnt(0)\ns_barrier\ns_cmp_eq_u32 s10, %s\ns_cbranch_scc1 g1_c3", OPT["c3"])
    consumer(A, "g1c", 32, NS, *mk(3), pat(OPT["gap1"]), (1, 2))
    A("s_branch g1_epi\ng1_c3:")
    ex = None
    if OPT["ht"] == "2":
        srd(A, 36, P_WS, SZ, WS_HT)
        ld = lambda k: A("buffer_load_dword v151, v193, s[36:39], s40 offen offset:%d %s", 0, OPT["af1"])
        A("v_min_u32 v193, 47, v1\nv_lshlrev_b32 v193, 7, v193\ns_lshr_b32 s41, s11, 2\ns_mul_i32 s42, s29, 589824")
        A("s_and_b32 s40, s41, 1\ns_add_u32 s40, s40, 2\ns_mul_i32 s40, s40, 18432\ns_add_u32 s40, s40, s42")
        for k in range(3): ld(k); A("s_add_u32 s40, s40, 6144")
        A("s_min_u32 s40, s41, 4\ns_add_u32 s40, s40, %s\ns_mul_i32 s40, s40, 18432\ns_add_u32 s40, s40, s42", OPT["htl"])
        def ex(slot, h):
            k = 2 * slot + h
            if OPT["htb"] == "1":
                if k == 0:
                    for i in range(3): ld(i); A("s_add_u32 s40, s40, %d", 6144 if i < 2 else 5 * 18432 - 12288)
            elif k < 3: ld(k); A("s_add_u32 s40, s40, %d", 6144 if k < 2 else 5 * 18432 - 12288)
    consumer(A, "g1d", 32, NS, *mk(2), pat("221111111111"), (1, 2), ex)
    A("g1_epi:\ns_barrier")
    c0 = -2 * math.sqrt(2 / math.pi) * 1.4426950408889634
    A("v_mov_b32 v4, %s\nv_mov_b32 v5, %s\nv_mov_b32 v6, %s\nv_mov_b32 v7, %s\nv_mov_b32 v8, 1.0\nv_mov_b32 v9, 1.0", hx(c0), hx(c0), hx(c0 * 0.044715), hx(c0 * 0.044715))
    units = [(t, u) for t in range(2) for u in range(3)] + [(2, 0)]
    for k, (t, u) in enumerate(units):
        a = acc(t, 2 * u); T = FX + 8 * (k & 1); O = FY + 4 * k
        if t == 2: A("s_cmp_eq_u32 s10, 3\ns_cbranch_scc1 g2_cons")
        for i in range(4): A("v_pk_mul_f32 %s, %s, %s", vr(T + 2 * i, 2), vr(a + 2 * i, 2), vr(a + 2 * i, 2))
        for i in range(4): A("v_pk_fma_f32 %s, %s, v[6:7], v[4:5]", vr(T + 2 * i, 2), vr(T + 2 * i, 2))
        for i in range(4): A("v_pk_mul_f32 %s, %s, %s", vr(T + 2 * i, 2), vr(T + 2 * i, 2), vr(a + 2 * i, 2))
        for i in range(8): A("v_exp_f32 v%d, v%d", T + i, T + i)
        for i in range(4): A("v_pk_add_f32 %s, %s, v[8:9]", vr(T + 2 * i, 2), vr(T + 2 * i, 2))
        for i in range(8): A("v_rcp_f32 v%d, v%d", T + i, T + i)
        for i in range(4): A("v_pk_mul_f32 %s, %s, %s", vr(T + 2 * i, 2), vr(T + 2 * i, 2), vr(a + 2 * i, 2))
        for i in range(4): A("v_cvt_pk_bf16_f32 v%d, v%d, v%d", O + i, T + 2 * i, T + 2 * i + 1)
        if t < 2: A("buffer_store_dwordx4 %s, v2, s[16:19], s%d offen offset:%d sc1", vr(O, 4), 32 + u, 256 * t)
        else: A("buffer_store_dwordx4 %s, v3, s[16:19], s32 offen sc1", vr(O, 4))
    A("s_branch g2_cons")

CSLOT = 8768
def conv(A):
    A("s_lshl_b32 s22, s3, 3\ns_add_u32 s22, s22, s11\ns_sub_u32 s22, s22, 24")
    A("s_mov_b32 s23, 0")
    LF = 9 * CSLOT + 7 * 32 * KRS
    A("v_mov_b32 v190, %d\nv_mov_b32 v191, 0\nds_write_b32 v190, v191\ns_waitcnt lgkmcnt(0)\ns_barrier", LF)
    A("s_cmp_eq_u32 s10, 7\ns_cbranch_scc1 cv_agent")
    A("s_load_dwordx8 s[52:59], s[0:1], %d\ns_load_dwordx2 s[60:61], s[0:1], %d", ARG["loga"], ARG["logdt"])
    A("s_lshl_b32 s42, s22, 3\ns_add_u32 s42, s42, s10\ns_mul_i32 s43, s10, %d\ns_mov_b32 s46, s22\ns_mov_b32 s47, s23", CSLOT)
    A("s_mov_b32 s41, 1\ns_lshr_b32 s25, s10, 1\ns_cmp_eq_u32 s25, 1\ns_cselect_b32 s41, 2, 1\ns_mov_b32 s40, 0")
    A("s_cbranch_scc0 cv_p\ns_setprio 1\ncv_p:\ns_waitcnt lgkmcnt(0)")
    for i in range(4): srd(A, 20 + 4 * i, 52 + 2 * i, 147456)
    srd(A, 36, 60, 1152)
    A("s_add_u32 s44, s42, 5\ns_add_u32 s45, s46, 512\ns_cmp_eq_u32 s10, 3\ns_cselect_b32 s44, s45, s44")
    for ch, r in ((42, 176), (44, 192)):
        A("s_lshl_b32 s3, s%d, 8\nv_lshlrev_b32 v2, 1, v1\nv_add_u32 v2, s3, v2", ch)
        kgen_params(A, ch, r)
        A("v_add_u32 v2, 128, v2")
        kgen_params(A, ch, r + 5)
        if ch == 42: A("s_cmp_eq_u32 s41, 1\ns_cbranch_scc1 cv_k")
    A("cv_k:")
    A("v_lshlrev_b32 v10, 3, v1\nv_add_u32 v10, s43, v10\nv_mov_b32 v12, 0\nv_mov_b32 v13, 0\nds_write_b64 v10, v[12:13]")
    A("v_and_b32 v10, 7, v1\nv_lshlrev_b32 v10, 3, v10\nv_add_u32 v10, s43, v10\nds_write_b64 v10, v[12:13] offset:4608")
    A("s_mul_i32 s3, s10, %d\ns_add_u32 s3, s3, %d", 32 * KRS, 9 * CSLOT)
    kgen_addr(A, 3)
    A("s_waitcnt vmcnt(0)")
    for i in range(5): A("v_mov_b32 v%d, v%d", 4 + i, 176 + i)
    kgen_half(A, True)
    for i in range(5): A("v_mov_b32 v%d, v%d", 4 + i, 181 + i)
    kgen_half(A, False)
    A("s_add_u32 s3, s43, %d", 4608 + 64)
    kgen_expand(A, 3, lambda r, n, va, off: A("ds_write_b%d v%d, %s offset:%d", 32 * n, va, vr(r, n), off))
    nxt = "s_add_u32 s%d, s%d, 5\ns_add_u32 s25, s46, 512\ns_cmp_eq_u32 s10, 3\ns_cselect_b32 s%d, s25, s%d\ns_add_u32 s%d, s%d, %d"
    A("s_add_u32 s40, s40, 1\ns_cmp_eq_u32 s40, s41\ns_cbranch_scc1 cv_kd")
    for i in range(10): A("v_mov_b32 v%d, v%d", 176 + i, 192 + i)
    A("s_add_u32 s43, s43, %d", 5 * CSLOT)
    A("s_branch cv_k\ncv_kd:\ns_lshl_b32 s28, s46, 3\ns_add_u32 s28, s28, s10\ns_mul_i32 s29, s10, %d\ns_mov_b32 s43, s29\ns_mov_b32 s23, s47", CSLOT)
    stamp(A, 7)
    A("s_cmp_lg_u32 s10, 4\ns_cbranch_scc1 cv_nw")
    srd(A, 4, P_DBG, 256)
    poll_all(A, "cvgo", 1, 0, 1)
    srd(A, 4, P_WS, SZ_F, WS_F)
    wait_ln(A, "cvln")
    A("v_mov_b32 v191, 1\nds_write_b32 v190, v191\ncv_nw:")
    A("s_mov_b32 s24, 0\ncv_w:\nds_read_b32 v191, v190\ns_add_u32 s24, s24, 1\ns_waitcnt lgkmcnt(0)\nv_readfirstlane_b32 s25, v191")
    A("s_cmp_ge_u32 s24, 0x400000\ns_cbranch_scc1 cv_wd\ns_cmp_lg_u32 s25, 0\ns_cbranch_scc1 cv_wd\ns_sleep 2\ns_branch cv_w\ncv_wd:")
    srd(A, 12, P_WS, SZ, WS_XT); srd(A, 48, P_WS, SZ, WS_YC)
    A("v_lshrrev_b32 v3, 3, v1\nv_and_b32 v3, 2, v3\nv_xor_b32 v3, v3, v1\nv_lshlrev_b32 v4, 10, v3\nv_lshlrev_b32 v3, 7, v3")
    A("s_lshl_b32 s25, s46, 15\ns_lshl_b32 s3, s10, 4\ns_add_u32 s25, s25, s3\ns_add_u32 s3, s43, 512")
    def fetch(v, base, step, slot):
        for i in range(4): A("s_add_u32 m0, s3, %d\ns_add_u32 s24, s25, %d\nbuffer_load_dwordx4 v%d, s[12:15], s24 offen lds", 1024 * i + slot, step * i + base, v)
    fetch(3, 0, 8192, 0)
    A("s_cmp_eq_u32 s41, 1\ns_cbranch_scc1 cv_ch\ns_cmp_eq_u32 s10, 3\ns_cbranch_scc1 cv_f9")
    fetch(3, 80, 8192, 5 * CSLOT)
    A("s_branch cv_ch\ncv_f9:\ns_lshl_b32 s25, s46, 4")
    fetch(4, 1 << 21, 65536, 5 * CSLOT)
    VU, VK, U, KF, ACC = 4, 12, 16, 48, 80
    A("cv_ch:")
    if OPT["noconv"] == "1": A("s_branch cv_done")
    A("s_mov_b32 s34, 0\ns_mov_b32 s35, 0x80000000")
    A("v_lshrrev_b32 v13, 4, v1\nv_and_b32 v14, 3, v1\nv_bfe_u32 v15, v1, 2, 2")
    A("v_and_b32 v16, 1, v13\nv_lshrrev_b32 v17, 1, v13")
    A("v_lshlrev_b32 v18, 5, v16\nv_lshl_add_u32 v18, v14, 3, v18\nv_lshl_add_u32 v18, v17, 6, v18\nv_lshl_add_u32 v18, v15, 3, v18")
    A("v_add_u32 v18, %d, v18\nv_add_u32 v%d, s29, v18", 4608 + 8, VK)
    A("v_lshl_add_u32 v18, v16, 2, v14\nv_sub_u32 v18, v18, v17\nv_lshlrev_b32 v18, 1, v18")
    A("v_sub_u32 v19, 3, v15\nv_lshlrev_b32 v19, 3, v19\nv_add_u32 v19, s29, v19")
    for km in range(4):
        for sec in range(2):
            A("v_add_u32 v20, %d, v18\nv_bfe_u32 v21, v20, 3, 1\nv_xor_b32 v20, v20, v21\nv_lshl_add_u32 v%d, v20, 5, v19", 17 - 4 * km - sec, VU + 2 * km + sec)
    rdU = lambda km, d: ["ds_read_b64_tr_b16 %s, v%d offset:%d" % (vr(U + 4 * d + 2 * s, 2), VU + 2 * km + s, 512 * d) for s in range(2)]
    rdK = lambda km, k: ["ds_read_b64_tr_b16 %s, v%d offset:%d" % (vr(KF + 4 * k + 2 * s, 2), VK, 512 * k + 128 * km + 32 * s) for s in range(2)]
    A("s_waitcnt vmcnt(0) lgkmcnt(0)")
    if OPT["stamp"] == "1": stamp(A, 1); A("s_waitcnt lgkmcnt(0)")
    pend = []
    def issue(key, ins):
        for x in ins: A(x); pend.append(key)
    def wait(keys):
        last = max([i for i, k in enumerate(pend) if k in keys], default=-1)
        if last >= 0:
            n = min(15, len(pend) - 1 - last)
            A("s_waitcnt lgkmcnt(%d)", n)
            del pend[:len(pend) - n]
    for i in range(8):
        issue(("K", 7 - i), rdK(0, 7 - i)); issue(("U", i), rdU(0, i))
    for km in range(4):
        for k in range(7, -1, -1):
            for d in range(8 - k):
                wait({("K", k), ("U", d)})
                a = vr(ACC + 16 * (k + d), 16)
                A("v_mfma_f32_32x32x16_bf16 %s, %s, %s, %s", a, vr(U + 4 * d, 4), vr(KF + 4 * k, 4), "0" if km == 0 and d == 0 else a)
                if km < 3 and k == 0: issue(("U", d), rdU(km + 1, d))
            if km < 3: issue(("K", k), rdK(km + 1, k))
    Zr = lambda G, s: ACC + 4 * G + s
    A("v_mov_b32 v16, 0")
    for s in (3, 2, 1):
        for G in range(31, -1, -1): A("v_cndmask_b32 v%d, v%d, v%d, s[34:35]", Zr(G, s), Zr(G, s), Zr(G - 1, s) if G else 16)
        for G in range(31, -1, -1): A("v_add_f32_dpp v%d, v%d, v%d wave_ror:1 row_mask:0xf bank_mask:0xf", Zr(G, s - 1), Zr(G, s), Zr(G, s - 1))
    A("v_lshlrev_b32 v17, 2, v1\ns_lshl_b32 s25, s28, 12")
    for p in range(15, -1, -1):
        A("v_cvt_pk_bf16_f32 v%d, v%d, v%d\nbuffer_store_dword v%d, v17, s[48:51], s25 offen offset:%d sc1", U + 4 + p, Zr(2 * p, 0), Zr(2 * p + 1, 0), U + 4 + p, 256 * p)
    A("s_sub_u32 s41, s41, 1\ns_cmp_eq_u32 s41, 0\ns_cbranch_scc1 cv_done")
    A(nxt, 28, 28, 28, 28, 29, 29, 5 * CSLOT)
    A("s_branch cv_ch")
    A("cv_agent:")
    dep = int(OPT["adepth"])
    A("s_sub_u32 s11, s11, 24\ns_waitcnt lgkmcnt(0)")
    srd(A, 12, P_W1, SZ_W); srd(A, 16, P_W2, SZ_W); srd(A, 4, P_WS, SZ_F, WS_F)
    A("s_cmp_lg_u32 s2, 255\ns_cbranch_scc1 ag_nz\nv_lshlrev_b32 v4, 7, v1\nv_mov_b32 v5, 0")
    for i in range(6): A("buffer_store_dword v5, v4, s[4:7], 0 offen sc1\nv_add_u32 v4, 8192, v4")
    srd(A, 40, P_DBG, 256)
    A("v_mov_b32 v6, 1\ns_waitcnt vmcnt(0)\ns_mov_b64 exec, 1\nbuffer_store_dword v6, v5, s[40:43], 0 offen sc1\ns_mov_b64 exec, -1\nag_nz:")
    if OPT["cpf"] == "1":
        A("s_getpc_b64 s[40:41]\nag_pc:\ns_sub_u32 s40, s40, ag_pc-%s\ns_subb_u32 s41, s41, 0", NAME + "_kernel")
        A("s_lshl_b32 s25, s11, 13\nv_lshl_add_u32 v4, v1, 7, s25\nv_min_u32 v4, k2_end-%s, v4", NAME + "_kernel")
        A("v_mov_b32 v7, s41\nv_add_co_u32 v6, vcc, s40, v4\nv_addc_co_u32 v7, vcc, 0, v7, vcc\nglobal_load_dword v20, v[6:7], off")
    A("s_setprio 3\nv_lshrrev_b32 v4, 3, v1\nv_and_b32 v5, 7, v1\nv_mul_u32_u24 v8, 9216, v4\nv_lshl_add_u32 v8, v5, 7, v8")
    A("v_lshl_add_u32 v9, v4, 6, v5\nv_mul_u32_u24 v9, 9216, v9\nv_add_u32 v9, 1024, v9")
    A("v_lshrrev_b32 v10, 4, v1\nv_lshlrev_b32 v10, 12, v10\nv_and_b32 v11, 15, v1\nv_lshl_add_u32 v10, v11, 7, v10")
    A("s_mul_i32 s56, s3, 1152\ns_mul_i32 s25, s11, %d\ns_add_u32 s56, s56, s25", 8 * 9216)
    A("s_lshr_b32 s58, s3, 1\ns_mul_i32 s58, s58, %d\ns_and_b32 s25, s3, 1\ns_lshl_b32 s25, s25, 11\ns_add_u32 s58, s58, s25\ns_lshl_b32 s25, s11, 14\ns_add_u32 s58, s58, s25", 1152 * 4096)
    A("v_lshlrev_b32 v12, 7, v1\nv_mul_u32_u24 v13, 18432, v4\nv_lshl_add_u32 v13, v5, 7, v13\nv_add_u32 v13, 8192, v13")
    A("s_lshr_b32 s57, s11, 1\ns_mul_i32 s57, s57, 589824\ns_and_b32 s25, s11, 1\ns_mul_i32 s25, s25, 9216\ns_add_u32 s57, s57, s25")
    srd(A, 36, P_WS, SZ, WS_HT)
    parts = OPT["sched"].split(",")
    seq = "".join(p if p == "S" else p[0] * int(p[1:]) for p in parts[:-1]) + parts[-1] * 80 + "hwv" * 40
    nw, nv, nh, n2 = 64 * int(OPT["gp0"]) // 9, 0, 0 if "h" in OPT["sched"] else 32, int(OPT["agw2"])
    w0 = nw
    A("s_add_u32 s56, s56, %d", nw * 64 * 9216)
    for c in seq:
        if c == "S":
            stamp(A, 7)
            srd(A, 40, P_DBG, 256)
            poll_all(A, "aggo", 1, 0, 1, 40)
            wait_ln(A, "agln")
            stamp(A, 1)
        if c == "w" and nw < 32:
            if (nw - w0) % 8 == 0: A("buffer_load_dword v20, v9, s[12:15], s56 offen\ns_waitcnt vmcnt(%d)", dep)
            A("buffer_load_dword v20, v8, s[12:15], s56 offen\ns_add_u32 s56, s56, %d\ns_waitcnt vmcnt(%d)", 64 * 9216, dep); nw += 1
            if nw == 32: stamp(A, 3)
        if c == "h" and nh < 32:
            if nh % 8 == 0: A("buffer_load_dword v20, v13, s[36:39], s57 offen %s\ns_waitcnt vmcnt(%d)", OPT["af1"], dep)
            A("buffer_load_dword v20, v12, s[36:39], s57 offen %s\ns_add_u32 s57, s57, 18432\ns_waitcnt vmcnt(%d)", OPT["af1"], dep); nh += 1
            if nh == 32: stamp(A, 5)
        if c == "v" and nv < n2:
            k = n2 - 1 - nv if OPT["w2rev"] == "1" else nv
            A("s_add_u32 s25, s58, %d\nbuffer_load_dword v20, v10, s[16:19], s25 offen\ns_waitcnt vmcnt(%d)", k * 8 * 16384, dep); nv += 1
    assert nw == 32 and nv == n2 and nh == 32
    A("cv_done:")
    stamp(A, 2)
    A("s_setprio 0\ns_cmp_ge_u32 s10, 4\ns_cbranch_scc1 g2_load\ns_barrier\ns_branch g2_cons")

def gemm2(A):
    NS, SB, BB = 4, 16384, 4 * 18432
    ids = "s_bfe_u32 s27, s2, 0x20001\ns_and_b32 s28, s2, 1\ns_lshl_b32 s28, s28, 3\ns_lshr_b32 s3, s2, 5\ns_add_u32 s28, s28, s3\ns_bfe_u32 s29, s2, 0x20003"
    A("g2_load:")
    A(ids)
    A("v_lshlrev_b32 v2, 4, v1\nv_lshrrev_b32 v7, 4, v1\nv_and_b32 v8, 15, v1")
    modadd(A, 30, 3, 0, 6)
    for i in range(4):
        A("v_add_u32 v9, %d, v7\nv_and_b32 v10, 7, v9\nv_lshlrev_b32 v10, 1, v10\nv_xor_b32 v10, v10, v8\nv_lshlrev_b32 v9, 12, v9\nv_lshl_add_u32 v9, v10, 4, v9\nv_subrev_u32 v%d, %d, v9", 4 * i, 3 + i, 1024 * i)
    A("s_mul_i32 s20, s29, %d\ns_mul_i32 s25, s27, %d\ns_add_u32 s20, s20, s25", 576 * 2304, 144 * 2304)
    A("s_mul_i32 s21, s27, %d\ns_lshl_b32 s25, s28, 8\ns_add_u32 s21, s21, s25", 1152 * 4096)
    srd(A, 12, P_WS, SZ_H, WS_H); srd(A, 16, P_W2, SZ_W); srd(A, 4, P_WS, SZ_F, WS_F)
    A("s_lshl_b32 s22, s27, 2\ns_add_u32 s22, s22, s29\ns_lshl_b32 s22, s22, 7\ns_add_u32 s22, s22, %d", F_H)
    A("s_waitcnt vmcnt(0)\ns_barrier")
    def gate(w):
        A("s_barrier")
        if w == 4:
            if OPT["st2"] == "1": stamp(A, 7)
            A("s_cmp_eq_u32 s23, 0\ns_cbranch_scc1 g2_c")
            arrive(A, 23)
            A("g2_c:")
            if OPT["st2"] == "1": A("s_waitcnt vmcnt(0)"); stamp(A, 1)
            poll(A, "g2h", 22, 12)
            if OPT["st2"] == "1": stamp(A, 2)
        A("s_barrier")
    lam = int(OPT["lam2"])
    if OPT["dist2"] == "0": plan = lambda a, b: [([[a(1)], [a(2), a(3)]], lam), ([[a(4), a(5)], [b(1)]], lam), ([[a(0), b(0)]], NS - 2), ([[b(2)], [b(3)]], lam)]
    elif OPT["dist2"] == "1": plan = lambda a, b: [([[a(1)], [a(2), a(3)]], lam), ([[a(4), a(5, [0, 1])], [b(1)]], lam), ([[a(0), b(0)]], NS - 2), ([[b(2), a(5, [2])], [b(3)]], lam)]
    else: plan = lambda a, b: [([[a(0), a(1, [0])], [b(0)]], lam), ([[a(2), a(1, [1, 2])], [b(1)]], lam), ([[a(3), a(4, [0])], [b(2)]], lam), ([[a(5), a(4, [1, 2])], [b(3)]], lam)]
    loaders(A, "g2l", 18, NS, dict(last=lambda: poll_all(A, "g2y", 16, F_ALL, 16), vb=(3, 4, 5, 6), bg_g=16 * 4096, bg_l=4096, baseB=BB, slotB=SB, b_stride=64 * 4096, aflag=OPT["af2"] + " " + OPT["nt2"], bflag=OPT["nt2"], stamp=4), plan,
            lambda w: A("s_branch g2_l0") if w == 4 else endpgm(A, 1), gate)
    def fin_setup(nt):
        A("s_lshl_b32 s33, s28, 2\ns_add_u32 s33, s33, s29\ns_lshl_b32 s33, s33, 2")
        srd(A, 12, P_WS, SZ_P, WS_P); srd(A, 16, P_WS, SZ, WS_BASE); srd(A, 52, P_WS, SZ, WS_YC); srd(A, 36, P_B2, 4096); srd(A, 40, P_OUT, SZ)
        A("v_lshlrev_b32 v184, 4, v1\nv_lshrrev_b32 v189, 4, v1\nv_and_b32 v190, 15, v1\ns_lshl_b32 s3, s27, 4\nv_add_u32 v190, s3, v190")
        A("s_lshl_b32 s3, s28, 7\nv_add_u32 v186, s3, v190\nv_lshlrev_b32 v187, 1, v186\nv_mul_u32_u24 v185, 1152, v186")
        A("s_mul_i32 s30, s29, 144\ns_lshl_b32 s3, s10, 5\ns_add_u32 s30, s30, s3\ns_mov_b32 s44, %d", 64 * 1152)
        A("v_lshlrev_b32 v189, %d, v189\nv_add_u32 v189, s30, v189\nv_lshl_add_u32 v185, v189, 1, v185", 1 + nt)
        A("v_lshlrev_b32 v186, 12, v189\nv_lshl_add_u32 v186, v190, 2, v186\ns_lshl_b32 s3, s28, 8\nv_add_u32 v186, s3, v186")
        A("s_add_u32 s23, s33, s27\ns_mul_i32 s31, s23, %d\ns_lshl_b32 s34, s10, 11\ns_add_u32 s31, s31, s34\ns_lshl_b32 s23, s23, 7", 4 * 9216)
        A("s_lshl_b32 s34, s10, 12\nv_add_u32 v188, s34, v184")
        for k in range(1, 4):
            A("s_add_u32 s3, s27, %d\ns_and_b32 s3, s3, 3\ns_mul_i32 s3, s3, 9216\ns_add_u32 s%d, s3, s31", k, 44 + k)
        A("s_add_u32 s49, s33, s10\ns_lshl_b32 s48, s49, 2\ns_add_u32 s48, s48, s27\ns_mul_i32 s48, s48, 9216\ns_lshl_b32 s49, s49, 7")
    A("g2_cons:")
    A(ids)
    ACC, FX, FY = 8, 80, 124
    A("v_lshrrev_b32 v6, 4, v1\nv_and_b32 v7, 15, v1\nv_mul_u32_u24 v76, 2304, v6\nv_lshl_add_u32 v76, v7, 4, v76\nv_add_u32 v77, %d, v76", 3 * 18432)
    A("v_lshrrev_b32 v6, 2, v1\nv_and_b32 v7, 7, v6\nv_lshlrev_b32 v6, 8, v6\nv_and_b32 v8, 3, v1\nv_lshl_add_u32 v6, v8, 3, v6\nv_add_u32 v6, %d, v6", BB)
    A("v_xor_b32 v7, s10, v7\nv_lshl_add_u32 v4, v7, 5, v6\nv_xor_b32 v7, 4, v7\nv_lshl_add_u32 v5, v7, 5, v6")
    A("s_waitcnt vmcnt(0)\ns_barrier")
    if OPT["lnst"] != "1": stamp(A, 3)
    A("v_mov_b32 v2, v76\nv_mov_b32 v3, v77")
    for r in range(ACC, ACC + 72): A("v_mov_b32 v%d, 0", r)
    srd(A, 4, P_WS, SZ_F, WS_F)
    A("s_cmp_lg_u32 s10, 0\ns_cbranch_scc1 g2_na\ns_and_b32 s22, s2, 15\ns_lshl_b32 s22, s22, 7\ns_add_u32 s22, s22, %d", F_ALL)
    arrive(A, 22, 168)
    A("g2_na:")
    fin_setup(2)
    A("s_waitcnt lgkmcnt(0)\ns_barrier")
    def reads(slot, ks, st):
        F = FY if st else FX
        o = (0 if slot == 3 else slot) * 18432 + ks * 9216
        a = ["ds_read_b128 %s, v%d offset:%d" % (vr(F + 8 + 4 * t, 4), 3 if slot == 3 else 2, o + 256 * t) for t in range(9)]
        b = ["ds_read_b64_tr_b16 %s, v%d offset:%d" % (vr(F + 4 * j + 2 * h, 2), 4 + j, slot * SB + ks * 8192 + h * 4096) for j in range(2) for h in range(2)]
        return b + a
    def mfmas(st):
        F = FY if st else FX
        return ["v_mfma_f32_16x16x32_bf16 %s, %s, %s, %s" % (vr(ACC + 8 * t + 4 * j, 4), vr(F + 8 + 4 * t, 4), vr(F + 4 * j, 4), vr(ACC + 8 * t + 4 * j, 4)) for t in range(9) for j in range(2)]
    consumer(A, "g2c", 18, NS, reads, mfmas, pat(OPT["gap2"]), (4, 5) if OPT["lnst"] != "1" else (6, 6))
    OWN = 2 * 18432
    def body(nt):
        nd = 4 * nt; P, R, Y, B, B2, T = 168, 124, 148, 156, 164, 166
        w = "x4" if nt == 2 else "x2"
        def residual_loads():
            A("buffer_load_dword%s %s, v185, s[16:19], 0 offen sc1\nbuffer_load_dword%s %s, v185, s[16:19], s44 offen sc1", w, vr(B, 2 * nt), w, vr(B + 4, 2 * nt))
            A("buffer_load_ushort v%d, v187, s[36:39], 0 offen\nbuffer_load_ushort v%d, v187, s[36:39], 0 offen offset:128\ns_mov_b32 s3, 0", B2, B2 + 1)
            for e in range(nd): A("buffer_load_dword v%d, v186, s[52:55], s3 offen sc1\ns_add_u32 s3, s3, 4096", Y + e)
        if nt == 2:
            A("s_cmp_eq_u32 s10, s27\ns_cbranch_scc1 g2_own")
            for t in range(9):
                if t % 4 == 0 and t: A("s_add_u32 s48, s48, 4096")
                for i in range(4): A("v_cvt_pk_bf16_f32 v%d, v%d, v%d", FX + 4 * t + i, ACC + 8 * t + 2 * i, ACC + 8 * t + 2 * i + 1)
                A("buffer_store_dwordx4 %s, v184, s[12:15], s48 offen offset:%d sc1", vr(FX + 4 * t, 4), 1024 * (t % 4))
            residual_loads()
            A("s_waitcnt vmcnt(%d)", nd + 4)
            if OPT["st2"] == "1": stamp(A, 7)
            arrive(A, 49)
            A("s_branch g2_fin\ng2_own:")
            for tl in range(18): A("ds_write_b128 v184, %s offset:%d", vr(ACC + 4 * tl, 4), OWN + 1024 * tl)
            residual_loads()
            A("g2_fin:")
        else:
            fin_setup(1)
            residual_loads()
        A("s_waitcnt vmcnt(0) lgkmcnt(0)")
        res = lambda j, e: 8 + nd * j + e
        for j in range(2):
            A("v_lshlrev_b32 v%d, 16, v%d", B2 + j, B2 + j)
            for e in range(0, nd, 2):
                unpack(A, res(j, e), res(j, e) + 1, B + 4 * j + e // 2)
                A("v_pk_add_f32 %s, %s, %s op_sel:[0,%d] op_sel_hi:[1,%d]", vr(res(j, e), 2), vr(res(j, e), 2), vr(B2, 2), j, j)
        for e in range(nd):
            unpack(A, T, T + 1, Y + e)
            A("v_add_f32 v%d, v%d, v%d\nv_add_f32 v%d, v%d, v%d", res(0, e), res(0, e), T, res(1, e), res(1, e), T + 1)
        if nt == 1:
            if OPT["st2"] == "1": stamp(A, 3)
            poll(A, "g2x", 23, 3)
            if OPT["st2"] == "1": stamp(A, 5)
        A("s_barrier")
        if nt == 2 and OPT["st2"] == "1": stamp(A, 1); A("s_waitcnt lgkmcnt(0)")
        for q in range(3):
            for i in range(nt): A("buffer_load_dwordx4 %s, v184, s[12:15], s%d offen offset:%d sc1", vr(R + 8 * q + 4 * i, 4), 45 + q, 1024 * i)
        for i in range(2 * nt): A("ds_read_b128 %s, v188 offset:%d", vr(P + 4 * i, 4), OWN + 1024 * i)
        src = lambda j, e: P + 4 * (2 * (e >> 2) + j) + (e & 3)
        A("s_waitcnt lgkmcnt(0)")
        for j in range(2):
            for e in range(0, nd, 2): A("v_pk_add_f32 %s, %s, %s", vr(src(j, e), 2), vr(src(j, e), 2), vr(res(j, e), 2))
        for q in range(3):
            A("s_waitcnt vmcnt(%d)", (2 - q) * nt)
            for i in range(4 * nt): unpack(A, 8 + 2 * i, 9 + 2 * i, R + 8 * q + i)
            for i in range(4 * nt): A("v_pk_add_f32 %s, %s, %s", vr(P + 2 * i, 2), vr(P + 2 * i, 2), vr(8 + 2 * i, 2))
        if nt == 2 and OPT["st2"] == "1": stamp(A, 2)
        for j in range(2):
            for e in range(nd // 2): A("v_cvt_pk_bf16_f32 v%d, v%d, v%d", R + 4 * j + e, src(j, 2 * e), src(j, 2 * e) + 1)
            A("buffer_store_dword%s %s, v185, s[40:43], %s offen %s", w, vr(R + 4 * j, 2 * nt), "s44" if j else "0", OPT["osc1"])
        endpgm(A, 1)
    body(2)
    A("g2_l0:")
    body(1)

def k2(A):
    head(A, NAME + "_kernel")
    A("s_cmp_ge_u32 s2, 256\ns_cbranch_scc1 k2_end")
    A("s_load_dwordx16 s[84:99], s[0:1], 56\ns_load_dwordx2 s[%d:%d], s[0:1], %d\ns_load_dwordx2 s[%d:%d], s[0:1], %d", P_X, P_X + 1, ARG["x"], P_DSK, P_DSK + 1, ARG["dsk"])
    wave_id(A, 10); stamp_init(A, 10)
    A("s_and_b32 s3, s2, 7\ns_lshr_b32 s11, s2, 3\ns_cmp_ge_u32 s11, 24\ns_cbranch_scc1 k2_cv")
    gemm1(A)
    A("k2_cv:")
    conv(A)
    gemm2(A)
    A("k2_end:\ns_endpgm")

def build():
    out = ["; S4D convolution + token-mixing MLP, generated instruction stream"]
    out.append("; @launch grid=(256,1,1) block=(512,1,1) lds=%d" % (5 * 30720))
    out.append('.amdgcn_target "amdgcn-amd-amdhsa--gfx950"\n.text')
    A = Asm(); k2(A)
    t, n = A.text()
    sys.stderr.write("%d lines, %d nops inserted\n" % (len(A.l), n))
    out.append(t)
    out.append('.section .rodata,"a"')
    out.append(kd(NAME + "_kernel", 208))
    return "\n".join(out), None

if __name__ == "__main__":
    for a in sys.argv[2:]:
        k, v = a.split("=", 1)
        assert k in OPT, k
        OPT[k] = v
    t = build()[0]
    open(sys.argv[1], "w").write(t)
```

```python
import sys, math, struct
from asmlib import *

NAME = "parallel_sum__ssm_conv_s4d__mixer_token_mlp__prompt"
SZ = 2359296
WS_HT, WS_XT, WS_BASE, WS_K, WS_YC = 0, SZ, 2 * SZ, 3 * SZ, 4 * SZ
WS_H = 5 * SZ
SZ_H = 5308416
WS_P = WS_H + SZ_H
SZ_P = 256 * 4 * 9216
SZ_W = 18874368
ARG = dict(x=0, loga=8, aim=16, cr=24, ci=32, logdt=40, dsk=48, w1=64, b1=72, w2=80, b2=88, out=96, dbg=104, ws=112)
OPT = dict(stamp="0", cyc="0", lam1="4", lam2="4", a0="0", b0="0", adepth="2", agh="1", agw1="16", agh0="8", agw2="36", s1="2",
           gap1="21111111111111", gap2="111111111111111111", age="7", prio="0", noconv="0", lnst="0", nt1="", nt2="", dist="4", lprio="3", dist2="1", st2="0", ht="0", htb="1", gp0="0", htl="4", sched="w14,S,w18,v", w2rev="0", cpf="1", rord="0", c3="3", af1="sc1", af2="sc1", gpf="0", nrep="16", psleep="2", lnprio="3", gsleep="8", osc1="", sent="0", drain1="0", g1="128", hv="1", hdepth="2", agst="0", nokgen="0", hk="5", plan1="3", bf1="", bf2="", noagent="0", elead="3", agdelay="0")
WS_Q = WS_P + SZ_P
SZ_Q = 144 * 36864
WS_F = WS_Q + SZ_Q
F_EX, F_H, F_ALL, F_Q, F_LN, F_REL, SZ_F = 0, 32768, 34816, 36864, 73728, 75776, 79872
LDS_SIZE = 4 * 34816 + 18432
LCNT = LDS_SIZE - 64
P_X, P_DSK, P_W1, P_B1, P_W2, P_B2, P_OUT, P_DBG, P_WS = 6, 8, 86, 88, 90, 92, 94, 96, 98
WS_ST = 128 << 20

def stamp(A, k):
    if OPT["stamp"] == "1": A("%s s[%d:%d]", "s_memtime" if OPT["cyc"] == "1" else "s_memrealtime", 64 + 2 * k, 65 + 2 * k)

def stamp_init(A, wave):
    if OPT["stamp"] == "1":
        for k in range(8): A("s_mov_b32 s%d, 0", 64 + 2 * k)
        A("s_mov_b32 s63, s%d\ns_load_dwordx2 s[100:101], s[0:1], %d\ns_memtime s[80:81]", wave, ARG["ws"])
        stamp(A, 0)

def endpgm(A, kidx):
    if OPT["stamp"] == "1":
        A("s_waitcnt vmcnt(0)")
        stamp(A, 6)
        A("s_memtime s[82:83]\ns_waitcnt lgkmcnt(0)\ns_sub_u32 s62, s82, s80\ns_mov_b64 exec, 1\nv_mov_b32 v16, s62")
        srd(A, 12, 100, 2 << 20, WS_ST)
        A("s_add_u32 s62, s2, %d\ns_lshl_b32 s62, s62, 3\ns_add_u32 s62, s62, s63\ns_lshl_b32 s62, s62, 6\nv_mov_b32 v0, s62", 1024 * kidx)
        for k in range(8): A("v_mov_b32 v%d, s%d", 8 + k, 64 + 2 * k)
        A("buffer_store_dwordx4 v[8:11], v0, s[12:15], 0 offen\nbuffer_store_dwordx4 v[12:15], v0, s[12:15], 0 offen offset:16\nbuffer_store_dword v16, v0, s[12:15], 0 offen offset:32")
    A("s_endpgm")


def f2u(f): return struct.unpack("<I", struct.pack("<f", f))[0]
def hx(f): return "0x%08x" % f2u(f)

def srd(A, d, b, size, off=0):
    if off:
        A("s_add_u32 s%d, s%d, %d\ns_addc_u32 s%d, s%d, 0", d, b, off, d + 1, b + 1)
    else:
        A("s_mov_b32 s%d, s%d\ns_mov_b32 s%d, s%d", d, b, d + 1, b + 1)
    A("s_mov_b32 s%d, %d\ns_mov_b32 s%d, 0x20000", d + 2, size, d + 3)

def head(A, k):
    A(".p2align 8\n.globl %s\n.type %s,@function\n%s:", k, k, k)

def kd(k, nv, ns=102):
    acc = min(256, (nv + 3) // 4 * 4)
    return (".p2align 6\n.amdhsa_kernel %s\n  .amdhsa_next_free_vgpr %d\n  .amdhsa_next_free_sgpr %d\n  .amdhsa_accum_offset %d\n"
            "  .amdhsa_group_segment_fixed_size 0\n  .amdhsa_kernarg_size 120\n  .amdhsa_user_sgpr_count 2\n"
            "  .amdhsa_user_sgpr_kernarg_segment_ptr 1\n  .amdhsa_system_sgpr_workgroup_id_x 1\n"
            "  .amdhsa_float_denorm_mode_32 3\n.end_amdhsa_kernel\n") % (k, nv, ns, acc)

def wave_id(A, s, lane=1):
    A("v_lshrrev_b32 v%d, 6, v0\nv_readfirstlane_b32 s%d, v%d\nv_and_b32 v%d, 63, v0", lane, s, lane, lane)

RS = 1216
def reduce32(A, a, b):
    for m in ("quad_perm:[1,0,3,2]", "quad_perm:[2,3,0,1]", "row_half_mirror", "row_mirror"):
        A("v_add_f32_dpp v%d, v%d, v%d %s row_mask:0xf bank_mask:0xf", a, a, a, m)
    A("v_mov_b32 v%d, v%d\nv_permlane16_swap_b32 v%d, v%d\nv_add_f32 v%d, v%d, v%d", b, a, a, b, a, a, b)

def unpack(A, lo, hi, src):
    A("v_lshlrev_b32 v%d, 16, v%d\nv_and_b32 v%d, 0xffff0000, v%d", lo, src, hi, src)

def rbf(A, d, s):
    A("v_cvt_pk_bf16_f32 v%d, v%d, v%d\nv_and_b32 v%d, 0xffff0000, v%d", d, s, s, d, d)

def layernorm(A, a, t, p, m, unpack_out):
    BC = "op_sel:[0,0] op_sel_hi:[1,0]"
    for i in range(4): A("v_pk_add_f32 %s, %s, %s", vr(t + 2 * i, 2), vr(a + 4 * i, 2), vr(a + 4 * i + 2, 2))
    A("v_pk_add_f32 %s, %s, %s\nv_pk_add_f32 %s, %s, %s", vr(t, 2), vr(t, 2), vr(a + 16, 2), vr(t + 2, 2), vr(t + 2, 2), vr(t + 4, 2))
    A("v_pk_add_f32 %s, %s, %s\nv_pk_add_f32 %s, %s, %s", vr(t, 2), vr(t, 2), vr(t + 6, 2), vr(m, 2), vr(t, 2), vr(t + 2, 2))
    A("v_add_f32 v%d, v%d, v%d", m, m, m + 1)
    reduce32(A, m, m + 1)
    A("v_mul_f32 v%d, %s, v%d", m, hx(1 / 576.), m)
    for i in range(9): A("v_pk_add_f32 %s, %s, %s %s neg_lo:[0,1] neg_hi:[0,1]", vr(t + 2 * i, 2), vr(a + 2 * i, 2), vr(m, 2), BC)
    for i in range(3): A("v_pk_mul_f32 %s, %s, %s", vr(t + 2 * i, 2), vr(t + 2 * i, 2), vr(t + 2 * i, 2))
    for i in range(3, 9): A("v_pk_fma_f32 %s, %s, %s, %s", vr(t + 2 * (i % 3), 2), vr(t + 2 * i, 2), vr(t + 2 * i, 2), vr(t + 2 * (i % 3), 2))
    A("v_pk_add_f32 %s, %s, %s\nv_pk_add_f32 %s, %s, %s", vr(t, 2), vr(t, 2), vr(t + 2, 2), vr(m + 2, 2), vr(t, 2), vr(t + 4, 2))
    A("v_add_f32 v%d, v%d, v%d", m + 2, m + 2, m + 3)
    rbf(A, m, m)
    for i in range(9): A("v_pk_add_f32 %s, %s, %s %s neg_lo:[0,1] neg_hi:[0,1]", vr(t + 2 * i, 2), vr(a + 2 * i, 2), vr(m, 2), BC)
    reduce32(A, m + 2, m + 3)
    A("v_mul_f32 v%d, %s, v%d", m + 2, hx(1 / 576.), m + 2)
    rbf(A, m + 2, m + 2)
    A("v_add_f32 v%d, %s, v%d", m + 2, hx(1e-5), m + 2)
    rbf(A, m + 2, m + 2)
    A("v_sqrt_f32 v%d, v%d", m + 2, m + 2)
    for i in range(9): A("v_cvt_pk_bf16_f32 v%d, v%d, v%d", p + i, t + 2 * i, t + 2 * i + 1)
    rbf(A, m + 2, m + 2)
    A("v_rcp_f32 v%d, v%d", m + 2, m + 2)
    for i in range(9): unpack(A, t + 2 * i, t + 2 * i + 1, p + i)
    for i in range(9): A("v_pk_mul_f32 %s, %s, %s %s", vr(t + 2 * i, 2), vr(t + 2 * i, 2), vr(m + 2, 2), BC)
    for i in range(9): A("v_cvt_pk_bf16_f32 v%d, v%d, v%d", p + i, t + 2 * i, t + 2 * i + 1)
    if unpack_out is not None:
        for i in range(9): unpack(A, unpack_out + 2 * i, unpack_out + 2 * i + 1, p + i)

def ln_phase(A):
    A("v_mov_b32 v126, %d\nv_mov_b32 v4, 0\nv_mov_b32 v5, 0\nv_mov_b32 v6, 0\nv_mov_b32 v7, 0\nds_write_b128 v126, v[4:7]\nds_write_b32 v126, v4 offset:16\ns_waitcnt lgkmcnt(0)\ns_barrier", LCNT)
    A("s_mul_i32 s22, s3, 24\ns_add_u32 s22, s22, s11\ns_setprio %s\ns_cmp_lt_u32 s10, 4\ns_cbranch_scc1 ln_go\ns_setprio 0", OPT["lnprio"])
    A("s_lshl_b32 s22, s3, 3\ns_add_u32 s22, s22, s11\ns_add_u32 s22, s22, 192\ns_cmp_lt_u32 s11, 8\ns_cbranch_scc1 ln_go")
    n = int(OPT["gp0"])
    if n:
        srd(A, 12, P_W1, SZ_W)
        A("s_sub_u32 s22, s11, 8\ns_lshl_b32 s22, s22, 2\ns_add_u32 s22, s22, s10\ns_sub_u32 s22, s22, 4\ns_mul_i32 s23, s3, 1152")
        for r in range(n):
            touch_w1(A, 22, 126, 2, 12, 23)
            A("s_add_u32 s22, s22, 64")
    A("s_branch ln_done\nln_go:")
    A("s_and_b32 s23, s10, 3\ns_lshl_b32 s25, s22, 3\ns_lshl_b32 s28, s23, 1\ns_add_u32 s25, s25, s28")
    A("v_lshrrev_b32 v4, 5, v1\nv_add_u32 v2, s25, v4\nv_mul_u32_u24 v2, 1152, v2")
    A("v_and_b32 v3, 31, v1\nv_lshlrev_b32 v3, 2, v3\nv_add_u32 v2, v2, v3")
    srd(A, 12, P_X, SZ)
    X, DS, XF, T, P, M, XN = 8, 17, 26, 44, 62, 72, 76
    for i in range(9): A("buffer_load_dword v%d, v2, s[12:15], 0 offen offset:%d", X + i, 128 * i)
    srd(A, 16, P_DSK, 1152)
    for i in range(9): A("buffer_load_dword v%d, v3, s[16:19], 0 offen offset:%d", DS + i, 128 * i)
    srd(A, 16, P_WS, F_LN, WS_F)
    A("s_cmp_lg_u32 s10, 0\ns_cbranch_scc1 ln_nz\ns_mul_i32 s31, s22, 384\nv_min_u32 v104, 23, v1\nv_lshlrev_b32 v104, 4, v104")
    for i in range(4): A("v_mov_b32 v%d, 0", 108 + i)
    A("buffer_store_dwordx4 v[108:111], v104, s[16:19], s31 offen sc1\nln_nz:")
    srd(A, 16, P_WS, SZ, WS_BASE)
    A("s_lshr_b32 s31, s10, 2\ns_mul_i32 s31, s31, %d", 16 * RS + 256)
    A("v_add_u32 v4, s28, v4\nv_mul_u32_u24 v4, %d, v4\nv_add_u32 v4, v4, v3\nv_add_u32 v4, s31, v4", RS)
    A("s_and_b32 s29, s10, 1\ns_lshl_b32 s29, s29, 6")
    A("v_bfe_u32 v5, v1, 2, 2\nv_mul_u32_u24 v5, %d, v5\nv_and_b32 v6, 3, v1\nv_lshl_add_u32 v5, v6, 3, v5", RS)
    A("v_lshrrev_b32 v6, 4, v1\nv_lshl_add_u32 v5, v6, 5, v5\ns_lshl_b32 s30, s29, 1\ns_add_u32 s30, s30, s31\nv_add_u32 v5, s30, v5")
    AD = 94
    A("s_cmp_ge_u32 s23, 2\ns_cbranch_scc1 ln_xt")
    srd(A, 12, P_WS, SZ, WS_HT)
    A("v_add_u32 v5, %d, v5\ns_mul_i32 s30, s22, 2304", 8 * RS)
    for j in range(5):
        A("v_add_u32 v6, s29, v1\nv_add_u32 v6, %d, v6", 128 * j)
        A("v_mul_u32_u24 v7, 3641, v6\nv_lshrrev_b32 v7, 19, v7\nv_mul_u32_u24 v99, 144, v7\nv_sub_u32 v6, v6, v99")
        A("v_and_b32 v99, 4, v6\nv_lshlrev_b32 v99, 2, v99\nv_and_b32 v100, 24, v6\nv_lshrrev_b32 v100, 1, v100\nv_or_b32 v99, v99, v100")
        A("v_and_b32 v100, 0xe3, v6\nv_or_b32 v99, v99, v100\nv_lshrrev_b32 v100, 7, v6\nv_cmp_eq_u32 s[32:33], 0, v100\nv_cndmask_b32 v6, v6, v99, s[32:33]")
        A("v_mul_u32_u24 v7, 589824, v7\nv_lshl_add_u32 v6, v6, 4, v7\nv_add_u32 v%d, s30, v6", AD + j)
    A("s_branch ln_c\nln_xt:")
    srd(A, 12, P_WS, SZ, WS_XT)
    A("s_lshl_b32 s30, s22, 7\nv_add_u32 v6, s29, v1\nv_lshrrev_b32 v7, 3, v6\nv_and_b32 v99, 7, v6\nv_lshlrev_b32 v99, 4, v99\nv_lshl_add_u32 v7, v7, 15, v99\nv_add_u32 v7, s30, v7")
    for j in range(5): A("v_add_u32 v%d, %d, v7", AD + j, j << 19)
    A("ln_c:")
    A("s_waitcnt vmcnt(9)")
    if OPT["lnst"] == "1": stamp(A, 3)
    for i in range(9): unpack(A, XF + 2 * i, XF + 2 * i + 1, X + i)
    layernorm(A, XF, T, P, M, XN)
    for i in range(9): A("ds_write_b32 v4, v%d offset:%d", P + i, 128 * i)
    srd(A, 4, P_DBG, 256)
    A("v_mov_b32 v124, 0\nbuffer_load_dword v125, v124, s[4:7], 0 offen sc1")
    layernorm(A, XN, T, P, M, None)
    for i in range(9): A("ds_write_b32 v4, v%d offset:%d", P + i, 8 * RS + 128 * i)
    A("s_waitcnt vmcnt(0)")
    for i in range(9): unpack(A, T + 2 * i, T + 2 * i + 1, DS + i)
    if OPT["lnst"] == "1": stamp(A, 4)
    A("s_lshr_b32 s31, s10, 2\ns_lshl_b32 s25, s31, 3\nv_add_u32 v126, s25, v126\nv_mov_b32 v127, 1\ns_mov_b64 exec, 1\nds_add_u32 v126, v127\ns_mov_b64 exec, -1\ns_mov_b32 s24, 0")
    A("ln_w:\nds_read_b32 v124, v126\ns_add_u32 s24, s24, 1\ns_waitcnt lgkmcnt(0)\nv_readfirstlane_b32 s25, v124\ns_cmp_ge_u32 s24, 0x400000\ns_cbranch_scc1 ln_wd\ns_cmp_lt_u32 s25, 4\ns_cbranch_scc1 ln_w\nln_wd:")
    if OPT["lnst"] == "1": stamp(A, 5); A("s_waitcnt lgkmcnt(0)")
    TR = 104
    for j in range(5):
        A("ds_read_b64_tr_b16 %s, v5 offset:%d", vr(TR + 4 * j, 2), 256 * j)
        A("ds_read_b64_tr_b16 %s, v5 offset:%d", vr(TR + 4 * j + 2, 2), 256 * j + 4 * RS)
    for i in range(9): A("v_pk_fma_f32 %s, %s, %s, %s", vr(XF + 2 * i, 2), vr(XN + 2 * i, 2), vr(T + 2 * i, 2), vr(XF + 2 * i, 2))
    for j in range(5):
        A("s_waitcnt lgkmcnt(%d)", 8 - 2 * j)
        A("buffer_store_dwordx4 %s, v%d, s[12:15], 0 offen sc1", vr(TR + 4 * j, 4), AD + j)
    for i in range(9): A("v_cvt_pk_bf16_f32 v%d, v%d, v%d", X + i, XF + 2 * i, XF + 2 * i + 1)
    for i in range(9): A("buffer_store_dword v%d, v2, s[16:19], 0 offen offset:%d sc1", X + i, 128 * i)
    A("s_waitcnt vmcnt(9)\ns_mov_b64 exec, 1\nds_add_rtn_u32 v124, v126, v127 offset:4\ns_mov_b64 exec, -1\ns_waitcnt lgkmcnt(0)\nv_readfirstlane_b32 s25, v124\ns_cmp_lg_u32 s25, 3\ns_cbranch_scc1 ln_done")
    stamp(A, 7)
    A("v_readfirstlane_b32 s25, v125\ns_cmp_lg_u32 s25, 0\ns_cbranch_scc1 ln_g")
    poll_all(A, "lngo", 1, 0, 1)
    A("ln_g:\nv_mov_b32 v124, %d\nds_write_b32 v124, v127", LCNT + 16)
    srd(A, 4, P_WS, SZ_F, WS_F)
    A("s_lshl_b32 s25, s31, 3\ns_add_u32 s25, s25, s3\ns_lshl_b32 s25, s25, 7\ns_add_u32 s25, s25, %d\nv_mov_b32 v70, s25\nv_mov_b32 v71, 1", F_LN)
    A("s_mov_b64 exec, 1\nbuffer_atomic_add v71, v70, s[4:7], 0 offen sc0 sc1\ns_mov_b64 exec, -1")
    A("s_lshl_b32 s25, s31, 11\ns_add_u32 s25, s25, %d\nv_lshlrev_b32 v72, 7, v1\nv_add_u32 v72, s25, v72\ns_lshl_b32 s24, s31, 4\ns_sub_u32 s24, 23, s24", F_REL)
    A("s_waitcnt vmcnt(0)\nv_readfirstlane_b32 s25, v71\ns_cmp_lg_u32 s25, s24\ns_cbranch_scc1 ln_done")
    A("s_mov_b64 exec, 0xffff\nbuffer_atomic_add v127, v72, s[4:7], 0 offen sc1\ns_mov_b64 exec, -1")
    A("ln_done:\ns_setprio 0")

KRS = 272
GROWS = {}
for reg, p in enumerate([0, 1, 2, 3, 256, 258, 260, 262, 264, 512, 516, 520, 768, 772, 776]): GROWS[p] = (reg & 3) + 8 * (reg >> 2)
for reg, p in enumerate([4, 5, 6, 7, 1024, 1032, 1280, 1288, 1536, 1544, 1792, 1800]): GROWS[p] = (reg & 3) + 8 * (reg >> 2) + 4
KD, KFB, KFA = 80, 96, 128

def cmul(A, z, a, b, t):
    A("v_pk_mul_f32 %s, %s, %s op_sel:[0,0] op_sel_hi:[0,1]", vr(t, 2), vr(a, 2), vr(b, 2))
    A("v_pk_fma_f32 %s, %s, %s, %s op_sel:[1,1,0] op_sel_hi:[1,0,1] neg_lo:[0,1,0]", vr(z, 2), vr(a, 2), vr(b, 2), vr(t, 2))

def touch_w1(A, sn, vd, vt, rs, so):
    a, b, c = vt, vt + 1, vt + 2
    A("s_lshl_b32 s58, s%d, 6\nv_add_u32 v%d, s58, v1\nv_mul_u32_u24 v%d, 58255, v%d\nv_lshrrev_b32 v%d, 19, v%d", sn, a, b, a, b, b)
    A("v_mul_u32_u24 v%d, 9, v%d\nv_sub_u32 v%d, v%d, v%d\nv_mul_u32_u24 v%d, 9216, v%d\nv_lshl_add_u32 v%d, v%d, 7, v%d", c, b, a, a, c, b, b, a, a, b)
    A("buffer_load_dword v%d, v%d, s[%d:%d], s%d offen", vd, a, rs, rs + 3, so)

def kgen_params(A, ch, R):
    A("s_lshl_b32 s3, s%d, 1\nv_mov_b32 v3, s3\nbuffer_load_ushort v%d, v3, s[36:39], 0 offen", ch, R + 4)
    for i in range(4): A("buffer_load_ushort v%d, v2, s[%d:%d], 0 offen", R + i, 20 + 4 * i, 23 + 4 * i)

def kgen_addr(A, base):
    A("v_lshlrev_b32 v2, 2, v1\nv_add_u32 v2, s%d, v2", base)
    A("v_and_b32 v3, 31, v1\nv_mul_u32_u24 v3, %d, v3\nv_lshrrev_b32 v9, 5, v1\nv_lshl_add_u32 v3, v9, 4, v3\nv_add_u32 v3, s%d, v3", KRS, base)

def kgen_half(A, first):
    LOG2E = 1.4426950408889634
    A("v_lshlrev_b32 v8, 16, v8\nv_lshlrev_b32 v4, 16, v4\nv_mul_f32 v8, %s, v8\nv_mul_f32 v4, %s, v4\nv_exp_f32 v8, v8\nv_exp_f32 v4, v4", hx(LOG2E), hx(LOG2E))
    for i in (5, 6, 7): A("v_lshlrev_b32 v%d, 16, v%d", i, i)
    rbf(A, 8, 8); rbf(A, 4, 4)
    A("v_mul_f32 v4, v4, v8\nv_mul_f32 v5, v5, v8\nv_mul_f32 v4, %s, v4\nv_mul_f32 v5, %s, v5", hx(-LOG2E), hx(1 / (2 * math.pi)))
    G0 = 10
    A("v_add_f32 v8, v8, v8\nv_mul_f32 v%d, v6, v8\nv_mul_f32 v%d, v7, v8", G0, G0 + 1)
    E = {}
    nxt = [12]
    def alloc():
        r = nxt[0]; nxt[0] += 2; return r
    ps = (1, 8, 64, 256, 1024)
    for p in ps: E[p] = alloc()
    X = 60
    for i, p in enumerate(ps): A("v_mul_f32 v%d, %s, v4\nv_mul_f32 v%d, %s, v5", X + 2 * i, hx(float(p)), X + 2 * i + 1, hx(float(p)))
    for i, p in enumerate(ps): A("v_fract_f32 v%d, v%d", X + 2 * i + 1, X + 2 * i + 1)
    for i, p in enumerate(ps): A("v_exp_f32 v%d, v%d\nv_cos_f32 v%d, v%d\nv_sin_f32 v%d, v%d", X + 2 * i, X + 2 * i, E[p], X + 2 * i + 1, E[p] + 1, X + 2 * i + 1)
    for i, p in enumerate(ps): A("v_pk_mul_f32 %s, %s, %s op_sel:[0,0] op_sel_hi:[1,0]", vr(E[p], 2), vr(E[p], 2), vr(X + 2 * i, 2))
    TM, PKR = 128, 144
    def cmuls(jobs):
        for i, (z, a, b) in enumerate(jobs): A("v_pk_mul_f32 %s, %s, %s op_sel:[0,0] op_sel_hi:[0,1]", vr(TM + 2 * i, 2), vr(a, 2), vr(b, 2))
        for i, (z, a, b) in enumerate(jobs):
            A("v_pk_fma_f32 %s, %s, %s, %s op_sel:[1,1,0] op_sel_hi:[1,0,1] neg_lo:[0,1,0]", vr(z, 2), vr(a, 2), vr(b, 2), vr(TM + 2 * i, 2))
    def puts(rows, neg):
        for i, (row, r) in enumerate(rows): A("v_cvt_pk_bf16_f32 v%d, v%d, %sv%d", PKR + i, r, "-" if neg else "", r + 1)
        for i, (row, r) in enumerate(rows): A("ds_write_b32 v2, v%d offset:%d", PKR + i, row * KRS)
    for p in (2, 16, 128, 512, 4, 32, 192): E[p] = alloc()
    H = {1: E[8], 2: E[16], 4: E[32]}
    for j in (3, 5, 6, 7): H[j] = alloc()
    G = {0: G0}
    for p in (1, 2, 3, 4, 6, 256, 512, 516, 1024): G[p] = alloc()
    Z = [KFB + 2 * i for i in range(8)]
    cmuls([(E[p], E[p // 2], E[p // 2]) for p in (2, 16, 128, 512)] + [(G[1], G0, E[1]), (G[256], G0, E[256]), (G[1024], G0, E[1024])])
    A("v_mov_b32 v8, 0x3f80\nds_write_b32 v2, v8")
    cmuls([(E[4], E[2], E[2]), (E[32], E[16], E[16]), (E[192], E[64], E[128]), (H[3], H[1], H[2]), (G[2], G0, E[2]), (G[3], G[1], E[2]), (G[512], G0, E[512])])
    cmuls([(H[5], H[1], H[4]), (H[6], H[2], H[4]), (H[7], H[3], H[4]), (G[4], G0, E[4]), (G[6], G[2], E[4])])
    puts([(j, H[j]) for j in range(1, 8)] + [(8, E[64]), (16, E[128]), (24, E[192])], False)
    for a in (1, 2, 3):
        cmuls([(Z[j], H[j], E[64 * a]) for j in range(1, 8)])
        puts([(8 * a + j, Z[j]) for j in range(1, 8)], False)
    for p in (768, 1280, 1536, 1792): G[p] = alloc()
    assert nxt[0] <= 72, nxt[0]
    cmuls([(G[516], G[4], E[512]), (G[768], G[512], E[256]), (G[1280], G[1024], E[256]), (G[1536], G[1024], E[512])])
    for k in range(8): A("ds_read_b128 %s, v3 offset:%d", vr(KFB + 4 * k, 4), 32 * k)
    Z = [160 + 2 * i for i in range(8)]
    cmuls([(G[1792], G[1536], E[256]), (Z[0], G[1], E[4]), (Z[1], G[3], E[4]), (Z[2], G[2], E[256]), (Z[3], G[4], E[256]), (Z[4], G[6], E[256]), (Z[5], G[516], E[256])])
    puts([(GROWS[p], G[p]) for p in (0, 1, 2, 3, 4, 6, 256, 512, 516, 1024, 768, 1280, 1536, 1792)], True)
    puts([(GROWS[p], Z[i]) for i, p in enumerate((5, 7, 258, 260, 262, 772))], True)
    e8 = (256, 512, 768, 1024, 1280, 1536, 1792)
    cmuls([(Z[i], G[p], E[8]) for i, p in enumerate(e8)])
    puts([(GROWS[p + 8], Z[i]) for i, p in enumerate(e8)], True)
    for k in range(8): A("ds_read_b128 %s, v3 offset:%d", vr(KFA + 4 * k, 4), 32 * k)
    for k in range(8):
        A("s_waitcnt lgkmcnt(%d)", 7 - k)
        A("v_mfma_f32_32x32x16_bf16 %s, %s, %s, %s", vr(KD, 16), vr(KFA + 4 * k, 4), vr(KFB + 4 * k, 4), vr(KD, 16) if k or not first else "0")

def kgen_expand(A, base, store):
    A("v_and_b32 v3, 31, v1\nv_lshlrev_b32 v3, 4, v3\nv_add_u32 v3, s%d, v3\nv_lshrrev_b32 v4, 5, v1\nv_lshl_add_u32 v4, v4, 3, v3", base)
    A("v_and_b32 v5, 1, v1\nv_cmp_eq_u32 s[44:45], 1, v5")
    def pk2(d, a, b): A("v_cvt_pk_bf16_f32 v%d, v%d, v%d", d, a, b)
    r = lambda i: KD + i
    pk2(12, r(0), r(1)); pk2(13, r(2), r(3))
    store(12, 2, 4, 0)
    O = 16
    A("s_mov_b32 exec_lo, -1\ns_mov_b32 exec_hi, 0")
    for blk, seq in ((256, ((4, 4), (5, 6), (6, 6), (7, 8))), (512, ((9, 9), (9, 10), (10, 10), (11, 11))), (768, ((12, 12), (12, 13), (13, 13), (14, 14)))):
        for i, (a, b) in enumerate(seq): pk2(O + i, r(a), r(b))
        store(O, 4, 3, 2 * blk); O += 4
    A("s_mov_b32 exec_lo, 0\ns_mov_b32 exec_hi, -1")
    for blk, a in ((1024, 4), (1280, 6), (1536, 8), (1792, 10)):
        A("v_cndmask_b32 v8, v%d, v%d, s[44:45]", r(a), r(a + 1))
        pk2(O, r(a), r(a)); pk2(O + 1, r(a), r(a)); pk2(O + 2, 8, r(a + 1)); pk2(O + 3, r(a + 1), r(a + 1))
        store(O, 4, 3, 2 * blk); O += 4
    A("s_mov_b64 exec, -1")

def loader(A, tag, nstage, nslot, units, lead, cfg, gate=None):
    nu = len(units)
    R = cfg.get("R", 40)
    st = []
    for u in units:
        g = []
        for kind, si, *sub in u:
            if kind == "A":
                A("s_mul_i32 s%d, s%d, 3072\ns_add_u32 s%d, s%d, s20", R + 1, si, R, R + 1)
            else:
                A("s_mul_i32 s%d, s%d, %d\ns_add_u32 s%d, s%d, s21", R, si, cfg["bg_g"], R, R)
                A("s_mul_i32 s%d, s%d, %d\ns_add_u32 s%d, s%d, %d", R + 1, si, cfg["bg_l"], R + 1, R + 1, cfg["baseB"])
            g.append((kind, R, sub[0] if sub else range(3 if kind == "A" else len(cfg["vb"])))); R += 2
        A("s_mov_b32 s%d, 0\ns_mov_b32 s%d, 0", R, R + 1); st.append((g, R)); R += 2
    assert R <= 50 or not cfg.get("seg") and R <= 62, R
    q = []
    def issue(u, kinds="AB"):
        g, c = st[u % nu]
        for kind, r, sub in g:
            if kind not in kinds: continue
            A("s_mov_b32 m0, s%d", r + 1)
            if kind == "A":
                A("s_add_u32 s%d, s%d, 18432", r + 1, r + 1)
                for i in sub: A("buffer_load_dwordx4 v2, s[12:15], s%d offen offset:%d %s lds", r, 1024 * i, cfg["aflag"])
                A("s_add_u32 s%d, s%d, %d", r, r, 0 if OPT["a0"] == "1" else 18432); q.extend([u // nu] * len(sub))
                if OPT["a0"] == "4": A("s_and_b32 s25, s26, 3\ns_cmp_eq_u32 s25, 3\ns_cselect_b32 s25, %d, 0\ns_sub_u32 s%d, s%d, s25", 4 * 18432, r, r)
            else:
                A("s_add_u32 s%d, s%d, %d", r + 1, r + 1, cfg["slotB"])
                for i in sub: A("buffer_load_dwordx4 v%d, s[16:19], s%d offen offset:%d %s lds", cfg["vb"][i], r, 1024 * i, cfg["bflag"])
                A("s_add_u32 s%d, s%d, %d", r, r, 0 if OPT["b0"] == "1" else cfg["b_stride"]); q.extend([u // nu] * len(sub))
                if OPT["b0"] == "4": A("s_and_b32 s25, s26, 3\ns_cmp_eq_u32 s25, 3\ns_cselect_b32 s25, %d, 0\ns_sub_u32 s%d, s%d, s25", 4 * cfg["b_stride"], r, r)
        if "A" in kinds and cfg.get("seg"):
            A("s_add_u32 s%d, s%d, 1\ns_cmp_eq_u32 s%d, %d\ns_cselect_b32 s24, s50, 0\ns_cselect_b32 s25, s51, 0", c + 1, c + 1, c + 1, cfg["seg"])
            A("s_cmp_eq_u32 s%d, %d\ns_cselect_b32 s24, s52, s24\ns_cselect_b32 s25, s53, s25", c + 1, 2 * cfg["seg"])
            for kind, r, sub in g: A("s_add_u32 s%d, s%d, s%d", r, r, 24 if kind == "A" else 25)
        if "A" in kinds:
            A("s_add_u32 s%d, s%d, 1\ns_cmp_lg_u32 s%d, %d\ns_cbranch_scc1 %s_w%d", c, c, c, nslot, tag, issue.n)
            A("s_mov_b32 s%d, 0", c)
            for kind, r, sub in g: A("s_sub_u32 s%d, s%d, %d", r + 1, r + 1, nslot * (18432 if kind == "A" else cfg["slotB"]))
            A("%s_w%d:", tag, issue.n); issue.n += 1
    issue.n = 0
    def allowed(i):
        last = max([k for k, s in enumerate(q) if s <= i], default=-1)
        return len(q) - 1 - last
    total = nstage * nu
    if "4" in (OPT["a0"], OPT["b0"]): A("s_mov_b32 s26, 0")
    if gate:
        for u in range(lead): issue(u, "B")
        gate()
        for u in range(lead): issue(u, "A")
    else:
        for u in range(lead): issue(u)
    hook = cfg.get("hook")
    if hook: hook(True)
    stamp(A, cfg["stamp"])
    issued = lead
    checks = cfg.get("checks", {}) if cfg["w"] == 4 else {}
    def ask(i):
        setup, target, block = checks[i]
        setup()
        A("buffer_load_dword v75, v74, s[4:7], 0 offen sc1")
    def look(i, name):
        setup, target, block = checks[i]
        A("v_cmp_gt_u32 vcc, %d, v75\ns_cmp_eq_u64 vcc, 0\ns_cbranch_scc1 %s", target, name)
        block()
        A("%s:", name)
    def step(i, inloop=False):
        A("s_waitcnt vmcnt(%d)", allowed(i))
        for k in checks:
            if inloop and npeel <= k < npeel + nloop:
                A("s_cmp_lg_u32 s26, %d\ns_cbranch_scc1 %s_c%d", k - npeel, tag, k); look(k, "%s_c%d" % (tag, k))
            elif not inloop and k == i: look(k, "%s_c%d" % (tag, k))
        A("s_barrier")
        for k in checks:
            if inloop and npeel <= k - 1 < npeel + nloop:
                A("s_cmp_lg_u32 s26, %d\ns_cbranch_scc1 %s_a%d", k - 1 - npeel, tag, k); ask(k); A("%s_a%d:", tag, k)
            elif not inloop and k - 1 == i:
                ask(k); q.append(i + 1)
    npeel = (lead + nu - 1) // nu - 1 if gate else 0
    nloop = (total - issued) // nu - npeel
    for i in range(npeel):
        step(i)
        for k in range(nu): issue(issued); issued += 1
        if hook: hook(False)
    A("s_mov_b32 s26, 0\n%s_loop:", tag)
    step(npeel, True)
    for k in range(nu): issue(issued + k)
    if hook: hook(False)
    A("s_add_u32 s26, s26, 1\ns_cmp_lt_u32 s26, %d\ns_cbranch_scc1 %s_loop", nloop, tag)
    for it in range(1, nloop):
        for k in range(nu):
            u = issued + it * nu + k
            q.extend([u // nu] * sum(len(sub) for _, _, sub in st[u % nu][0]))
    issued += nloop * nu
    for i in range(npeel + nloop, nstage):
        step(i)
        while issued < total:
            issue(issued); issued += 1
        if i in cfg.get("after", {}):
            n0 = len(A.l); cfg["after"][i](cfg["w"])
            q.extend([nstage] * sum("lds" in x for x in A.l[n0:]))

def ln_check(A, tag):
    return (lambda: A("s_and_b32 s24, s2, 15\ns_lshl_b32 s24, s24, 7\ns_add_u32 s24, s24, %d\nv_mov_b32 v74, s24", F_REL + 2048), 8, lambda: wait_ln(A, tag, 1))

def modadd(A, d, s, k, m):
    A("s_add_u32 s%d, s%d, %d\ns_cmp_ge_u32 s%d, %d\ns_cselect_b32 s25, %d, 0\ns_sub_u32 s%d, s%d, s25", d, s, k, d, m, m, d, d)

def loaders(A, tag, nstage, nslot, cfg, plan, after, gate=None):
    for k in range(1, 6): modadd(A, 30 + k, 30, k, 6)
    for k in range(1, 4): modadd(A, 35 + k, 29, k, 4)
    a = lambda k, *sub: ("A", 30 + k) + sub
    b = lambda k, *sub: ("B", 35 + k if k else 29) + sub
    A("s_setprio %s", OPT["lprio"])
    for w in (5, 6, 7): A("s_cmp_eq_u32 s10, %d\ns_cbranch_scc1 %s_%d", w, tag, w)
    for w, (units, lead) in zip((4, 5, 6, 7), plan(a, b)):
        if w > 4: A("%s_%d:", tag, w)
        c = dict(cfg, w=w, hook=(lambda first, w=w: cfg["touch"](w, first)) if cfg.get("touch") else None)
        loader(A, "%s%d" % (tag, w), nstage, nslot, units, lead, c, (lambda w=w: gate(w)) if gate else None)
        after(w)

def own_loaders(A, cfg, gate, after):
    NS, EL = 5, int(OPT["elead"])
    A("s_setprio %s", OPT["lprio"])
    A("s_cmp_eq_u32 s10, 6\ns_cbranch_scc1 ow_e\ns_cmp_eq_u32 s10, 5\ns_cbranch_scc1 ow_5\ns_cmp_eq_u32 s10, 7\ns_cbranch_scc1 ow_7")
    def adv(r, step, wrap, c):
        A("s_add_u32 s%d, s%d, %d\ns_cmp_eq_u32 s%d, %d\ns_cselect_b32 s25, %d, 0\ns_sub_u32 s%d, s%d, s25", r, r, step, c, NS - 1, wrap, r, r)
    for w, ag, bg in ((4, (0, 1), ((0, (0, 1, 2)), (1, (0,)))), (5, (2, 3), ((1, (1, 2)), (2, (0, 1)))), (7, (4, 5), ((2, (2,)), (3, (0, 1, 2))))):
        if w != 4: A("ow_%d:", w)
        t = "ow%d" % w
        A("s_add_u32 s40, s20, %d\ns_mov_b32 s41, %d\ns_mov_b32 s42, s21\ns_mov_b32 s43, %d\ns_mov_b32 s44, 0\ns_mov_b32 s45, 0", 3072 * ag[0], 3072 * ag[0], cfg["baseB"])
        def issue_b():
            for g, sub in bg:
                A("s_add_u32 m0, s43, %d\ns_add_u32 s24, s42, %d", 3072 * g, cfg["bg_g"] * g)
                for i in sub: A("buffer_load_dwordx4 v%d, s[16:19], s24 offen offset:%d lds", cfg["vb"][i], 1024 * i)
            A("s_add_u32 s42, s42, %d", 0 if OPT["b0"] == "1" else cfg["b_stride"])
            adv(43, cfg["slotB"], NS * cfg["slotB"], 44)
            A("s_add_u32 s44, s44, 1\ns_cmp_eq_u32 s44, %d\ns_cselect_b32 s44, 0, s44", NS)
        def issue_a(skip):
            if skip: A("s_cbranch_scc1 %s", skip)
            for k in range(2):
                A("s_add_u32 m0, s41, %d\ns_add_u32 s24, s40, %d", 3072 * k, 3072 * k)
                for i in range(3): A("buffer_load_dwordx4 v2, s[12:15], s24 offen offset:%d %s lds", 1024 * i, cfg["aflag"])
            if skip: A("%s:", skip)
            A("s_add_u32 s40, s40, %d", 0 if OPT["a0"] == "1" else 18432)
            adv(41, 18432, NS * 18432, 45)
            A("s_add_u32 s45, s45, 1\ns_cmp_eq_u32 s45, %d\ns_cselect_b32 s45, 0, s45", NS)
        issue_b(); issue_b(); gate(w); issue_a(None); issue_a(None)
        stamp(A, 1)
        A("s_sub_u32 s46, 8, s30\ns_cmp_ge_u32 s46, 6\ns_cselect_b32 s25, 6, 0\ns_sub_u32 s46, s46, s25\ns_mov_b32 s26, 2\ns_waitcnt vmcnt(6)\ns_barrier\n%s_l:", t)
        issue_b()
        A("s_cmp_lt_u32 s26, %d\ns_cselect_b32 s47, 1, s46\ns_cmp_eq_u32 s47, 0", EL)
        issue_a(t + "_s")
        A("s_add_u32 s46, s46, 1\ns_cmp_eq_u32 s46, 6\ns_cselect_b32 s46, 0, s46\ns_cmp_eq_u32 s47, 0\ns_cbranch_scc1 %s_w4\ns_waitcnt vmcnt(10)\n%s_w4:\ns_waitcnt vmcnt(10)", t, t)
        A("s_cbranch_scc0 %s_b\ns_waitcnt vmcnt(4)\n%s_b:\ns_barrier\ns_add_u32 s26, s26, 1\ns_cmp_lt_u32 s26, 32\ns_cbranch_scc1 %s_l", t, t, t)
        A("s_waitcnt vmcnt(0)\ns_barrier")
        after(w)
    A("ow_e:")
    gate(6)
    A("s_add_u32 s40, s20, %d\ns_mov_b32 s41, %d\ns_mov_b32 s45, %d\ns_sub_u32 s46, %d, s30", EL * 18432, EL * 18432, EL, EL + 6)
    for _ in range(2): A("s_cmp_ge_u32 s46, 6\ns_cselect_b32 s25, 6, 0\ns_sub_u32 s46, s46, s25")
    A("s_mov_b32 s26, 0\now_el:\ns_cmp_lg_u32 s46, %d\ns_cbranch_scc1 ow_nw\ns_waitcnt vmcnt(0)\now_nw:\ns_barrier", EL % 6)
    A("s_cmp_lg_u32 s46, 0\ns_cbranch_scc1 ow_ni\ns_cmp_ge_u32 s26, %d\ns_cbranch_scc1 ow_ni", 32 - EL)
    for k in range(6):
        A("s_add_u32 m0, s41, %d\ns_add_u32 s24, s40, %d", 3072 * k, 3072 * k)
        for i in range(3): A("buffer_load_dwordx4 v2, s[12:15], s24 offen offset:%d %s lds", 1024 * i, cfg["aflag"])
    A("ow_ni:\ns_add_u32 s40, s40, %d", 0 if OPT["a0"] == "1" else 18432)
    adv(41, 18432, NS * 18432, 45)
    A("s_add_u32 s45, s45, 1\ns_cmp_eq_u32 s45, %d\ns_cselect_b32 s45, 0, s45", NS)
    A("s_add_u32 s46, s46, 1\ns_cmp_eq_u32 s46, 6\ns_cselect_b32 s46, 0, s46\ns_add_u32 s26, s26, 1\ns_cmp_lt_u32 s26, 32\ns_cbranch_scc1 ow_el")
    after(6)

def consumer(A, tag, nstage, nslot, reads, mfmas, pattern, stamps, extra=None, drain=False):
    rem = nstage % nslot
    def half(pend, mf, rd, emit):
        rd = list(rd)
        for i, m in enumerate(mf):
            use = I(m).srcab
            pend[:] = [(w, age + 1) for w, age in pend]
            last = max([k for k, (w, _) in enumerate(pend) if w & use], default=-1)
            if last >= 0:
                last = max([last] + [k for k, (_, age) in enumerate(pend) if age >= int(OPT["age"])])
                n = min(15, len(pend) - 1 - last)
                if emit: A("s_waitcnt lgkmcnt(%d)", n)
                del pend[:len(pend) - n]
            if emit: A(m)
            for _ in range(pattern[i] if i < len(pattern) else 0):
                if rd:
                    x = rd.pop(0); pend.append((I(x).w, 0))
                    if emit: A(x)
        for x in rd:
            pend.append((I(x).w, 0))
            if emit: A(x)
    pend = []
    half(pend, mfmas(0), reads(0, 1, 1), False)
    A("s_mov_b32 s26, 0\ns_barrier")
    if OPT["stamp"] == "1": stamp(A, stamps[0]); A("s_waitcnt lgkmcnt(0)")
    for x in reads(0, 0, 0): A(x)
    A("s_waitcnt lgkmcnt(0)\ns_branch %s_mid\n.p2align 6\n%s_loop:", tag, tag)
    for slot in range(nslot):
        p = list(pend)
        A("s_barrier")
        half(p, mfmas(1), reads(slot, 0, 0), True)
        if slot == 0: A("%s_mid:", tag)
        if extra: extra(slot, 0)
        half(p, mfmas(0), reads(slot, 1, 1), True)
        if extra: extra(slot, 1)
        if drain: A("s_waitcnt lgkmcnt(0)")
        if slot == (rem - 1) % nslot:
            A("s_add_u32 s26, s26, 1\ns_cmp_eq_u32 s26, %d\ns_cbranch_scc1 %s_done", (nstage + nslot - 1) // nslot, tag)
    A("s_branch %s_loop\n%s_done:", tag, tag)
    half(list(pend), mfmas(1), [], True)
    stamp(A, stamps[1])

def pat(s): return [int(c) for c in s]

def poll(A, tag, so, target, va=70, sleep="0"):
    A("v_mov_b32 v%d, s%d\ns_mov_b64 exec, 1\ns_mov_b32 s24, 0\n%s_p:", va, so, tag)
    A("buffer_load_dword v%d, v%d, s[4:7], 0 offen sc1\ns_add_u32 s24, s24, 1\ns_waitcnt vmcnt(0)\nv_readfirstlane_b32 s25, v%d", va + 1, va, va + 1)
    A("s_cmp_ge_u32 s24, 0x40000\ns_cbranch_scc1 %s_g\ns_cmp_ge_u32 s25, %d\ns_cbranch_scc1 %s_g\n%s\ns_branch %s_p\n%s_g:\ns_mov_b64 exec, -1", tag, target, tag, "s_sleep " + sleep if sleep != "0" else "", tag, tag)

def poll_all(A, tag, n, base, target, rs=4, va=70):
    A("v_and_b32 v%d, %d, v1\nv_lshlrev_b32 v%d, 7, v%d\nv_add_u32 v%d, %d, v%d\ns_mov_b32 s24, 0\n%s_p:", va, n - 1, va, va, va, base, va, tag)
    A("buffer_load_dword v%d, v%d, s[%d:%d], 0 offen sc1\ns_add_u32 s24, s24, 1\ns_waitcnt vmcnt(0)\nv_cmp_gt_u32 vcc, %d, v%d", va + 1, va, rs, rs + 3, target, va + 1)
    A("s_cmp_ge_u32 s24, 0x40000\ns_cbranch_scc1 %s_g\ns_cmp_eq_u64 vcc, 0\ns_cbranch_scc1 %s_g\ns_sleep %s\ns_branch %s_p\n%s_g:", tag, tag, OPT["gsleep"], tag, tag)

def lds_wait(A, tag, addr, target, va):
    A("v_mov_b32 v%d, %d\ns_mov_b32 s24, 0\n%s:\nds_read_b32 v%d, v%d\ns_add_u32 s24, s24, 1\ns_waitcnt lgkmcnt(0)\nv_readfirstlane_b32 s25, v%d", va, addr, tag, va + 1, va, va + 1)
    A("s_cmp_ge_u32 s24, 0x400000\ns_cbranch_scc1 %s_d\ns_cmp_ge_u32 s25, %d\ns_cbranch_scc1 %s_d\ns_sleep 2\ns_branch %s\n%s_d:", tag, target, tag, tag, tag)

def wait_ln(A, tag, g=0):
    A("s_and_b32 s24, s2, 15\ns_lshl_b32 s24, s24, 7\ns_add_u32 s62, s24, %d", F_REL + 2048 * g)
    poll(A, tag, 62, 8, sleep=OPT["psleep"])

def arrive(A, so, va=70):
    A("v_mov_b32 v%d, s%d\nv_mov_b32 v%d, 1\ns_mov_b64 exec, 1\nbuffer_atomic_add v%d, v%d, s[4:7], 0 offen sc1\ns_mov_b64 exec, -1", va, so, va + 1, va + 1, va)


def tile_ids(A, i, ft, dt, t):
    A("s_and_b32 s25, s3, 1\ns_mul_i32 s25, s25, 18\ns_add_u32 s%d, s%d, s25\ns_and_b32 s%d, s%d, 3\ns_lshr_b32 s%d, s%d, 2", t, i, dt, t, ft, t)
    A("s_lshr_b32 s25, s3, 1\ns_mul_i32 s24, s25, 9\ns_add_u32 s%d, s%d, s24\ns_mul_i32 s25, s25, 36\ns_add_u32 s%d, s%d, s25", ft, ft, t, t)

def gemm1(A):
    ln_phase(A)
    HK = int(OPT["hk"]); NM = 32 - HK
    NS, SB, BB = 4, 16384, 4 * 18432
    A("s_sub_u32 s22, s11, 18\ns_cmp_ge_u32 s11, 18\ns_cselect_b32 s22, s22, s11")
    tile_ids(A, 22, 28, 29, 27)
    A("s_lshr_b32 s23, s3, 1\ns_lshl_b32 s23, s23, 2\ns_add_u32 s23, s23, s29\ns_lshl_b32 s23, s23, 7\ns_add_u32 s23, s23, %d", F_H)
    A("s_cmp_ge_u32 s11, 18\ns_cselect_b32 s23, 0, s23")
    A("s_cmp_ge_u32 s10, 4\ns_cbranch_scc0 g1_cons")
    A("v_lshlrev_b32 v2, 4, v1\nv_lshrrev_b32 v7, 4, v1\nv_and_b32 v8, 15, v1")
    for i in range(4):
        A("v_lshlrev_b32 v10, 1, v7\nv_xor_b32 v10, v10, v8\nv_xor_b32 v10, %d, v10\nv_add_u32 v9, %d, v7\nv_mul_u32_u24 v9, 9216, v9\nv_lshl_add_u32 v9, v10, 4, v9\nv_subrev_u32 v%d, %d, v9",
          8 * (i >> 1), 4 * i, 3 + i, 1024 * i)
    A("s_mul_i32 s20, s29, 589824\ns_lshl_b32 s21, s28, 8\ns_lshr_b32 s30, s11, 2")
    srd(A, 12, P_WS, SZ, WS_HT); srd(A, 16, P_W1, SZ_W)
    lds_wait(A, "g1go", LCNT + 16, 1, 70)
    def gate(w, tag="g1"):
        if w == 4:
            srd(A, 4, P_WS, SZ_F, WS_F)
            wait_ln(A, tag + "ln")
            stamp(A, 2)
        A("s_barrier")
    lam = int(OPT["lam1"])
    uni = lambda a, b: [([[a(0), a(1, [0])], [b(0)]], lam), ([[a(2), a(1, [1, 2])], [b(1)]], lam), ([[a(3), a(4, [0])], [b(2)]], lam), ([[a(5), a(4, [1, 2])], [b(3)]], lam)]
    skew = lambda a, b: [([[a(1), a(2, [0])], [b(0), b(1, [0])]], lam), ([[a(3), a(2, [1])], [b(1, [1, 2, 3]), b(2, [0, 1])]], lam), ([[a(0), a(4)]], NS - 2),
                         ([[a(5), a(2, [2])], [b(2, [2, 3]), b(3)]], lam)]
    skew2 = lambda a, b: [([[a(1)], [a(2), a(3)]], lam), ([[a(4), a(5, [0, 1])], [b(1)]], lam), ([[a(0), b(0)]], NS - 2), ([[b(2), a(5, [2])], [b(3)]], lam)]
    skew3 = lambda a, b: [([[a(1), a(2, [0])], [b(1)]], lam), ([[a(3), a(2, [1, 2])], [b(2)]], lam), ([[a(0), a(4), b(0)]], NS - 2), ([[a(5)], [b(3)]], lam)]
    cfg = dict(vb=(3, 4, 5, 6), bg_g=16 * 9216, bg_l=4096, baseB=BB, slotB=SB, b_stride=64 * 9216, aflag=OPT["af1"], bflag="", stamp=1)
    A("s_cmp_ge_u32 s11, 18\ns_cbranch_scc1 g1_hload")
    A("s_add_u32 s20, s20, %d\ns_add_u32 s21, s21, %d\ns_lshl_b32 s62, s27, 7\ns_add_u32 s39, s62, %d", HK * 18432, HK * 64 * 9216, F_Q)
    QOFF = [BB + NS * SB, BB + NS * SB + 9216, ((NM - 4) % 4) * 18432, ((NM - 4) % 4) * 18432 + 9216]
    def take(w):
        srd(A, 12, P_WS, SZ_Q, WS_Q)
        A("s_mul_i32 s24, s27, 36864\ns_add_u32 s24, s24, %d", 9216 * (w - 4))
        for g in range(3):
            A("s_mov_b32 m0, %d", QOFF[w - 4] + 3072 * g)
            for i in range(3): A("buffer_load_dwordx4 v2, s[12:15], s24 offen offset:%d sc1 lds", 1024 * i)
            A("s_add_u32 s24, s24, 3072")
    loaders(A, "g1l", NM, NS, dict(cfg, checks={24 - HK - 3: ln_check(A, "g1lo"), NM - 2: (lambda: A("v_mov_b32 v74, s39"), 4, lambda: poll(A, "g1q", 39, 4))}, after={NM - 2: take}),
            [uni, skew, skew2, skew3][int(OPT["plan1"])], lambda w: A("s_branch g2_load"), lambda w: gate(w, "g1m"))
    A("g1_hload:")
    for k in range(2):
        A("s_sub_u32 s22, s11, %d", 18 - 6 * (k + 1))
        tile_ids(A, 22, 31, 32, 33)
        A("s_sub_u32 s24, s32, s29\ns_mul_i32 s24, s24, 589824\ns_sub_u32 s%d, s24, %d", 50 + 2 * k, HK * 18432)
        A("s_sub_u32 s24, s31, s28\ns_lshl_b32 s24, s24, 8\ns_sub_u32 s%d, s24, %d\ns_mov_b32 s28, s31\ns_mov_b32 s29, s32", 51 + 2 * k, HK * 64 * 9216)
    A("s_mov_b32 s30, 0\ns_mov_b32 s29, 0")
    loaders(A, "g1h", 3 * HK, NS, dict(cfg, seg=HK, R=39), uni, lambda w: A("s_branch g2_load"), lambda w: gate(w, "g1h"))
    A("g1_cons:")
    ACC, FX, FY, BI = 8, 80, 124, 168
    A("v_lshrrev_b32 v144, 4, v1\nv_and_b32 v145, 15, v1\nv_mul_u32_u24 v192, 2304, v144\nv_lshl_add_u32 v192, v145, 4, v192\nv_add_u32 v3, %d, v192", 3 * 18432)
    A("v_bfe_u32 v147, v1, 2, 2\nv_and_b32 v148, 1, v144\nv_lshl_add_u32 v148, v148, 2, v147\nv_lshl_add_u32 v147, v144, 3, v147\nv_lshlrev_b32 v147, 8, v147")
    A("v_and_b32 v149, 3, v1\nv_lshl_add_u32 v147, v149, 3, v147\nv_add_u32 v147, %d, v147\ns_lshl_b32 s25, s10, 1\nv_xor_b32 v148, s25, v148", BB)
    A("v_lshl_add_u32 v4, v148, 5, v147\nv_xor_b32 v148, 1, v148\nv_lshl_add_u32 v5, v148, 5, v147\nv_lshlrev_b32 v150, 3, v144\nv_lshlrev_b32 v184, 4, v1")
    A("v_mov_b32 v2, v192")
    def reads(slot, ks, st):
        F = FY if st else FX
        o = (0 if slot == 3 else slot) * 18432 + ks * 9216
        a = ["ds_read_b128 %s, v%d offset:%d" % (vr(F + 8 + 4 * t, 4), 3 if slot == 3 else 2, o + 256 * t) for t in range(9)]
        b = ["ds_read_b64_tr_b16 %s, v%d offset:%d" % (vr(F + 4 * j + 2 * h, 2), 4 + j, slot * SB + ks * 8192 + h * 1024) for j in range(2) for h in range(2)]
        return b + a
    def mfmas(st):
        F = FY if st else FX
        return ["v_mfma_f32_16x16x32_bf16 %s, %s, %s, %s" % (vr(ACC + 8 * t + 4 * j, 4), vr(F + 4 * j, 4), vr(F + 8 + 4 * t, 4), vr(ACC + 8 * t + 4 * j, 4)) for t in range(9) for j in range(2)]
    A("s_cmp_ge_u32 s11, 18\ns_cbranch_scc1 g1_hcons")
    srd(A, 12, P_B1, 9216); srd(A, 16, P_WS, SZ_H, WS_H)
    A("s_lshl_b32 s25, s28, 8\ns_lshl_b32 s24, s10, 6\ns_add_u32 s25, s25, s24")
    A("buffer_load_dwordx2 %s, v150, s[12:15], s25 offen\nbuffer_load_dwordx2 %s, v150, s[12:15], s25 offen offset:32", vr(BI, 2), vr(BI + 2, 2))
    A("s_mul_i32 s32, s29, %d\ns_lshl_b32 s25, s28, 2\ns_add_u32 s25, s25, s10\ns_mul_i32 s25, s25, %d\ns_add_u32 s32, s32, s25", 576 * 2304, 4 * 2304)
    A("s_mov_b32 s25, %d\ns_cmp_ge_u32 s10, 2\ns_cselect_b32 s25, %d, s25\ns_and_b32 s24, s10, 1\ns_mul_i32 s24, s24, 9216\ns_add_u32 s25, s25, s24\nv_add_u32 v185, s25, v184", QOFF[0], QOFF[2])
    SEL = 172
    A("v_lshrrev_b32 v146, 2, v145\nv_cmp_eq_u32 s[34:35], v146, v144\nv_and_b32 v146, 1, v145\nv_lshlrev_b32 v146, 4, v146\nv_mov_b32 v149, 0x3f80\nv_lshlrev_b32 v146, v146, v149")
    A("v_cndmask_b32 v146, 0, v146, s[34:35]\nv_and_b32 v149, 2, v145\nv_cmp_eq_u32 s[34:35], 0, v149")
    A("v_cndmask_b32 v%d, 0, v146, s[34:35]\nv_cndmask_b32 v%d, v146, 0, s[34:35]", SEL + 2, SEL + 3)
    for r in (0, 1, 4, 5): A("v_mov_b32 v%d, 0", SEL + r)
    A("s_waitcnt vmcnt(0)")
    for i in range(4): unpack(A, ACC + 2 * i, ACC + 2 * i + 1, BI + i)
    for t in range(1, 9):
        for e in range(8): A("v_mov_b32 v%d, v%d", ACC + 8 * t + e, ACC + e)
    A("s_waitcnt lgkmcnt(0)\ns_barrier")
    def seg(slot, h):
        if slot == 0 and h == 0:
            for it, k in ((1, 7), (2, 3), (4, 4), (5, 5)):
                A("s_cmp_lg_u32 s26, %d\ns_cbranch_scc1 g1s_%d", it, k); stamp(A, k); A("s_waitcnt lgkmcnt(0)\ng1s_%d:", k)
    consumer(A, "g1c", NM, NS, reads, mfmas, pat(OPT["gap2"]), (1, 2), seg if OPT["lnst"] == "2" else None)
    A("s_barrier")
    for t in range(9): A("ds_read_b128 %s, v185 offset:%d", vr(FX + 4 * t, 4), 1024 * t)
    c0 = -2 * math.sqrt(2 / math.pi) * 1.4426950408889634
    A("v_mov_b32 v4, %s\nv_mov_b32 v5, %s\nv_mov_b32 v6, %s\nv_mov_b32 v7, %s\nv_mov_b32 v186, 1.0\nv_mov_b32 v187, 1.0", hx(c0), hx(c0), hx(c0 * 0.044715), hx(c0 * 0.044715))
    for t in range(9):
        A("s_waitcnt lgkmcnt(%d)", 8 - t)
        for j in range(2): A("v_mfma_f32_16x16x32_bf16 %s, %s, %s, %s", vr(ACC + 8 * t + 4 * j, 4), vr(SEL + 2 - 2 * j, 4), vr(FX + 4 * t, 4), vr(ACC + 8 * t + 4 * j, 4))
    for t in range(9):
        a = ACC + 8 * t; T = 188 + 8 * (t & 1); O = FY + 4 * t
        for i in range(4): A("v_pk_mul_f32 %s, %s, %s", vr(T + 2 * i, 2), vr(a + 2 * i, 2), vr(a + 2 * i, 2))
        for i in range(4): A("v_pk_fma_f32 %s, %s, v[6:7], v[4:5]", vr(T + 2 * i, 2), vr(T + 2 * i, 2))
        for i in range(4): A("v_pk_mul_f32 %s, %s, %s", vr(T + 2 * i, 2), vr(T + 2 * i, 2), vr(a + 2 * i, 2))
        for i in range(8): A("v_exp_f32 v%d, v%d", T + i, T + i)
        for i in range(4): A("v_pk_add_f32 %s, %s, v[186:187]", vr(T + 2 * i, 2), vr(T + 2 * i, 2))
        for i in range(8): A("v_rcp_f32 v%d, v%d", T + i, T + i)
        for i in range(4): A("v_pk_mul_f32 %s, %s, %s", vr(T + 2 * i, 2), vr(T + 2 * i, 2), vr(a + 2 * i, 2))
        for i in range(4): A("v_cvt_pk_bf16_f32 v%d, v%d, v%d", O + i, T + 2 * i, T + 2 * i + 1)
        A("buffer_store_dwordx4 %s, v2, s[16:19], s32 offen offset:%d sc1", vr(O, 4), 256 * t)
    A("s_branch g2_cons\ng1_hcons:")
    srd(A, 12, P_WS, SZ_Q, WS_Q); srd(A, 4, P_WS, SZ_F, WS_F)
    A("s_mul_i32 s32, s27, 36864\ns_mul_i32 s25, s10, 9216\ns_add_u32 s32, s32, s25\ns_lshl_b32 s33, s27, 7\ns_add_u32 s33, s33, %d\ns_mov_b32 s34, -1", F_Q)
    for r in range(ACC, ACC + 72): A("v_mov_b32 v%d, 0", r)
    A("s_getpc_b64 s[36:37]\ng1_pc:\ns_add_u32 s36, s36, g1_flush-g1_pc\ns_addc_u32 s37, s37, 0\ns_waitcnt lgkmcnt(0)\ns_barrier")
    PK = 168
    def flush(zero):
        for t in range(9):
            if t % 4 == 0 and t: A("s_add_u32 s32, s32, 4096")
            for i in range(4): A("v_cvt_pk_bf16_f32 v%d, v%d, v%d", PK + 4 * t + i + (4 if t >= 4 else 0), ACC + 8 * t + 2 * i, ACC + 8 * t + 2 * i + 1)
            A("buffer_store_dwordx4 %s, v184, s[12:15], s32 offen offset:%d sc1", vr(PK + 4 * t + (4 if t >= 4 else 0), 4), 1024 * (t % 4))
            if zero:
                for e in range(8): A("v_mov_b32 v%d, 0", ACC + 8 * t + e)
    def ex(slot, h):
        if h == 0:
            A("s_add_u32 s34, s34, 1\ns_cmp_lg_u32 s34, %d\ns_cbranch_scc1 g1x_%d\ns_swappc_b64 s[38:39], s[36:37]\ng1x_%d:", HK, slot, slot)
        else:
            A("s_cmp_lg_u32 s34, 2\ns_cbranch_scc1 g1y_%d\ns_cmp_eq_u32 s35, 0\ns_cbranch_scc1 g1y_%d\ns_waitcnt vmcnt(0)", slot, slot)
            arrive(A, 35, 6)
            A("g1y_%d:", slot)
    A("s_mov_b32 s35, 0")
    consumer(A, "g1d", 3 * HK, NS, reads, mfmas, pat(OPT["gap2"]), (1, 2), ex)
    A("s_barrier")
    flush(False)
    A("s_waitcnt vmcnt(0)")
    arrive(A, 33, 6)
    A("s_branch g2_cons\ng1_flush:\ns_nop 7")
    flush(True)
    A("s_add_u32 s32, s32, %d\ns_mov_b32 s35, s33\ns_add_u32 s33, s33, %d\ns_mov_b32 s34, 0\ns_nop 1\ns_setpc_b64 s[38:39]", 6 * 36864 - 8192, 6 * 128)

def gemm1_96(A):
    ln_phase(A)
    A("s_mul_i32 s28, s3, 6\ns_lshr_b32 s30, s11, 2\ns_add_u32 s28, s28, s30\ns_and_b32 s29, s11, 3")
    A("s_lshr_b32 s23, s3, 1\ns_lshl_b32 s23, s23, 2\ns_add_u32 s23, s23, s29\ns_lshl_b32 s23, s23, 7\ns_add_u32 s23, s23, %d", F_H)
    A("s_cmp_ge_u32 s10, 4\ns_cbranch_scc0 g1_cons")
    NS, SB, BB = 5, 12288, 5 * 18432
    A("v_lshlrev_b32 v2, 4, v1")
    for i in range(3):
        A("v_add_u32 v6, %d, v1\nv_mul_u32_u24 v7, 5462, v6\nv_lshrrev_b32 v7, 16, v7\nv_mul_u32_u24 v8, 12, v7\nv_sub_u32 v6, v6, v8", 64 * i)
        A("v_lshrrev_b32 v8, 2, v7\nv_and_b32 v8, 2, v8\nv_xor_b32 v6, v6, v8\nv_mul_u32_u24 v7, 9216, v7\nv_lshl_add_u32 v6, v6, 4, v7\nv_subrev_u32 v%d, %d, v6", 3 + i, 1024 * i)
    A("s_mul_i32 s20, s29, 589824\ns_mul_i32 s21, s28, 192")
    srd(A, 12, P_WS, SZ, WS_HT); srd(A, 16, P_W1, SZ_W)
    lds_wait(A, "g1go", LCNT + 16, 1, 70)
    def gate(w, tag="g1"):
        if w == 4:
            srd(A, 4, P_WS, SZ_F, WS_F)
            wait_ln(A, tag + "ln")
            stamp(A, 2)
        n = int(OPT["gpf"])
        if w in (5, 6) and n:
            A("v_lshrrev_b32 v20, 3, v1\nv_and_b32 v21, 7, v1\nv_mul_u32_u24 v22, 9216, v20\nv_lshl_add_u32 v22, v21, 7, v22")
            A("s_lshl_b32 s24, s11, 1\ns_add_u32 s24, s24, %d\ns_mul_i32 s24, s24, %d\ns_mul_i32 s25, s3, 1152\ns_add_u32 s24, s24, s25", w - 5, 8 * 9216)
            for i in range(n): A("buffer_load_dword v23, v22, s[16:19], s24 offen\ns_add_u32 s24, s24, %d", 48 * 8 * 9216)
            if w == 5:
                A("v_mul_u32_u24 v22, 9216, v1\nv_add_u32 v22, 1024, v22\ns_mul_i32 s24, s11, %d\ns_add_u32 s24, s24, s25\ns_cmp_ge_u32 s11, %d\ns_cbranch_scc1 g1_n9", 64 * 9216, 6 * n)
                A("buffer_load_dword v23, v22, s[16:19], s24 offen\ng1_n9:")
        A("s_barrier")
    lam = int(OPT["lam1"])
    if OPT["s1"] == "1":
        plan = lambda a, b: [([[a(1)], [a(2)]], lam), ([[a(3)], [a(4)]], lam), ([[a(0), b(0)]], NS - 2), ([[a(5), b(1)], [b(2), b(3)]], lam)]
    elif OPT["s1"] == "2":
        plan = lambda a, b: [([[a(1), b(0, [0])], [a(2), b(0, [1, 2])]], lam), ([[a(3), b(1, [0])], [a(4), b(1, [1, 2])]], lam), ([[a(0)]], NS - 2), ([[a(5), b(2, [0, 1])], [b(2, [2]), b(3)]], lam)]
    elif OPT["dist"] == "1":
        plan = lambda a, b: [([[a(0), a(1)], [a(2), a(3)]], lam), ([[a(4), b(0)], [b(1), b(2)]], lam), ([[a(5)], [b(3)]], lam), ([[], []], lam)]
    elif OPT["dist"] == "2":
        plan = lambda a, b: [([[a(0), b(0)], [a(1)]], lam), ([[a(2)], [a(3), b(1)]], lam), ([[a(4)], [a(5)]], lam), ([[b(2)], [b(3)]], lam)]
    elif OPT["dist"] == "4":
        plan = lambda a, b: [([[a(0), b(0, [0])], [a(1)]], lam), ([[a(2)], [a(3), b(0, [1])]], lam), ([[a(4), b(0, [2])], [a(5)]], lam), ([[b(1), b(2, [0, 1])], [b(2, [2]), b(3)]], lam)]
    elif OPT["dist"] == "5":
        plan = lambda a, b: [([[a(0), b(0, [0])], [a(1, [0]), b(1)]], lam), ([[a(2), b(0, [1])], [a(1, [1]), b(2)]], lam),
                             ([[a(3), b(0, [2])], [a(4)]], lam), ([[a(5)], [a(1, [2]), b(3)]], lam)]
    elif OPT["dist"] == "3":
        plan = lambda a, b: [([[a(0)], []], lam), ([[], [a(1)]], lam), ([[a(2)], [a(3)]], lam), ([[a(4), b(0), b(1)], [a(5), b(2), b(3)]], lam)]
    else:
        plan = lambda a, b: [([[a(0)], [a(1)]], lam), ([[a(2)], [a(3)]], lam), ([[a(4)], [a(5)]], lam), ([[b(0), b(1)], [b(2), b(3)]], lam)]
    def touch(w, first):
        if w == 7 or OPT["ht"] != "1": return
        ld = "buffer_load_dword v23, v24, s[12:15], s39 offen %s" % OPT["af1"]
        if first:
            A("v_min_u32 v24, 47, v1\nv_lshlrev_b32 v24, 7, v24\ns_and_b32 s39, s30, 1\ns_add_u32 s39, s39, 2\ns_mul_i32 s39, s39, 18432\ns_add_u32 s39, s39, s20\ns_add_u32 s39, s39, %d", 6144 * (w - 4))
            A(ld)
            A("s_add_u32 s39, s30, %s\ns_mul_i32 s39, s39, 18432\ns_add_u32 s39, s39, s20\ns_add_u32 s39, s39, %d\ns_mov_b32 s27, 0", OPT["htl"], 6144 * (w - 4))
            A(ld)
        else:
            touch.n += 1
            A("s_add_u32 s27, s27, 1\ns_cmp_lg_u32 s27, 7\ns_cbranch_scc1 g1t_%d\ns_mov_b32 s27, 1\ns_add_u32 s39, s39, %d", touch.n, 6 * 18432)
            A(ld)
            A("g1t_%d:", touch.n)
    touch.n = 0
    cfg1 = dict(checks={20: ln_check(A, "g1lo")}, touch=touch, vb=(3, 4, 5), bg_g=16 * 9216, bg_l=3072, baseB=BB, slotB=SB, b_stride=64 * 9216, aflag=OPT["af1"] + " " + OPT["nt1"], bflag=OPT["bf1"].replace("+", " "), stamp=1)
    if OPT["s1"] == "3": own_loaders(A, cfg1, gate, lambda w: A("s_branch g2_load"))
    else: loaders(A, "g1l", 32, NS, cfg1, plan, lambda w: A("s_branch g2_load"), gate)
    A("g1_cons:")
    ACC, FX, FY, VB, BI = 16, 72, 108, 6, 152
    A("v_lshrrev_b32 v144, 4, v1\nv_and_b32 v145, 15, v1")
    A("v_mul_u32_u24 v146, 2304, v144\nv_lshl_add_u32 v146, v145, 4, v146")
    A("s_lshl_b32 s25, s10, 9\nv_add_u32 v192, s25, v146\nv_add_u32 v3, 2048, v146\nv_add_u32 v4, %d, v192\nv_add_u32 v5, %d, v3", 3 * 18432, 3 * 18432)
    A("v_bfe_u32 v147, v1, 2, 2\nv_lshl_add_u32 v147, v144, 3, v147\nv_mul_u32_u24 v147, 192, v147\nv_and_b32 v148, 3, v1\nv_lshl_add_u32 v147, v148, 3, v147")
    A("v_add_u32 v147, %d, v147\nv_and_b32 v148, 1, v144\nv_lshlrev_b32 v148, 5, v148\nv_xor_b32 v149, 32, v148\nv_add_u32 v148, v148, v147\nv_add_u32 v149, v149, v147", BB)
    A("s_mul_i32 s27, s29, %d\ns_mul_i32 s25, s28, %d\ns_add_u32 s27, s27, s25\nv_lshlrev_b32 v150, 3, v144\ns_mul_i32 s30, s28, 192", 576 * 2304, 12 * 2304)
    A("v_mov_b32 v2, v192")
    srd(A, 12, P_B1, 9216); srd(A, 16, P_WS, SZ_H, WS_H)
    for u in range(3):
        modadd(A, 31, 10, u, 3)
        A("s_lshl_b32 s25, s31, 6\nv_add_u32 v%d, s25, v148\nv_add_u32 v%d, s25, v149\ns_add_u32 s25, s25, s30", VB + 2 * u, VB + 2 * u + 1)
        A("buffer_load_dwordx2 %s, v150, s[12:15], s25 offen\nbuffer_load_dwordx2 %s, v150, s[12:15], s25 offen offset:32", vr(BI + 4 * u, 2), vr(BI + 4 * u + 2, 2))
        A("s_mul_i32 s31, s31, %d\ns_add_u32 s%d, s31, s27", 4 * 2304, 32 + u)
    acc = lambda t, n: ACC + 4 * (6 * t + n) if t < 2 else ACC + 48 + 4 * n
    A("s_waitcnt vmcnt(0)")
    for n in range(6):
        for h in range(2): unpack(A, acc(0, n) + 2 * h, acc(0, n) + 2 * h + 1, BI + 2 * n + h)
    for n in range(6):
        for t in ((1, 2) if n < 2 else (1,)):
            for e in range(4): A("v_mov_b32 v%d, v%d", acc(t, n) + e, acc(0, n) + e)
    def mk(nt):
        def reads(slot, ks, st):
            F = FY if st else FX
            o = (slot % 3 if slot >= 3 else slot) * 18432 + ks * 9216
            va = 4 if slot >= 3 else 2
            a = [["ds_read_b128 %s, v%d offset:%d" % (vr(F + 24 + 4 * t, 4), va + (t == 2), o + (256 if t == 1 else 0))] if t < nt else [] for t in range(3)]
            b = [["ds_read_b64_tr_b16 %s, v%d offset:%d" % (vr(F + 4 * n + 2 * h, 2), VB + n, slot * SB + ks * 6144 + h * 768) for h in range(2)] for n in range(6)]
            if OPT["rord"] == "1": return a[0] + b[0] + b[1] + a[1] + b[2] + b[3] + a[2] + b[4] + b[5]
            return a[0] + b[0] + b[1] + b[2] + b[3] + b[4] + b[5] + a[1] + a[2]
        def mfmas(st):
            F = FY if st else FX
            order = [(0, n) for n in range(6)] + [(1, n) for n in range(6)] + ([(2, 0), (2, 1)] if nt == 3 else [])
            return ["v_mfma_f32_16x16x32_bf16 %s, %s, %s, %s" % (vr(acc(t, n), 4), vr(F + 4 * n, 4), vr(F + 24 + 4 * t, 4), vr(acc(t, n), 4)) for t, n in order]
        return reads, mfmas
    if OPT["prio"] != "0": A("s_setprio %s", OPT["prio"])
    A("s_waitcnt lgkmcnt(0)\ns_barrier\ns_cmp_eq_u32 s10, %s\ns_cbranch_scc1 g1_c3", OPT["c3"])
    consumer(A, "g1c", 32, NS, *mk(3), pat(OPT["gap1"]), (1, 2), None, OPT["drain1"] == "1")
    A("s_branch g1_epi\ng1_c3:")
    ex = None
    if OPT["ht"] == "2":
        srd(A, 36, P_WS, SZ, WS_HT)
        ld = lambda k: A("buffer_load_dword v151, v193, s[36:39], s40 offen offset:%d %s", 0, OPT["af1"])
        A("v_min_u32 v193, 47, v1\nv_lshlrev_b32 v193, 7, v193\ns_lshr_b32 s41, s11, 2\ns_mul_i32 s42, s29, 589824")
        A("s_and_b32 s40, s41, 1\ns_add_u32 s40, s40, 2\ns_mul_i32 s40, s40, 18432\ns_add_u32 s40, s40, s42")
        for k in range(3): ld(k); A("s_add_u32 s40, s40, 6144")
        A("s_min_u32 s40, s41, 4\ns_add_u32 s40, s40, %s\ns_mul_i32 s40, s40, 18432\ns_add_u32 s40, s40, s42", OPT["htl"])
        def ex(slot, h):
            k = 2 * slot + h
            if OPT["htb"] == "1":
                if k == 0:
                    for i in range(3): ld(i); A("s_add_u32 s40, s40, %d", 6144 if i < 2 else 5 * 18432 - 12288)
            elif k < 3: ld(k); A("s_add_u32 s40, s40, %d", 6144 if k < 2 else 5 * 18432 - 12288)
    consumer(A, "g1d", 32, NS, *mk(2), pat("221111111111"), (1, 2), ex, OPT["drain1"] == "1")
    A("g1_epi:\ns_barrier")
    c0 = -2 * math.sqrt(2 / math.pi) * 1.4426950408889634
    A("v_mov_b32 v4, %s\nv_mov_b32 v5, %s\nv_mov_b32 v6, %s\nv_mov_b32 v7, %s\nv_mov_b32 v8, 1.0\nv_mov_b32 v9, 1.0", hx(c0), hx(c0), hx(c0 * 0.044715), hx(c0 * 0.044715))
    units = [(t, u) for t in range(2) for u in range(3)] + [(2, 0)]
    for k, (t, u) in enumerate(units):
        a = acc(t, 2 * u); T = FX + 8 * (k & 1); O = FY + 4 * k
        if t == 2: A("s_cmp_eq_u32 s10, 3\ns_cbranch_scc1 g2_cons")
        for i in range(4): A("v_pk_mul_f32 %s, %s, %s", vr(T + 2 * i, 2), vr(a + 2 * i, 2), vr(a + 2 * i, 2))
        for i in range(4): A("v_pk_fma_f32 %s, %s, v[6:7], v[4:5]", vr(T + 2 * i, 2), vr(T + 2 * i, 2))
        for i in range(4): A("v_pk_mul_f32 %s, %s, %s", vr(T + 2 * i, 2), vr(T + 2 * i, 2), vr(a + 2 * i, 2))
        for i in range(8): A("v_exp_f32 v%d, v%d", T + i, T + i)
        for i in range(4): A("v_pk_add_f32 %s, %s, v[8:9]", vr(T + 2 * i, 2), vr(T + 2 * i, 2))
        for i in range(8): A("v_rcp_f32 v%d, v%d", T + i, T + i)
        for i in range(4): A("v_pk_mul_f32 %s, %s, %s", vr(T + 2 * i, 2), vr(T + 2 * i, 2), vr(a + 2 * i, 2))
        for i in range(4): A("v_cvt_pk_bf16_f32 v%d, v%d, v%d", O + i, T + 2 * i, T + 2 * i + 1)
        if t < 2: A("buffer_store_dwordx4 %s, v2, s[16:19], s%d offen offset:%d sc1", vr(O, 4), 32 + u, 256 * t)
        else: A("buffer_store_dwordx4 %s, v3, s[16:19], s32 offen sc1", vr(O, 4))
    A("s_branch g2_cons")

KSL, KBASE, SCR = 4160, 36864, 74496
def conv(A):
    A("s_lshl_b32 s22, s3, 3\ns_add_u32 s22, s22, s11\ns_sub_u32 s22, s22, 24")
    A("s_mov_b32 s23, 0")
    LF = SCR + 7 * 32 * KRS
    A("v_mov_b32 v190, %d\nv_mov_b32 v192, 0\nv_mov_b32 v193, 0\nds_write_b64 v190, v[192:193]\ns_waitcnt lgkmcnt(0)\ns_barrier", LF)
    A("s_cmp_eq_u32 s10, 7\ns_cbranch_scc1 cv_agent")
    A("s_load_dwordx8 s[52:59], s[0:1], %d\ns_load_dwordx2 s[60:61], s[0:1], %d", ARG["loga"], ARG["logdt"])
    A("s_lshl_b32 s42, s22, 3\ns_add_u32 s42, s42, s10\ns_mul_i32 s43, s10, %d\ns_add_u32 s43, s43, %d\ns_mov_b32 s46, s22", KSL, KBASE)
    A("s_lshr_b32 s25, s10, 1\ns_cmp_eq_u32 s25, 1\ns_cselect_b32 s41, 2, 1\ns_mov_b32 s40, 0")
    A("s_cbranch_scc0 cv_p\ns_setprio 1\ncv_p:\ns_waitcnt lgkmcnt(0)")
    for i in range(4): srd(A, 20 + 4 * i, 52 + 2 * i, 147456)
    srd(A, 36, 60, 1152)
    A("s_add_u32 s47, s42, 5\ns_add_u32 s45, s46, 512\ns_cmp_eq_u32 s10, 3\ns_cselect_b32 s47, s45, s47")
    for ch, r in ((42, 176), (47, 192)):
        A("s_lshl_b32 s3, s%d, 8\nv_lshlrev_b32 v2, 1, v1\nv_add_u32 v2, s3, v2", ch)
        kgen_params(A, ch, r)
        A("v_add_u32 v2, 128, v2")
        kgen_params(A, ch, r + 5)
        if ch == 42: A("s_cmp_eq_u32 s41, 1\ns_cbranch_scc1 cv_k")
    A("cv_k:")
    if OPT["nokgen"] == "1": A("s_branch cv_kd")
    A("v_mov_b32 v12, 0\nv_mov_b32 v13, 0\nv_and_b32 v10, 7, v1\nv_lshlrev_b32 v10, 3, v10\nv_add_u32 v10, s43, v10\nds_write_b64 v10, v[12:13]")
    A("s_mul_i32 s3, s10, %d\ns_add_u32 s3, s3, %d", 32 * KRS, SCR)
    kgen_addr(A, 3)
    A("s_waitcnt vmcnt(0)")
    for i in range(5): A("v_mov_b32 v%d, v%d", 4 + i, 176 + i)
    kgen_half(A, True)
    for i in range(5): A("v_mov_b32 v%d, v%d", 4 + i, 181 + i)
    kgen_half(A, False)
    A("s_add_u32 s3, s43, 64")
    kgen_expand(A, 3, lambda r, n, va, off: A("ds_write_b%d v%d, %s offset:%d", 32 * n, va, vr(r, n), off))
    A("s_add_u32 s40, s40, 1\ns_cmp_eq_u32 s40, s41\ns_cbranch_scc1 cv_kd")
    for i in range(10): A("v_mov_b32 v%d, v%d", 176 + i, 192 + i)
    A("s_add_u32 s43, s43, %d\ns_branch cv_k\ncv_kd:", 5 * KSL)
    A("v_mov_b32 v191, 1\ns_mov_b64 exec, 1\nds_add_u32 v190, v191 offset:4\ns_mov_b64 exec, -1")
    A("s_mov_b32 s28, s42\ns_mul_i32 s29, s10, %d\ns_add_u32 s29, s29, %d\ns_mov_b32 s30, 0\ns_mov_b32 s31, s10\ns_mov_b32 s23, 0", KSL, KBASE)
    stamp(A, 7)
    srd(A, 12, P_WS, SZ, WS_XT); srd(A, 48, P_WS, SZ, WS_YC)
    def image(blk, base, rs=12, V=10):
        A("v_lshlrev_b32 v2, 4, v1\nv_add_u32 v2, %d, v2\nv_mov_b32 v4, 0\nv_mov_b32 v5, 0\nv_mov_b32 v6, 0\nv_mov_b32 v7, 0", base)
        for i in range(4): A("ds_write_b128 v2, v[4:7] offset:%d", 1024 * i)
        A("v_lshrrev_b32 v2, 3, v1\nv_lshlrev_b32 v2, 7, v2\nv_and_b32 v3, 7, v1\nv_lshrrev_b32 v14, 5, v1\nv_xor_b32 v3, v3, v14\ns_waitcnt lgkmcnt(0)")
        for j in range(4): A("v_xor_b32 v7, %d, v3\nv_lshl_add_u32 v%d, v7, 4, v2", 2 * j, V + j)
        A("s_lshl_b32 s25, s%d, 15", blk)
        for g in range(8):
            A("s_mov_b32 m0, %d", base + 4096 * (g + 1))
            for j in range(4): A("buffer_load_dwordx4 v%d, s[%d:%d], s25 offen offset:%d sc1 lds", V + j, rs, rs + 3, 1024 * j)
            A("s_add_u32 s25, s25, 4096")
        A("s_waitcnt vmcnt(0) lgkmcnt(0)")
    lds_wait(A, "cv_w", LF, 1, 2)
    VU, VK, U, KF, ACC = 4, 12, 16, 48, 80
    A("cv_ch:")
    if OPT["noconv"] == "1": A("s_branch cv_done")
    A("s_mov_b32 s34, 0\ns_mov_b32 s35, 0x80000000")
    A("v_lshrrev_b32 v13, 4, v1\nv_and_b32 v14, 3, v1\nv_bfe_u32 v15, v1, 2, 2")
    A("v_and_b32 v16, 1, v13\nv_lshrrev_b32 v17, 1, v13")
    A("v_lshlrev_b32 v18, 5, v16\nv_lshl_add_u32 v18, v14, 3, v18\nv_lshl_add_u32 v18, v17, 6, v18\nv_lshl_add_u32 v18, v15, 3, v18")
    A("v_add_u32 v18, 8, v18\nv_add_u32 v%d, s29, v18", VK)
    A("v_lshl_add_u32 v18, v16, 2, v14\nv_sub_u32 v18, v18, v17\nv_lshlrev_b32 v18, 3, v18\nv_sub_u32 v18, v18, v15")
    for km in range(4):
        for sec in range(2):
            A("v_add_u32 v20, %d, v18\nv_bfe_u32 v21, v20, 3, 3\nv_xor_b32 v21, s31, v21\nv_lshlrev_b32 v21, 4, v21\nv_and_b32 v19, 1, v20\nv_lshl_add_u32 v21, v19, 3, v21", 71 - 16 * km - 4 * sec)
            A("v_lshrrev_b32 v20, 1, v20\nv_lshl_add_u32 v21, v20, 7, v21\nv_add_u32 v%d, s30, v21", VU + 2 * km + sec)
    rdU = lambda km, d: ["ds_read_b64_tr_b16 %s, v%d offset:%d" % (vr(U + 4 * d + 2 * s, 2), VU + 2 * km + s, 4096 * d) for s in range(2)]
    rdK = lambda km, k: ["ds_read_b64_tr_b16 %s, v%d offset:%d" % (vr(KF + 4 * k + 2 * s, 2), VK, 512 * k + 128 * km + 32 * s) for s in range(2)]
    A("s_waitcnt vmcnt(0) lgkmcnt(0)")
    if OPT["stamp"] == "1": stamp(A, 1); A("s_waitcnt lgkmcnt(0)")
    pend = []
    def issue(key, ins):
        for x in ins: A(x); pend.append(key)
    def wait(keys):
        last = max([i for i, k in enumerate(pend) if k in keys], default=-1)
        if last >= 0:
            n = min(15, len(pend) - 1 - last)
            A("s_waitcnt lgkmcnt(%d)", n)
            del pend[:len(pend) - n]
    for i in range(8):
        issue(("K", 7 - i), rdK(0, 7 - i)); issue(("U", i), rdU(0, i))
    for km in range(4):
        for k in range(7, -1, -1):
            for d in range(8 - k):
                wait({("K", k), ("U", d)})
                a = vr(ACC + 16 * (k + d), 16)
                A("v_mfma_f32_32x32x16_bf16 %s, %s, %s, %s", a, vr(U + 4 * d, 4), vr(KF + 4 * k, 4), "0" if km == 0 and d == 0 else a)
                if km < 3 and k == 0: issue(("U", d), rdU(km + 1, d))
            if km < 3: issue(("K", k), rdK(km + 1, k))
    Zr = lambda G, s: ACC + 4 * G + s
    A("v_mov_b32 v16, 0")
    for s in (3, 2, 1):
        for G in range(31, -1, -1): A("v_cndmask_b32 v%d, v%d, v%d, s[34:35]", Zr(G, s), Zr(G, s), Zr(G - 1, s) if G else 16)
        for G in range(31, -1, -1): A("v_add_f32_dpp v%d, v%d, v%d wave_ror:1 row_mask:0xf bank_mask:0xf", Zr(G, s - 1), Zr(G, s), Zr(G, s - 1))
    A("v_lshlrev_b32 v17, 2, v1\ns_lshl_b32 s25, s28, 12")
    for p in range(15, -1, -1):
        A("v_cvt_pk_bf16_f32 v%d, v%d, v%d\nbuffer_store_dword v%d, v17, s[48:51], s25 offen offset:%d sc1", U + 4 + p, Zr(2 * p, 0), Zr(2 * p + 1, 0), U + 4 + p, 256 * p)
    A("s_sub_u32 s41, s41, 1\ns_cmp_eq_u32 s41, 0\ns_cbranch_scc1 cv_done")
    A("s_mov_b32 s28, s47\ns_add_u32 s29, s29, %d\ns_mov_b32 s31, 7\ns_cmp_eq_u32 s10, 2\ns_cbranch_scc1 cv_ch", 5 * KSL)
    lds_wait(A, "cv_w9", LF + 4, 7, 2)
    A("s_lshr_b32 s30, s46, 3\ns_add_u32 s30, s30, 64\ns_and_b32 s31, s46, 7")
    image(30, SCR)
    A("s_mov_b32 s30, %d\ns_branch cv_ch", SCR)
    A("cv_agent:")
    dep = int(OPT["adepth"])
    A("s_sub_u32 s11, s11, 24\ns_waitcnt lgkmcnt(0)")
    srd(A, 12, P_W1, SZ_W); srd(A, 16, P_W2, SZ_W); srd(A, 4, P_WS, SZ_F, WS_F)
    A("s_cmp_lg_u32 s2, 255\ns_cbranch_scc1 ag_nz\nv_lshlrev_b32 v8, 4, v1\nv_add_u32 v8, %d, v8", F_LN)
    for i in range(4): A("v_mov_b32 v%d, 0", 4 + i)
    for i in range(4): A("buffer_store_dwordx4 v[4:7], v8, s[4:7], 0 offen offset:%d sc1", 1024 * i)
    A("v_add_u32 v8, 4096, v8\nbuffer_store_dwordx4 v[4:7], v8, s[4:7], 0 offen sc1\nbuffer_store_dwordx4 v[4:7], v8, s[4:7], 0 offen offset:1024 sc1")
    srd(A, 40, P_DBG, 256)
    A("v_mov_b32 v9, 1\ns_waitcnt vmcnt(0)\ns_mov_b64 exec, 1\nbuffer_store_dword v9, v4, s[40:43], 0 offen sc1\ns_mov_b64 exec, -1\nag_nz:")
    if OPT["cpf"] == "1":
        A("s_getpc_b64 s[40:41]\nag_pc:\ns_sub_u32 s40, s40, ag_pc-%s\ns_subb_u32 s41, s41, 0", NAME + "_kernel")
        A("s_lshl_b32 s25, s11, 13\nv_lshl_add_u32 v4, v1, 7, s25\nv_min_u32 v4, k2_end-%s, v4", NAME + "_kernel")
        A("v_mov_b32 v7, s41\nv_add_co_u32 v6, vcc, s40, v4\nv_addc_co_u32 v7, vcc, 0, v7, vcc\nglobal_load_dword v20, v[6:7], off")
    A("s_setprio 3\nv_lshrrev_b32 v4, 3, v1\nv_and_b32 v5, 7, v1\nv_mul_u32_u24 v8, 9216, v4\nv_lshl_add_u32 v8, v5, 7, v8")
    if OPT["g1"] == "96": A("v_lshl_add_u32 v9, v4, 6, v5\nv_mul_u32_u24 v9, 9216, v9\nv_add_u32 v9, 1024, v9")
    else: A("v_lshrrev_b32 v9, 4, v1\nv_bfe_u32 v6, v1, 1, 3\nv_lshl_add_u32 v9, v9, 6, v6\nv_mul_u32_u24 v9, 9216, v9\nv_and_b32 v6, 1, v1\nv_lshl_add_u32 v9, v6, 7, v9\nv_add_u32 v9, 1024, v9")
    A("v_lshrrev_b32 v10, 4, v1\nv_lshlrev_b32 v10, 12, v10\nv_and_b32 v11, 15, v1\nv_lshl_add_u32 v10, v11, 7, v10")
    if OPT["g1"] == "96": A("s_mul_i32 s56, s3, 1152\ns_mul_i32 s25, s11, %d\ns_add_u32 s56, s56, s25", 8 * 9216)
    else: A("s_lshr_b32 s56, s3, 1\ns_mul_i32 s56, s56, 2304\ns_and_b32 s25, s3, 1\ns_lshl_b32 s25, s25, 10\ns_add_u32 s56, s56, s25\ns_mul_i32 s25, s11, %d\ns_add_u32 s56, s56, s25", 8 * 9216)
    A("s_lshr_b32 s58, s3, 1\ns_mul_i32 s58, s58, %d\ns_and_b32 s25, s3, 1\ns_lshl_b32 s25, s25, 11\ns_add_u32 s58, s58, s25\ns_lshl_b32 s25, s11, 14\ns_add_u32 s58, s58, s25", 1152 * 4096)
    A("v_lshlrev_b32 v12, 7, v1\nv_mul_u32_u24 v13, 18432, v4\nv_lshl_add_u32 v13, v5, 7, v13\nv_add_u32 v13, 8192, v13")
    A("s_lshr_b32 s57, s11, 1\ns_mul_i32 s57, s57, 589824\ns_and_b32 s25, s11, 1\ns_mul_i32 s25, s25, 9216\ns_add_u32 s57, s57, s25")
    srd(A, 36, P_WS, SZ, WS_HT)
    if OPT["noagent"] == "1": A("s_branch cv_done")
    parts = OPT["sched"].split(",")
    seq = "".join(p if p == "S" else p[0] * int(p[1:]) for p in parts[:-1]) + parts[-1] * 80 + "hwv" * 40
    nw, nv, nh, n2 = 64 * int(OPT["gp0"]) // 9, 0, 0 if "h" in OPT["sched"] else 32, min(int(OPT["agw2"]), 21 if OPT["hv"] == "1" else 36)
    w0 = nw
    assert "S" in seq
    A("s_add_u32 s56, s56, %d", nw * 64 * 9216)
    for c in seq:
        if c == "S":
            if OPT["agst"] != "1": stamp(A, 7)
            srd(A, 40, P_DBG, 256)
            poll_all(A, "aggo", 1, 0, 1, 40)
            wait_ln(A, "agln"); wait_ln(A, "aglo", 1)
            srd(A, 40, P_WS, SZ, WS_XT)
            image(22, 0, 40, 24)
            A("v_mov_b32 v191, 1\nds_write_b32 v190, v191")
            if OPT["agst"] != "1": stamp(A, 1)
        if c == "w" and nw < 32:
            if (nw - w0) % (8 if OPT["g1"] == "96" else 4) == 0: A("buffer_load_dword v20, v9, s[12:15], s56 offen\ns_waitcnt vmcnt(%d)", dep)
            A("buffer_load_dword v20, v8, s[12:15], s56 offen\ns_add_u32 s56, s56, %d\ns_waitcnt vmcnt(%d)", 64 * 9216, dep); nw += 1
            if nw == 32: stamp(A, 3)
            if OPT["agst"] == "1" and nw in (8, 16, 24): stamp(A, {8: 7, 16: 1, 24: 5}[nw])
        if c == "h" and nh < 32:
            if nh % 8 == 0: A("buffer_load_dword v20, v13, s[36:39], s57 offen %s\ns_waitcnt vmcnt(%d)", OPT["af1"], dep)
            A("buffer_load_dword v20, v12, s[36:39], s57 offen %s\ns_add_u32 s57, s57, 18432\ns_waitcnt vmcnt(%d)", OPT["af1"], dep); nh += 1
            if nh == 32: stamp(A, 5)
        if c == "v" and nv < n2:
            k = n2 - 1 - nv if OPT["w2rev"] == "1" else nv
            A("s_add_u32 s25, s58, %d\nbuffer_load_dword v20, v10, s[16:19], s25 offen\ns_waitcnt vmcnt(%d)", k * (14 if OPT["hv"] == "1" else 8) * 16384, dep); nv += 1
    assert nw == 32 and nv == n2 and nh == 32
    A("cv_done:")
    stamp(A, 2)
    A("s_setprio 0\ns_cmp_ge_u32 s10, 4\ns_cbranch_scc1 g2_load\ns_barrier\ns_branch g2_cons")

def gemm2(A):
    NS, SB, BB = 4, 16384, 4 * 18432
    ids = "s_bfe_u32 s27, s2, 0x20001\ns_and_b32 s28, s2, 1\ns_lshl_b32 s28, s28, 3\ns_lshr_b32 s3, s2, 5\ns_add_u32 s28, s28, s3\ns_bfe_u32 s29, s2, 0x20003"
    A("g2_load:")
    A(ids)
    A("v_lshlrev_b32 v2, 4, v1\nv_lshrrev_b32 v7, 4, v1\nv_and_b32 v8, 15, v1")
    modadd(A, 30, 3, 0, 6)
    for i in range(4):
        A("v_add_u32 v9, %d, v7\nv_and_b32 v10, 7, v9\nv_lshlrev_b32 v10, 1, v10\nv_xor_b32 v10, v10, v8\nv_lshlrev_b32 v9, 12, v9\nv_lshl_add_u32 v9, v10, 4, v9\nv_subrev_u32 v%d, %d, v9", 4 * i, 3 + i, 1024 * i)
    A("s_mul_i32 s20, s29, %d\ns_mul_i32 s25, s27, %d\ns_add_u32 s20, s20, s25", 576 * 2304, 144 * 2304)
    A("s_mul_i32 s21, s27, %d\ns_lshl_b32 s25, s28, 8\ns_add_u32 s21, s21, s25", 1152 * 4096)
    srd(A, 12, P_WS, SZ_H, WS_H); srd(A, 16, P_W2, SZ_W); srd(A, 4, P_WS, SZ_F, WS_F)
    A("s_lshl_b32 s22, s27, 2\ns_add_u32 s22, s22, s29\ns_lshl_b32 s22, s22, 7\ns_add_u32 s22, s22, %d", F_H)
    A("s_waitcnt vmcnt(0)\ns_barrier")
    def gate(w):
        if OPT["sent"] == "1":
            srd(A, 8, P_WS, SZ_P, WS_P)
            A("s_lshl_b32 s24, s28, 2\ns_add_u32 s24, s24, s29\ns_lshl_b32 s24, s24, 2\ns_add_u32 s24, s24, s27\ns_lshl_b32 s24, s24, 2\ns_add_u32 s24, s24, %d\ns_mul_i32 s24, s24, 9216", w - 4)
            for i in range(4): A("v_mov_b32 v%d, -1", 12 + i)
            A("s_cmp_eq_u32 s27, %d\ns_cbranch_scc1 g2_np%d", w - 4, w)
            for t in range(9):
                if t % 4 == 0 and t: A("s_add_u32 s24, s24, 4096")
                A("buffer_store_dwordx4 v[12:15], v2, s[8:11], s24 offen offset:%d sc1", 1024 * (t % 4))
            A("s_waitcnt vmcnt(0)\ng2_np%d:\ns_mov_b32 s10, %d", w, w)
        if w == 7 and OPT["hv"] == "1":
            A("s_lshr_b32 s24, s2, 3\ns_sub_u32 s24, s24, 18\ns_cmp_ge_u32 s24, 6\ns_cbranch_scc1 g2_nv")
            A("v_lshrrev_b32 v20, 4, v1\nv_lshlrev_b32 v20, 12, v20\nv_and_b32 v21, 15, v1\nv_lshl_add_u32 v20, v21, 7, v20")
            A("s_add_u32 s24, s24, 8\ns_lshl_b32 s24, s24, 14\ns_mul_i32 s25, s27, %d\ns_add_u32 s24, s24, s25\ns_and_b32 s25, s2, 1\ns_lshl_b32 s25, s25, 11\ns_add_u32 s24, s24, s25\ns_mov_b32 s26, 0", 1152 * 4096)
            A("g2_v:\nbuffer_load_dword v22, v20, s[16:19], s24 offen\ns_add_u32 s24, s24, %d\ns_add_u32 s26, s26, 1\ns_waitcnt vmcnt(%s)\ns_cmp_lt_u32 s26, 20\ns_cbranch_scc1 g2_v\ng2_nv:", 14 * 16384, OPT["hdepth"])
        A("s_barrier")
        if w == 4:
            if OPT["st2"] == "1": stamp(A, 7)
            A("s_cmp_eq_u32 s23, 0\ns_cbranch_scc1 g2_c")
            arrive(A, 23)
            A("g2_c:")
            if OPT["st2"] == "1": A("s_waitcnt vmcnt(0)"); stamp(A, 1)
            poll(A, "g2h", 22, 12 if OPT["g1"] == "96" else 9)
            if OPT["st2"] == "1": stamp(A, 2)
        A("s_barrier")
    lam = int(OPT["lam2"])
    if OPT["dist2"] == "0": plan = lambda a, b: [([[a(1)], [a(2), a(3)]], lam), ([[a(4), a(5)], [b(1)]], lam), ([[a(0), b(0)]], NS - 2), ([[b(2)], [b(3)]], lam)]
    elif OPT["dist2"] == "1": plan = lambda a, b: [([[a(1)], [a(2), a(3)]], lam), ([[a(4), a(5, [0, 1])], [b(1)]], lam), ([[a(0), b(0)]], NS - 2), ([[b(2), a(5, [2])], [b(3)]], lam)]
    else: plan = lambda a, b: [([[a(0), a(1, [0])], [b(0)]], lam), ([[a(2), a(1, [1, 2])], [b(1)]], lam), ([[a(3), a(4, [0])], [b(2)]], lam), ([[a(5), a(4, [1, 2])], [b(3)]], lam)]
    loaders(A, "g2l", 18, NS, dict(checks={17: (lambda: A("v_and_b32 v74, 15, v1\nv_lshlrev_b32 v74, 7, v74\nv_add_u32 v74, %d, v74", F_ALL), 16, lambda: poll_all(A, "g2y", 16, F_ALL, 16))}, vb=(3, 4, 5, 6), bg_g=16 * 4096, bg_l=4096, baseB=BB, slotB=SB, b_stride=64 * 4096, aflag=OPT["af2"] + " " + OPT["nt2"], bflag=OPT["bf2"].replace("+", " "), stamp=4), plan,
            lambda w: A("s_branch g2_l0" if w == 4 else "s_branch g2_help"), gate)
    def fin_setup(nt, sv=10):
        A("s_lshl_b32 s33, s28, 2\ns_add_u32 s33, s33, s29\ns_lshl_b32 s33, s33, 2")
        srd(A, 12, P_WS, SZ_P, WS_P); srd(A, 16, P_WS, SZ, WS_BASE); srd(A, 52, P_WS, SZ, WS_YC); srd(A, 36, P_B2, 4096); srd(A, 40, P_OUT, SZ)
        A("v_lshlrev_b32 v184, 4, v1\nv_lshrrev_b32 v189, 4, v1\nv_and_b32 v190, 15, v1\ns_lshl_b32 s3, s27, 4\nv_add_u32 v190, s3, v190")
        A("s_lshl_b32 s3, s28, 7\nv_add_u32 v186, s3, v190\nv_lshlrev_b32 v187, 1, v186\nv_mul_u32_u24 v185, 1152, v186")
        A("s_mul_i32 s30, s29, 144\ns_lshl_b32 s3, s%d, 5\ns_add_u32 s30, s30, s3\ns_mov_b32 s44, %d", sv, 64 * 1152)
        A("v_lshlrev_b32 v189, %d, v189\nv_add_u32 v189, s30, v189\nv_lshl_add_u32 v185, v189, 1, v185", 1 + nt)
        A("v_lshlrev_b32 v186, 12, v189\nv_lshl_add_u32 v186, v190, 2, v186\ns_lshl_b32 s3, s28, 8\nv_add_u32 v186, s3, v186")
        A("s_add_u32 s23, s33, s27\ns_mul_i32 s31, s23, %d\ns_lshl_b32 s34, s10, 11\ns_add_u32 s31, s31, s34\ns_lshl_b32 s23, s23, 7", 4 * 9216)
        A("s_lshl_b32 s34, s%d, 12\nv_add_u32 v188, s34, v184", sv)
        for k in range(1, 4):
            A("s_add_u32 s3, s27, %d\ns_and_b32 s3, s3, 3\ns_mul_i32 s3, s3, 9216\ns_add_u32 s%d, s3, s31", k, 44 + k)
        A("s_add_u32 s49, s33, s10\ns_lshl_b32 s48, s49, 2\ns_add_u32 s48, s48, s27\ns_mul_i32 s48, s48, 9216\ns_lshl_b32 s49, s49, 7")
    A("g2_cons:")
    A(ids)
    ACC, FX, FY = 8, 80, 124
    A("v_lshrrev_b32 v6, 4, v1\nv_and_b32 v7, 15, v1\nv_mul_u32_u24 v76, 2304, v6\nv_lshl_add_u32 v76, v7, 4, v76\nv_add_u32 v77, %d, v76", 3 * 18432)
    A("v_lshrrev_b32 v6, 2, v1\nv_and_b32 v7, 7, v6\nv_lshlrev_b32 v6, 8, v6\nv_and_b32 v8, 3, v1\nv_lshl_add_u32 v6, v8, 3, v6\nv_add_u32 v6, %d, v6", BB)
    A("v_xor_b32 v7, s10, v7\nv_lshl_add_u32 v4, v7, 5, v6\nv_xor_b32 v7, 4, v7\nv_lshl_add_u32 v5, v7, 5, v6")
    A("s_waitcnt vmcnt(0)\ns_barrier")
    if OPT["lnst"] == "0": stamp(A, 3)
    A("v_mov_b32 v2, v76\nv_mov_b32 v3, v77")
    for r in range(ACC, ACC + 72): A("v_mov_b32 v%d, 0", r)
    srd(A, 4, P_WS, SZ_F, WS_F)
    A("s_cmp_lg_u32 s10, 0\ns_cbranch_scc1 g2_na\ns_and_b32 s22, s2, 15\ns_lshl_b32 s22, s22, 7\ns_add_u32 s22, s22, %d", F_ALL)
    arrive(A, 22, 168)
    A("g2_na:")
    fin_setup(2)
    A("s_waitcnt lgkmcnt(0)\ns_barrier")
    def reads(slot, ks, st):
        F = FY if st else FX
        o = (0 if slot == 3 else slot) * 18432 + ks * 9216
        a = ["ds_read_b128 %s, v%d offset:%d" % (vr(F + 8 + 4 * t, 4), 3 if slot == 3 else 2, o + 256 * t) for t in range(9)]
        b = ["ds_read_b64_tr_b16 %s, v%d offset:%d" % (vr(F + 4 * j + 2 * h, 2), 4 + j, slot * SB + ks * 8192 + h * 4096) for j in range(2) for h in range(2)]
        return b + a
    def mfmas(st):
        F = FY if st else FX
        return ["v_mfma_f32_16x16x32_bf16 %s, %s, %s, %s" % (vr(ACC + 8 * t + 4 * j, 4), vr(F + 8 + 4 * t, 4), vr(F + 4 * j, 4), vr(ACC + 8 * t + 4 * j, 4)) for t in range(9) for j in range(2)]
    consumer(A, "g2c", 18, NS, reads, mfmas, pat(OPT["gap2"]), (4, 5) if OPT["lnst"] == "0" else (6, 6))
    OWN = 2 * 18432
    RES = 3 * 18432
    Y, B, B2, T = 148, 156, 164, 166
    def residual(nt, dst):
        nd = 4 * nt; w = "x4" if nt == 2 else "x2"
        A("buffer_load_dword%s %s, v185, s[16:19], 0 offen sc1\nbuffer_load_dword%s %s, v185, s[16:19], s44 offen sc1", w, vr(B, 2 * nt), w, vr(B + 4, 2 * nt))
        A("buffer_load_ushort v%d, v187, s[36:39], 0 offen\nbuffer_load_ushort v%d, v187, s[36:39], 0 offen offset:128\ns_mov_b32 s3, 0", B2, B2 + 1)
        for e in range(nd): A("buffer_load_dword v%d, v186, s[52:55], s3 offen sc1\ns_add_u32 s3, s3, 4096", Y + e)
        A("s_waitcnt vmcnt(0)")
        res = lambda j, e: dst + 4 * (2 * (e >> 2) + j) + (e & 3)
        for j in range(2):
            A("v_lshlrev_b32 v%d, 16, v%d", B2 + j, B2 + j)
            for e in range(0, nd, 2):
                unpack(A, res(j, e), res(j, e) + 1, B + 4 * j + e // 2)
                A("v_pk_add_f32 %s, %s, %s op_sel:[0,%d] op_sel_hi:[1,%d]", vr(res(j, e), 2), vr(res(j, e), 2), vr(B2, 2), j, j)
        for e in range(nd):
            unpack(A, T, T + 1, Y + e)
            A("v_add_f32 v%d, v%d, v%d\nv_add_f32 v%d, v%d, v%d", res(0, e), res(0, e), T, res(1, e), res(1, e), T + 1)
    def body(nt):
        nd = 4 * nt; P, R, Q = 168, 124, 24
        w = "x4" if nt == 2 else "x2"
        sent = OPT["sent"] == "1"
        def fetch(tag):
            if sent: A("s_mov_b32 s24, 0\n%s:", tag)
            for q in range(3):
                for i in range(nt): A("buffer_load_dwordx4 %s, v184, s[12:15], s%d offen offset:%d sc1", vr(R + 8 * q + 4 * i, 4), 45 + q, 1024 * i)
        def verify(tag):
            regs_ = [R + 8 * q + i for q in range(3) for i in range(4 * nt)]
            A("s_waitcnt vmcnt(0)\nv_max3_u32 v%d, v%d, v%d, v%d", T, *regs_[:3])
            A("v_max3_u32 v%d, v%d, v%d, v%d", T + 1, *regs_[3:6])
            for k in range(6, len(regs_), 2): A("v_max3_u32 v%d, v%d, v%d, v%d", T + (k >> 1 & 1), T + (k >> 1 & 1), regs_[k], regs_[k + 1])
            A("v_max_u32 v%d, v%d, v%d\nv_cmp_eq_u32 vcc, -1, v%d\ns_add_u32 s24, s24, 1", T, T, T + 1, T)
            A("s_cmp_ge_u32 s24, 0x10000\ns_cbranch_scc1 %s_ok\ns_cmp_lg_u64 vcc, 0\ns_cbranch_scc1 %s\n%s_ok:", tag, tag, tag)
        if nt == 2:
            A("s_cmp_eq_u32 s10, s27\ns_cbranch_scc1 g2_own")
            for t in range(9):
                if t % 4 == 0 and t: A("s_add_u32 s48, s48, 4096")
                for i in range(4): A("v_cvt_pk_bf16_f32 v%d, v%d, v%d", FX + 4 * t + i, ACC + 8 * t + 2 * i, ACC + 8 * t + 2 * i + 1)
                A("buffer_store_dwordx4 %s, v184, s[12:15], s48 offen offset:%d sc1", vr(FX + 4 * t, 4), 1024 * (t % 4))
            if not sent:
                A("s_waitcnt vmcnt(0)")
                arrive(A, 49)
            if OPT["st2"] == "1": stamp(A, 7)
            A("s_branch g2_fin\ng2_own:")
            for tl in range(18): A("ds_write_b128 v184, %s offset:%d", vr(ACC + 4 * tl, 4), OWN + 1024 * tl)
            A("g2_fin:\ns_waitcnt lgkmcnt(0)")
        else:
            fin_setup(1)
            residual(1, Q)
            if OPT["st2"] == "1": stamp(A, 3)
            if sent: fetch("g2x"); verify("g2x")
            else: poll(A, "g2x", 23, 3)
            if OPT["st2"] == "1": stamp(A, 5)
        A("s_barrier")
        if nt == 2 and OPT["st2"] == "1": stamp(A, 1); A("s_waitcnt lgkmcnt(0)")
        if nt == 2 or not sent: fetch("g2z")
        for i in range(2 * nt): A("ds_read_b128 %s, v188 offset:%d", vr(P + 4 * i, 4), OWN + 1024 * i)
        if nt == 2:
            for i in range(4): A("ds_read_b128 %s, v188 offset:%d", vr(Q + 4 * i, 4), RES + 1024 * i)
        A("s_waitcnt lgkmcnt(0)")
        for i in range(4 * nt): A("v_pk_add_f32 %s, %s, %s", vr(Q + 2 * i, 2), vr(P + 2 * i, 2), vr(Q + 2 * i, 2))
        if nt == 2 and sent: verify("g2z")
        for q in range(3):
            if not sent: A("s_waitcnt vmcnt(%d)", (2 - q) * nt)
            for i in range(4 * nt): unpack(A, 8 + 2 * i, 9 + 2 * i, R + 8 * q + i)
            for i in range(4 * nt): A("v_pk_add_f32 %s, %s, %s", vr(Q + 2 * i, 2), vr(Q + 2 * i, 2), vr(8 + 2 * i, 2))
        if nt == 2 and OPT["st2"] == "1": stamp(A, 2)
        src = lambda j, e: Q + 4 * (2 * (e >> 2) + j) + (e & 3)
        for j in range(2):
            for e in range(nd // 2): A("v_cvt_pk_bf16_f32 v%d, v%d, v%d", P + 4 * j + e, src(j, 2 * e), src(j, 2 * e) + 1)
            A("buffer_store_dword%s %s, v185, s[40:43], %s offen %s", w, vr(P + 4 * j, 2 * nt), "s44" if j else "0", OPT["osc1"])
        endpgm(A, 1)
    body(2)
    A("g2_l0:")
    body(1)
    A("g2_help:\ns_sub_u32 s50, s10, 5\ng2_hl:")
    fin_setup(2, 50)
    residual(2, 24)
    for i in range(4): A("ds_write_b128 v188, %s offset:%d", vr(24 + 4 * i, 4), RES + 1024 * i)
    A("s_add_u32 s50, s50, 3\ns_cmp_eq_u32 s50, 3\ns_cbranch_scc1 g2_hl\ns_waitcnt lgkmcnt(0)\ns_barrier")
    endpgm(A, 1)

def k2(A):
    head(A, NAME + "_kernel")
    A("s_cmp_ge_u32 s2, 256\ns_cbranch_scc1 k2_end")
    A("s_load_dwordx16 s[84:99], s[0:1], 56\ns_load_dwordx2 s[%d:%d], s[0:1], %d\ns_load_dwordx2 s[%d:%d], s[0:1], %d", P_X, P_X + 1, ARG["x"], P_DSK, P_DSK + 1, ARG["dsk"])
    wave_id(A, 10); stamp_init(A, 10)
    A("s_and_b32 s3, s2, 7\ns_lshr_b32 s11, s2, 3\ns_cmp_ge_u32 s11, 24\ns_cbranch_scc1 k2_cv")
    (gemm1_96 if OPT["g1"] == "96" else gemm1)(A)
    A("k2_cv:")
    conv(A)
    gemm2(A)
    A("k2_end:\ns_endpgm")

def build():
    out = ["; S4D convolution + token-mixing MLP, generated instruction stream"]
    out.append("; @launch grid=(256,1,1) block=(512,1,1) lds=%d" % LDS_SIZE)
    out.append('.amdgcn_target "amdgcn-amd-amdhsa--gfx950"\n.text')
    A = Asm(); k2(A)
    t, n = A.text()
    sys.stderr.write("%d lines, %d nops inserted\n" % (len(A.l), n))
    out.append(t)
    out.append('.section .rodata,"a"')
    out.append(kd(NAME + "_kernel", 208))
    return "\n".join(out), None

if __name__ == "__main__":
    for a in sys.argv[2:]:
        k, v = a.split("=", 1)
        assert k in OPT, k
        OPT[k] = v
    t = build()[0]
    open(sys.argv[1], "w").write(t)
```

```python
import sys, math, struct
from asmlib import *

NAME = "parallel_sum__ssm_conv_s4d__mixer_token_mlp__prompt"
SZ = 2359296
WS_HT, WS_XT, WS_BASE, WS_K, WS_YC = 0, SZ, 2 * SZ, 3 * SZ, 4 * SZ
WS_H = 5 * SZ
SZ_H = 5308416
WS_P = WS_H + SZ_H
SZ_P = 256 * 4 * 9216
SZ_W = 18874368
ARG = dict(x=0, loga=8, aim=16, cr=24, ci=32, logdt=40, dsk=48, w1=64, b1=72, w2=80, b2=88, out=96, dbg=104, ws=112)
OPT = dict(stamp="0", cyc="0", lam1="4", lam2="4", a0="0", b0="0", adepth="2", agh="1", agw1="16", agh0="8", agw2="36", s1="2",
           gap1="21111111111111", gap2="111111111111111111", age="7", prio="0", noconv="0", lnst="0", nt1="", nt2="", dist="4", lprio="3", dist2="2", st2="0", ht="0", htb="1", gp0="0", htl="4", sched="w14,S,w18,v", w2rev="0", cpf="1", rord="0", c3="3", af1="sc1", af2="sc1", gpf="0", nrep="16", psleep="2", lnprio="3", gsleep="8", osc1="", sent="0", drain1="0", rot="1", defer="1", keep="1", hfirst="0", g1="128", hv="1", hdepth="3", agst="0", nokgen="0", hk="5", plan1="3", bf1="", bf2="", noagent="0", elead="3", agdelay="0")
WS_Q = WS_P + SZ_P
SZ_Q = 144 * 36864
WS_F = WS_Q + SZ_Q
F_EX, F_ALL, F_Q, F_H, F_LN, F_REL, SZ_F = 0, 32768, 34816, 53248, 73728, 75776, 79872
LDS_SIZE = 4 * 34816 + 18432
LCNT = LDS_SIZE - 64
P_X, P_DSK, P_W1, P_B1, P_W2, P_B2, P_OUT, P_DBG, P_WS = 6, 8, 86, 88, 90, 92, 94, 96, 98
WS_ST = 128 << 20

def stamp(A, k):
    if OPT["stamp"] == "1": A("%s s[%d:%d]", "s_memtime" if OPT["cyc"] == "1" else "s_memrealtime", 64 + 2 * k, 65 + 2 * k)

def stamp_init(A, wave):
    if OPT["stamp"] == "1":
        for k in range(8): A("s_mov_b32 s%d, 0", 64 + 2 * k)
        A("s_mov_b32 s63, s%d\ns_load_dwordx2 s[100:101], s[0:1], %d\ns_memtime s[80:81]", wave, ARG["ws"])
        stamp(A, 0)

def endpgm(A, kidx):
    if OPT["stamp"] == "1":
        A("s_waitcnt vmcnt(0)")
        stamp(A, 6)
        A("s_memtime s[82:83]\ns_waitcnt lgkmcnt(0)\ns_sub_u32 s62, s82, s80\ns_mov_b64 exec, 1\nv_mov_b32 v16, s62")
        srd(A, 12, 100, 2 << 20, WS_ST)
        A("s_add_u32 s62, s2, %d\ns_lshl_b32 s62, s62, 3\ns_add_u32 s62, s62, s63\ns_lshl_b32 s62, s62, 6\nv_mov_b32 v0, s62", 1024 * kidx)
        for k in range(8): A("v_mov_b32 v%d, s%d", 8 + k, 64 + 2 * k)
        A("buffer_store_dwordx4 v[8:11], v0, s[12:15], 0 offen\nbuffer_store_dwordx4 v[12:15], v0, s[12:15], 0 offen offset:16\nbuffer_store_dword v16, v0, s[12:15], 0 offen offset:32")
    A("s_endpgm")


def f2u(f): return struct.unpack("<I", struct.pack("<f", f))[0]
def hx(f): return "0x%08x" % f2u(f)

def srd(A, d, b, size, off=0):
    if off:
        A("s_add_u32 s%d, s%d, %d\ns_addc_u32 s%d, s%d, 0", d, b, off, d + 1, b + 1)
    else:
        A("s_mov_b32 s%d, s%d\ns_mov_b32 s%d, s%d", d, b, d + 1, b + 1)
    A("s_mov_b32 s%d, %d\ns_mov_b32 s%d, 0x20000", d + 2, size, d + 3)

def head(A, k):
    A(".p2align 8\n.globl %s\n.type %s,@function\n%s:", k, k, k)

def kd(k, nv, ns=102):
    acc = min(256, (nv + 3) // 4 * 4)
    return (".p2align 6\n.amdhsa_kernel %s\n  .amdhsa_next_free_vgpr %d\n  .amdhsa_next_free_sgpr %d\n  .amdhsa_accum_offset %d\n"
            "  .amdhsa_group_segment_fixed_size 0\n  .amdhsa_kernarg_size 120\n  .amdhsa_user_sgpr_count 2\n"
            "  .amdhsa_user_sgpr_kernarg_segment_ptr 1\n  .amdhsa_system_sgpr_workgroup_id_x 1\n"
            "  .amdhsa_float_denorm_mode_32 3\n.end_amdhsa_kernel\n") % (k, nv, ns, acc)

def wave_id(A, s, lane=1):
    A("v_lshrrev_b32 v%d, 6, v0\nv_readfirstlane_b32 s%d, v%d\nv_and_b32 v%d, 63, v0", lane, s, lane, lane)

RS = 1216
def reduce32(A, a, b):
    for m in ("quad_perm:[1,0,3,2]", "quad_perm:[2,3,0,1]", "row_half_mirror", "row_mirror"):
        A("v_add_f32_dpp v%d, v%d, v%d %s row_mask:0xf bank_mask:0xf", a, a, a, m)
    A("v_mov_b32 v%d, v%d\nv_permlane16_swap_b32 v%d, v%d\nv_add_f32 v%d, v%d, v%d", b, a, a, b, a, a, b)

def unpack(A, lo, hi, src):
    A("v_lshlrev_b32 v%d, 16, v%d\nv_and_b32 v%d, 0xffff0000, v%d", lo, src, hi, src)

def rbf(A, d, s):
    A("v_cvt_pk_bf16_f32 v%d, v%d, v%d\nv_and_b32 v%d, 0xffff0000, v%d", d, s, s, d, d)

def layernorm(A, a, t, p, m, unpack_out):
    BC = "op_sel:[0,0] op_sel_hi:[1,0]"
    for i in range(4): A("v_pk_add_f32 %s, %s, %s", vr(t + 2 * i, 2), vr(a + 4 * i, 2), vr(a + 4 * i + 2, 2))
    A("v_pk_add_f32 %s, %s, %s\nv_pk_add_f32 %s, %s, %s", vr(t, 2), vr(t, 2), vr(a + 16, 2), vr(t + 2, 2), vr(t + 2, 2), vr(t + 4, 2))
    A("v_pk_add_f32 %s, %s, %s\nv_pk_add_f32 %s, %s, %s", vr(t, 2), vr(t, 2), vr(t + 6, 2), vr(m, 2), vr(t, 2), vr(t + 2, 2))
    A("v_add_f32 v%d, v%d, v%d", m, m, m + 1)
    reduce32(A, m, m + 1)
    A("v_mul_f32 v%d, %s, v%d", m, hx(1 / 576.), m)
    for i in range(9): A("v_pk_add_f32 %s, %s, %s %s neg_lo:[0,1] neg_hi:[0,1]", vr(t + 2 * i, 2), vr(a + 2 * i, 2), vr(m, 2), BC)
    for i in range(3): A("v_pk_mul_f32 %s, %s, %s", vr(t + 2 * i, 2), vr(t + 2 * i, 2), vr(t + 2 * i, 2))
    for i in range(3, 9): A("v_pk_fma_f32 %s, %s, %s, %s", vr(t + 2 * (i % 3), 2), vr(t + 2 * i, 2), vr(t + 2 * i, 2), vr(t + 2 * (i % 3), 2))
    A("v_pk_add_f32 %s, %s, %s\nv_pk_add_f32 %s, %s, %s", vr(t, 2), vr(t, 2), vr(t + 2, 2), vr(m + 2, 2), vr(t, 2), vr(t + 4, 2))
    A("v_add_f32 v%d, v%d, v%d", m + 2, m + 2, m + 3)
    rbf(A, m, m)
    for i in range(9): A("v_pk_add_f32 %s, %s, %s %s neg_lo:[0,1] neg_hi:[0,1]", vr(t + 2 * i, 2), vr(a + 2 * i, 2), vr(m, 2), BC)
    reduce32(A, m + 2, m + 3)
    A("v_mul_f32 v%d, %s, v%d", m + 2, hx(1 / 576.), m + 2)
    rbf(A, m + 2, m + 2)
    A("v_add_f32 v%d, %s, v%d", m + 2, hx(1e-5), m + 2)
    rbf(A, m + 2, m + 2)
    A("v_sqrt_f32 v%d, v%d", m + 2, m + 2)
    for i in range(9): A("v_cvt_pk_bf16_f32 v%d, v%d, v%d", p + i, t + 2 * i, t + 2 * i + 1)
    rbf(A, m + 2, m + 2)
    A("v_rcp_f32 v%d, v%d", m + 2, m + 2)
    for i in range(9): unpack(A, t + 2 * i, t + 2 * i + 1, p + i)
    for i in range(9): A("v_pk_mul_f32 %s, %s, %s %s", vr(t + 2 * i, 2), vr(t + 2 * i, 2), vr(m + 2, 2), BC)
    for i in range(9): A("v_cvt_pk_bf16_f32 v%d, v%d, v%d", p + i, t + 2 * i, t + 2 * i + 1)
    if unpack_out is not None:
        for i in range(9): unpack(A, unpack_out + 2 * i, unpack_out + 2 * i + 1, p + i)

def ln_phase(A):
    def clear(): A("v_mov_b32 v126, %d\nv_mov_b64 v[128:129], 0\nv_mov_b64 v[130:131], 0\nds_write_b128 v126, v[128:131]\nds_write_b128 v126, v[128:131] offset:16\ns_waitcnt lgkmcnt(0)\ns_barrier", LCNT)
    A("s_mul_i32 s22, s3, 24\ns_add_u32 s22, s22, s11\ns_setprio %s\ns_cmp_lt_u32 s10, 4\ns_cbranch_scc1 ln_go\ns_setprio 0", OPT["lnprio"])
    A("s_lshl_b32 s22, s3, 3\ns_add_u32 s22, s22, s11\ns_add_u32 s22, s22, 192\ns_cmp_lt_u32 s11, 8\ns_cbranch_scc1 ln_go")
    clear()
    n = int(OPT["gp0"])
    if n:
        srd(A, 12, P_W1, SZ_W)
        A("s_sub_u32 s22, s11, 8\ns_lshl_b32 s22, s22, 2\ns_add_u32 s22, s22, s10\ns_sub_u32 s22, s22, 4\ns_mul_i32 s23, s3, 1152")
        for r in range(n):
            touch_w1(A, 22, 126, 2, 12, 23)
            A("s_add_u32 s22, s22, 64")
    A("s_branch ln_done\nln_go:")
    A("s_and_b32 s23, s10, 3\ns_lshl_b32 s25, s22, 3\ns_lshl_b32 s28, s23, 1\ns_add_u32 s25, s25, s28")
    A("v_lshrrev_b32 v4, 5, v1\nv_add_u32 v2, s25, v4\nv_mul_u32_u24 v2, 1152, v2")
    A("v_and_b32 v3, 31, v1\nv_lshlrev_b32 v3, 2, v3\nv_add_u32 v2, v2, v3\ns_waitcnt lgkmcnt(0)")
    srd(A, 12, P_X, SZ)
    X, DS, XF, T, P, M, XN = 8, 17, 26, 44, 62, 72, 76
    for i in range(9): A("buffer_load_dword v%d, v2, s[12:15], 0 offen offset:%d", X + i, 128 * i)
    clear()
    srd(A, 16, P_WS, F_LN, WS_F)
    A("s_cmp_lg_u32 s10, 0\ns_cbranch_scc1 ln_nz\ns_mul_i32 s31, s22, 384\nv_min_u32 v104, 23, v1\nv_lshlrev_b32 v104, 4, v104")
    for i in range(4): A("v_mov_b32 v%d, 0", 108 + i)
    A("buffer_store_dwordx4 v[108:111], v104, s[16:19], s31 offen sc1\nln_nz:")
    A("s_lshr_b32 s31, s10, 2\ns_mul_i32 s31, s31, %d", 16 * RS + 256)
    A("v_add_u32 v4, s28, v4\nv_mul_u32_u24 v4, %d, v4\nv_add_u32 v4, v4, v3\nv_add_u32 v4, s31, v4", RS)
    A("s_and_b32 s29, s10, 1\ns_lshl_b32 s29, s29, 6")
    A("v_bfe_u32 v5, v1, 2, 2\nv_mul_u32_u24 v5, %d, v5\nv_and_b32 v6, 3, v1\nv_lshl_add_u32 v5, v6, 3, v5", RS)
    A("v_lshrrev_b32 v6, 4, v1\nv_lshl_add_u32 v5, v6, 5, v5\ns_lshl_b32 s30, s29, 1\ns_add_u32 s30, s30, s31\nv_add_u32 v5, s30, v5")
    AD = 94
    A("s_cmp_ge_u32 s23, 2\ns_cbranch_scc1 ln_xt")
    srd(A, 12, P_WS, SZ, WS_HT)
    A("v_add_u32 v5, %d, v5\ns_mul_i32 s30, s22, 2304", 8 * RS)
    for j in range(5):
        A("v_add_u32 v6, s29, v1\nv_add_u32 v6, %d, v6", 128 * j)
        A("v_mul_u32_u24 v7, 3641, v6\nv_lshrrev_b32 v7, 19, v7\nv_mul_u32_u24 v99, 144, v7\nv_sub_u32 v6, v6, v99")
        A("v_and_b32 v99, 4, v6\nv_lshlrev_b32 v99, 2, v99\nv_and_b32 v100, 24, v6\nv_lshrrev_b32 v100, 1, v100\nv_or_b32 v99, v99, v100")
        A("v_and_b32 v100, 0xe3, v6\nv_or_b32 v99, v99, v100\nv_lshrrev_b32 v100, 7, v6\nv_cmp_eq_u32 s[32:33], 0, v100\nv_cndmask_b32 v6, v6, v99, s[32:33]")
        A("v_mul_u32_u24 v7, 589824, v7\nv_lshl_add_u32 v6, v6, 4, v7\nv_add_u32 v%d, s30, v6", AD + j)
    A("s_branch ln_c\nln_xt:")
    srd(A, 12, P_WS, SZ, WS_XT)
    A("s_lshl_b32 s30, s22, 7\nv_add_u32 v6, s29, v1\nv_lshrrev_b32 v7, 3, v6\nv_and_b32 v99, 7, v6\nv_lshlrev_b32 v99, 4, v99\nv_lshl_add_u32 v7, v7, 15, v99\nv_add_u32 v7, s30, v7")
    for j in range(5): A("v_add_u32 v%d, %d, v7", AD + j, j << 19)
    A("ln_c:\ns_cmp_eq_u32 s10, 0\ns_cbranch_scc1 ln_c0\ns_waitcnt vmcnt(0)\nln_c0:\ns_waitcnt vmcnt(1)")
    if OPT["lnst"] == "1": stamp(A, 3)
    for i in range(9): unpack(A, XF + 2 * i, XF + 2 * i + 1, X + i)
    layernorm(A, XF, T, P, M, XN)
    for i in range(9): A("ds_write_b32 v4, v%d offset:%d", P + i, 128 * i)
    srd(A, 4, P_DBG, 256)
    A("v_mov_b32 v124, 0\nbuffer_load_dword v125, v124, s[4:7], 0 offen sc1")
    layernorm(A, XN, T, P, M, None)
    for i in range(9): A("ds_write_b32 v4, v%d offset:%d", P + i, 8 * RS + 128 * i)
    A("s_waitcnt vmcnt(0)")
    if OPT["lnst"] == "1": stamp(A, 4)
    A("s_lshr_b32 s31, s10, 2\ns_lshl_b32 s25, s31, 3\nv_add_u32 v126, s25, v126\nv_mov_b32 v127, 1\ns_mov_b64 exec, 1\nds_add_u32 v126, v127\ns_mov_b64 exec, -1\ns_mov_b32 s24, 0")
    A("ln_w:\nds_read_b32 v124, v126\ns_add_u32 s24, s24, 1\ns_waitcnt lgkmcnt(0)\nv_readfirstlane_b32 s25, v124\ns_cmp_ge_u32 s24, 0x400000\ns_cbranch_scc1 ln_wd\ns_cmp_lt_u32 s25, 4\ns_cbranch_scc1 ln_w\nln_wd:")
    if OPT["lnst"] == "1": stamp(A, 5); A("s_waitcnt lgkmcnt(0)")
    TR = 104
    for j in range(5):
        A("ds_read_b64_tr_b16 %s, v5 offset:%d", vr(TR + 4 * j, 2), 256 * j)
        A("ds_read_b64_tr_b16 %s, v5 offset:%d", vr(TR + 4 * j + 2, 2), 256 * j + 4 * RS)
    def put_rows():
        for j in range(5):
            A("s_waitcnt lgkmcnt(%d)", 8 - 2 * j)
            A("buffer_store_dwordx4 %s, v%d, s[12:15], 0 offen sc1", vr(TR + 4 * j, 4), AD + j)
    def count(off, last, out):
        A("s_mov_b64 exec, 1\nds_add_rtn_u32 v124, v126, v127 offset:%d\ns_mov_b64 exec, -1\ns_waitcnt lgkmcnt(0)\nv_readfirstlane_b32 s25, v124\ns_cmp_lg_u32 s25, %d\ns_cbranch_scc1 %s", off, last, out)
    def global_arrive(tag, g, last, out):
        A("v_readfirstlane_b32 s25, v125\ns_cmp_lg_u32 s25, 0\ns_cbranch_scc1 %s_g", tag)
        srd(A, 4, P_DBG, 256)
        poll_all(A, tag + "go", 1, 0, 1)
        A("%s_g:\nv_mov_b32 v124, %d\nds_write_b32 v124, v127", tag, LCNT + 28)
        srd(A, 4, P_WS, SZ_F, WS_F)
        A("s_lshl_b32 s25, %s, 3\ns_add_u32 s25, s25, s3\ns_lshl_b32 s25, s25, 7\ns_add_u32 s25, s25, %d\nv_mov_b32 v70, s25\nv_mov_b32 v71, 1", g, F_LN)
        A("s_mov_b64 exec, 1\nbuffer_atomic_add v71, v70, s[4:7], 0 offen sc0 sc1\ns_mov_b64 exec, -1")
        A("s_lshl_b32 s25, %s, 11\ns_add_u32 s25, s25, %d\nv_lshlrev_b32 v72, 7, v1\nv_add_u32 v72, s25, v72", g, F_REL)
        A("s_waitcnt vmcnt(0)\nv_readfirstlane_b32 s25, v71\ns_cmp_lg_u32 s25, %s\ns_cbranch_scc1 %s", last, out)
        A("s_mov_b64 exec, 0xffff\nbuffer_atomic_add v127, v72, s[4:7], 0 offen sc1\ns_mov_b64 exec, -1")
    if OPT["hfirst"] == "1":
        A("s_cmp_ge_u32 s23, 2\ns_cbranch_scc1 ln_x2")
        put_rows()
        A("s_waitcnt vmcnt(0)")
        count(4, 1, "ln_h2")
        A("s_cmp_lg_u32 s31, 0\ns_cbranch_scc1 ln_h2")
        stamp(A, 7)
        global_arrive("lna", 0, 23, "ln_h2")
        A("ln_h2:")
        A("s_branch ln_b\nln_x2:\nv_add_u32 v132, 4, v126\ns_mov_b32 s24, 0\nln_xw:\nds_read_b32 v133, v132\ns_add_u32 s24, s24, 1\ns_waitcnt lgkmcnt(0)\nv_readfirstlane_b32 s25, v133")
        A("s_cmp_ge_u32 s24, 0x400000\ns_cbranch_scc1 ln_xg\ns_cmp_ge_u32 s25, 2\ns_cbranch_scc1 ln_xg\ns_sleep 1\ns_branch ln_xw\nln_xg:")
        put_rows()
        A("s_waitcnt vmcnt(0)\nln_b:")
        count(16, 3, "ln_done")
        global_arrive("lnb", 1, 31, "ln_done")
    else:
        put_rows()
        A("s_waitcnt vmcnt(0)")
        count(4, 3, "ln_done")
        stamp(A, 7)
        A("s_lshl_b32 s30, s31, 4\ns_sub_u32 s30, 23, s30")
        global_arrive("lna", "s31", "s30", "ln_done")
    A("ln_done:\ns_setprio 0")

KRS = 272
GROWS = {}
for reg, p in enumerate([0, 1, 2, 3, 256, 258, 260, 262, 264, 512, 516, 520, 768, 772, 776]): GROWS[p] = (reg & 3) + 8 * (reg >> 2)
for reg, p in enumerate([4, 5, 6, 7, 1024, 1032, 1280, 1288, 1536, 1544, 1792, 1800]): GROWS[p] = (reg & 3) + 8 * (reg >> 2) + 4
KD, KFB, KFA = 80, 96, 128

def cmul(A, z, a, b, t):
    A("v_pk_mul_f32 %s, %s, %s op_sel:[0,0] op_sel_hi:[0,1]", vr(t, 2), vr(a, 2), vr(b, 2))
    A("v_pk_fma_f32 %s, %s, %s, %s op_sel:[1,1,0] op_sel_hi:[1,0,1] neg_lo:[0,1,0]", vr(z, 2), vr(a, 2), vr(b, 2), vr(t, 2))

def touch_w1(A, sn, vd, vt, rs, so):
    a, b, c = vt, vt + 1, vt + 2
    A("s_lshl_b32 s58, s%d, 6\nv_add_u32 v%d, s58, v1\nv_mul_u32_u24 v%d, 58255, v%d\nv_lshrrev_b32 v%d, 19, v%d", sn, a, b, a, b, b)
    A("v_mul_u32_u24 v%d, 9, v%d\nv_sub_u32 v%d, v%d, v%d\nv_mul_u32_u24 v%d, 9216, v%d\nv_lshl_add_u32 v%d, v%d, 7, v%d", c, b, a, a, c, b, b, a, a, b)
    A("buffer_load_dword v%d, v%d, s[%d:%d], s%d offen", vd, a, rs, rs + 3, so)

def kgen_params(A, ch, R):
    A("s_lshl_b32 s3, s%d, 1\nv_mov_b32 v3, s3\nbuffer_load_ushort v%d, v3, s[36:39], 0 offen", ch, R + 4)
    for i in range(4): A("buffer_load_ushort v%d, v2, s[%d:%d], 0 offen", R + i, 20 + 4 * i, 23 + 4 * i)

def kgen_addr(A, base):
    A("v_lshlrev_b32 v2, 2, v1\nv_add_u32 v2, s%d, v2", base)
    A("v_and_b32 v3, 31, v1\nv_mul_u32_u24 v3, %d, v3\nv_lshrrev_b32 v9, 5, v1\nv_lshl_add_u32 v3, v9, 4, v3\nv_add_u32 v3, s%d, v3", KRS, base)

def kgen_half(A, first):
    LOG2E = 1.4426950408889634
    A("v_lshlrev_b32 v8, 16, v8\nv_lshlrev_b32 v4, 16, v4\nv_mul_f32 v8, %s, v8\nv_mul_f32 v4, %s, v4\nv_exp_f32 v8, v8\nv_exp_f32 v4, v4", hx(LOG2E), hx(LOG2E))
    for i in (5, 6, 7): A("v_lshlrev_b32 v%d, 16, v%d", i, i)
    rbf(A, 8, 8); rbf(A, 4, 4)
    A("v_mul_f32 v4, v4, v8\nv_mul_f32 v5, v5, v8\nv_mul_f32 v4, %s, v4\nv_mul_f32 v5, %s, v5", hx(-LOG2E), hx(1 / (2 * math.pi)))
    G0 = 10
    A("v_add_f32 v8, v8, v8\nv_mul_f32 v%d, v6, v8\nv_mul_f32 v%d, v7, v8", G0, G0 + 1)
    E = {}
    nxt = [12]
    def alloc():
        r = nxt[0]; nxt[0] += 2; return r
    ps = (1, 8, 64, 256, 1024)
    for p in ps: E[p] = alloc()
    X = 60
    for i, p in enumerate(ps): A("v_mul_f32 v%d, %s, v4\nv_mul_f32 v%d, %s, v5", X + 2 * i, hx(float(p)), X + 2 * i + 1, hx(float(p)))
    for i, p in enumerate(ps): A("v_fract_f32 v%d, v%d", X + 2 * i + 1, X + 2 * i + 1)
    for i, p in enumerate(ps): A("v_exp_f32 v%d, v%d\nv_cos_f32 v%d, v%d\nv_sin_f32 v%d, v%d", X + 2 * i, X + 2 * i, E[p], X + 2 * i + 1, E[p] + 1, X + 2 * i + 1)
    for i, p in enumerate(ps): A("v_pk_mul_f32 %s, %s, %s op_sel:[0,0] op_sel_hi:[1,0]", vr(E[p], 2), vr(E[p], 2), vr(X + 2 * i, 2))
    TM, PKR = 128, 144
    def cmuls(jobs):
        for i, (z, a, b) in enumerate(jobs): A("v_pk_mul_f32 %s, %s, %s op_sel:[0,0] op_sel_hi:[0,1]", vr(TM + 2 * i, 2), vr(a, 2), vr(b, 2))
        for i, (z, a, b) in enumerate(jobs):
            A("v_pk_fma_f32 %s, %s, %s, %s op_sel:[1,1,0] op_sel_hi:[1,0,1] neg_lo:[0,1,0]", vr(z, 2), vr(a, 2), vr(b, 2), vr(TM + 2 * i, 2))
    def puts(rows, neg):
        for i, (row, r) in enumerate(rows): A("v_cvt_pk_bf16_f32 v%d, v%d, %sv%d", PKR + i, r, "-" if neg else "", r + 1)
        for i, (row, r) in enumerate(rows): A("ds_write_b32 v2, v%d offset:%d", PKR + i, row * KRS)
    for p in (2, 16, 128, 512, 4, 32, 192): E[p] = alloc()
    H = {1: E[8], 2: E[16], 4: E[32]}
    for j in (3, 5, 6, 7): H[j] = alloc()
    G = {0: G0}
    for p in (1, 2, 3, 4, 6, 256, 512, 516, 1024): G[p] = alloc()
    Z = [KFB + 2 * i for i in range(8)]
    cmuls([(E[p], E[p // 2], E[p // 2]) for p in (2, 16, 128, 512)] + [(G[1], G0, E[1]), (G[256], G0, E[256]), (G[1024], G0, E[1024])])
    A("v_mov_b32 v8, 0x3f80\nds_write_b32 v2, v8")
    cmuls([(E[4], E[2], E[2]), (E[32], E[16], E[16]), (E[192], E[64], E[128]), (H[3], H[1], H[2]), (G[2], G0, E[2]), (G[3], G[1], E[2]), (G[512], G0, E[512])])
    cmuls([(H[5], H[1], H[4]), (H[6], H[2], H[4]), (H[7], H[3], H[4]), (G[4], G0, E[4]), (G[6], G[2], E[4])])
    puts([(j, H[j]) for j in range(1, 8)] + [(8, E[64]), (16, E[128]), (24, E[192])], False)
    for a in (1, 2, 3):
        cmuls([(Z[j], H[j], E[64 * a]) for j in range(1, 8)])
        puts([(8 * a + j, Z[j]) for j in range(1, 8)], False)
    for p in (768, 1280, 1536, 1792): G[p] = alloc()
    assert nxt[0] <= 72, nxt[0]
    cmuls([(G[516], G[4], E[512]), (G[768], G[512], E[256]), (G[1280], G[1024], E[256]), (G[1536], G[1024], E[512])])
    for k in range(8): A("ds_read_b128 %s, v3 offset:%d", vr(KFB + 4 * k, 4), 32 * k)
    Z = [160 + 2 * i for i in range(8)]
    cmuls([(G[1792], G[1536], E[256]), (Z[0], G[1], E[4]), (Z[1], G[3], E[4]), (Z[2], G[2], E[256]), (Z[3], G[4], E[256]), (Z[4], G[6], E[256]), (Z[5], G[516], E[256])])
    puts([(GROWS[p], G[p]) for p in (0, 1, 2, 3, 4, 6, 256, 512, 516, 1024, 768, 1280, 1536, 1792)], True)
    puts([(GROWS[p], Z[i]) for i, p in enumerate((5, 7, 258, 260, 262, 772))], True)
    e8 = (256, 512, 768, 1024, 1280, 1536, 1792)
    cmuls([(Z[i], G[p], E[8]) for i, p in enumerate(e8)])
    puts([(GROWS[p + 8], Z[i]) for i, p in enumerate(e8)], True)
    for k in range(8): A("ds_read_b128 %s, v3 offset:%d", vr(KFA + 4 * k, 4), 32 * k)
    for k in range(8):
        A("s_waitcnt lgkmcnt(%d)", 7 - k)
        A("v_mfma_f32_32x32x16_bf16 %s, %s, %s, %s", vr(KD, 16), vr(KFA + 4 * k, 4), vr(KFB + 4 * k, 4), vr(KD, 16) if k or not first else "0")

def kgen_expand(A, base, store):
    A("v_and_b32 v3, 31, v1\nv_lshlrev_b32 v3, 4, v3\nv_add_u32 v3, s%d, v3\nv_lshrrev_b32 v4, 5, v1\nv_lshl_add_u32 v4, v4, 3, v3", base)
    A("v_and_b32 v5, 1, v1\nv_cmp_eq_u32 s[44:45], 1, v5")
    def pk2(d, a, b): A("v_cvt_pk_bf16_f32 v%d, v%d, v%d", d, a, b)
    r = lambda i: KD + i
    pk2(12, r(0), r(1)); pk2(13, r(2), r(3))
    store(12, 2, 4, 0)
    O = 16
    A("s_mov_b32 exec_lo, -1\ns_mov_b32 exec_hi, 0")
    for blk, seq in ((256, ((4, 4), (5, 6), (6, 6), (7, 8))), (512, ((9, 9), (9, 10), (10, 10), (11, 11))), (768, ((12, 12), (12, 13), (13, 13), (14, 14)))):
        for i, (a, b) in enumerate(seq): pk2(O + i, r(a), r(b))
        store(O, 4, 3, 2 * blk); O += 4
    A("s_mov_b32 exec_lo, 0\ns_mov_b32 exec_hi, -1")
    for blk, a in ((1024, 4), (1280, 6), (1536, 8), (1792, 10)):
        A("v_cndmask_b32 v8, v%d, v%d, s[44:45]", r(a), r(a + 1))
        pk2(O, r(a), r(a)); pk2(O + 1, r(a), r(a)); pk2(O + 2, 8, r(a + 1)); pk2(O + 3, r(a + 1), r(a + 1))
        store(O, 4, 3, 2 * blk); O += 4
    A("s_mov_b64 exec, -1")

def loader(A, tag, nstage, nslot, units, lead, cfg, gate=None):
    nu = len(units)
    R = cfg.get("R", 40)
    st = []
    for u in units:
        g = []
        for kind, si, *sub in u:
            if kind == "A":
                A("s_mul_i32 s%d, s%d, 3072\ns_add_u32 s%d, s%d, s20", R + 1, si, R, R + 1)
            else:
                A("s_mul_i32 s%d, s%d, %d\ns_add_u32 s%d, s%d, s21", R, si, cfg["bg_g"], R, R)
                A("s_mul_i32 s%d, s%d, %d\ns_add_u32 s%d, s%d, %d", R + 1, si, cfg["bg_l"], R + 1, R + 1, cfg["baseB"])
            g.append((kind, R, sub[0] if sub else range(3 if kind == "A" else len(cfg["vb"])))); R += 2
        A("s_mov_b32 s%d, 0\ns_mov_b32 s%d, 0", R, R + 1); st.append((g, R)); R += 2
    assert R <= 50 or not (cfg.get("seg") or cfg.get("rot")) and R <= 62, R
    q = []
    def issue(u, kinds="AB", skip=False):
        g, c = st[u % nu]
        for kind, r, sub in g:
            if kind not in kinds: continue
            A("s_mov_b32 m0, s%d", r + 1)
            if kind == "A":
                A("s_add_u32 s%d, s%d, 18432", r + 1, r + 1)
                if skip: A("s_cmp_lg_u32 s23, 0\ns_cbranch_scc1 %s_k%d_%d", tag, u, r)
                for i in sub: A("buffer_load_dwordx4 v2, s[12:15], s%d offen offset:%d %s lds", r, 1024 * i, cfg["aflag"])
                if skip: A("%s_k%d_%d:", tag, u, r)
                A("s_add_u32 s%d, s%d, %d", r, r, 0 if OPT["a0"] == "1" else 18432); q.extend([u // nu] * len(sub))
                if OPT["a0"] == "4": A("s_and_b32 s25, s26, 3\ns_cmp_eq_u32 s25, 3\ns_cselect_b32 s25, %d, 0\ns_sub_u32 s%d, s%d, s25", 4 * 18432, r, r)
            else:
                A("s_add_u32 s%d, s%d, %d", r + 1, r + 1, cfg["slotB"])
                for i in sub: A("buffer_load_dwordx4 v%d, s[16:19], s%d offen offset:%d %s lds", cfg["vb"][i], r, 1024 * i, cfg["bflag"])
                A("s_add_u32 s%d, s%d, %d", r, r, 0 if OPT["b0"] == "1" else cfg["b_stride"]); q.extend([u // nu] * len(sub))
                if OPT["b0"] == "4": A("s_and_b32 s25, s26, 3\ns_cmp_eq_u32 s25, 3\ns_cselect_b32 s25, %d, 0\ns_sub_u32 s%d, s%d, s25", 4 * cfg["b_stride"], r, r)
        if "A" in kinds and cfg.get("rot"):
            A("s_add_u32 s%d, s%d, 1\ns_cmp_eq_u32 s%d, s54\ns_cselect_b32 s24, s50, 0\ns_cselect_b32 s25, s51, 0", c + 1, c + 1, c + 1)
            for kind, r, sub in g: A("s_add_u32 s%d, s%d, s%d", r, r, 24 if kind == "A" else 25)
        if "A" in kinds and cfg.get("seg"):
            A("s_add_u32 s%d, s%d, 1\ns_cmp_eq_u32 s%d, %d\ns_cselect_b32 s24, s50, 0\ns_cselect_b32 s25, s51, 0", c + 1, c + 1, c + 1, cfg["seg"])
            A("s_cmp_eq_u32 s%d, %d\ns_cselect_b32 s24, s52, s24\ns_cselect_b32 s25, s53, s25", c + 1, 2 * cfg["seg"])
            for kind, r, sub in g: A("s_add_u32 s%d, s%d, s%d", r, r, 24 if kind == "A" else 25)
        if "A" in kinds:
            A("s_add_u32 s%d, s%d, 1\ns_cmp_lg_u32 s%d, %d\ns_cbranch_scc1 %s_w%d", c, c, c, nslot, tag, issue.n)
            A("s_mov_b32 s%d, 0", c)
            for kind, r, sub in g: A("s_sub_u32 s%d, s%d, %d", r + 1, r + 1, nslot * (18432 if kind == "A" else cfg["slotB"]))
            A("%s_w%d:", tag, issue.n); issue.n += 1
    issue.n = 0
    def allowed(i):
        last = max([k for k, s in enumerate(q) if s <= i], default=-1)
        return len(q) - 1 - last
    total = nstage * nu
    if "4" in (OPT["a0"], OPT["b0"]): A("s_mov_b32 s26, 0")
    if gate:
        for u in range(lead): issue(u, "B")
        gate()
        keep = cfg.get("rot") and OPT["keep"] == "1"
        if keep: A("s_cmp_eq_u32 s23, 0\ns_cbranch_scc1 %s_nk\ns_waitcnt vmcnt(%d)\n%s_nk:", tag, 1 if cfg["w"] == 4 else 0, tag)
        for u in range(lead): issue(u, "A", keep)
    else:
        for u in range(lead): issue(u)
    hook = cfg.get("hook")
    if hook: hook(True)
    stamp(A, cfg["stamp"])
    issued = lead
    checks = cfg.get("checks", {}) if cfg["w"] == 4 else {}
    def ask(i):
        setup, target, block = checks[i]
        setup()
        A("buffer_load_dword v75, v74, s[4:7], 0 offen sc1")
    def look(i, name):
        setup, target, block = checks[i]
        A("v_cmp_gt_u32 vcc, %d, v75\ns_cmp_eq_u64 vcc, 0\ns_cbranch_scc1 %s", target, name)
        block()
        A("%s:", name)
    def step(i, inloop=False):
        A("s_waitcnt vmcnt(%d)", allowed(i))
        rot = cfg.get("rot") if cfg["w"] == 4 and i < nstage - 2 else None
        if rot and not (defer and i == 0): rot[0](None if inloop else i, "%s_r%d" % (tag, i), npeel)
        for k in checks:
            if inloop and npeel <= k < npeel + nloop:
                A("s_cmp_lg_u32 s26, %d\ns_cbranch_scc1 %s_c%d", k - npeel, tag, k); look(k, "%s_c%d" % (tag, k))
            elif not inloop and k == i: look(k, "%s_c%d" % (tag, k))
        A("s_barrier")
        if rot: rot[1]("%s_q%d" % (tag, i))
        for k in checks:
            if inloop and npeel <= k - 1 < npeel + nloop:
                A("s_cmp_lg_u32 s26, %d\ns_cbranch_scc1 %s_a%d", k - 1 - npeel, tag, k); ask(k); A("%s_a%d:", tag, k)
            elif not inloop and k - 1 == i:
                ask(k); q.append(i + 1)
    npeel = (lead + nu - 1) // nu - 1 if gate else 0
    defer = cfg.get("rot") and OPT["defer"] == "1"
    if defer:
        assert lead == 2 * nu
        npeel = 2
    nloop = (total - issued) // nu - npeel
    for i in range(npeel):
        step(i)
        if defer and i == 1:
            for k in range(nu): issue(issued - nu + k, "A")
        for k in range(nu): issue(issued, "B" if defer and i == 0 else "AB"); issued += 1
        if hook: hook(False)
    A("s_mov_b32 s26, 0\n%s_loop:", tag)
    step(npeel, True)
    for k in range(nu): issue(issued + k)
    if hook: hook(False)
    A("s_add_u32 s26, s26, 1\ns_cmp_lt_u32 s26, %d\ns_cbranch_scc1 %s_loop", nloop, tag)
    for it in range(1, nloop):
        for k in range(nu):
            u = issued + it * nu + k
            q.extend([u // nu] * sum(len(sub) for _, _, sub in st[u % nu][0]))
    issued += nloop * nu
    for i in range(npeel + nloop, nstage):
        step(i)
        while issued < total:
            issue(issued); issued += 1
        if i in cfg.get("after", {}):
            n0 = len(A.l); cfg["after"][i](cfg["w"])
            q.extend([nstage] * sum("lds" in x for x in A.l[n0:]))

def ln_check(A, tag):
    return (lambda: A("s_and_b32 s24, s2, 15\ns_lshl_b32 s24, s24, 7\ns_add_u32 s24, s24, %d\nv_mov_b32 v74, s24", F_REL + 2048), 8, lambda: wait_ln(A, tag, 1))

def modadd(A, d, s, k, m):
    A("s_add_u32 s%d, s%d, %d\ns_cmp_ge_u32 s%d, %d\ns_cselect_b32 s25, %d, 0\ns_sub_u32 s%d, s%d, s25", d, s, k, d, m, m, d, d)

def loaders(A, tag, nstage, nslot, cfg, plan, after, gate=None):
    for k in range(1, 6): modadd(A, 30 + k, 30, k, 6)
    for k in range(1, 4): modadd(A, 35 + k, 29, k, 4)
    a = lambda k, *sub: ("A", 30 + k) + sub
    b = lambda k, *sub: ("B", 35 + k if k else 29) + sub
    A("s_setprio %s", OPT["lprio"])
    for w in (5, 6, 7): A("s_cmp_eq_u32 s10, %d\ns_cbranch_scc1 %s_%d", w, tag, w)
    for w, (units, lead) in zip((4, 5, 6, 7), plan(a, b)):
        if w > 4: A("%s_%d:", tag, w)
        c = dict(cfg, w=w, hook=(lambda first, w=w: cfg["touch"](w, first)) if cfg.get("touch") else None)
        loader(A, "%s%d" % (tag, w), nstage, nslot, units, lead, c, (lambda w=w: gate(w)) if gate else None)
        after(w)

def own_loaders(A, cfg, gate, after):
    NS, EL = 5, int(OPT["elead"])
    A("s_setprio %s", OPT["lprio"])
    A("s_cmp_eq_u32 s10, 6\ns_cbranch_scc1 ow_e\ns_cmp_eq_u32 s10, 5\ns_cbranch_scc1 ow_5\ns_cmp_eq_u32 s10, 7\ns_cbranch_scc1 ow_7")
    def adv(r, step, wrap, c):
        A("s_add_u32 s%d, s%d, %d\ns_cmp_eq_u32 s%d, %d\ns_cselect_b32 s25, %d, 0\ns_sub_u32 s%d, s%d, s25", r, r, step, c, NS - 1, wrap, r, r)
    for w, ag, bg in ((4, (0, 1), ((0, (0, 1, 2)), (1, (0,)))), (5, (2, 3), ((1, (1, 2)), (2, (0, 1)))), (7, (4, 5), ((2, (2,)), (3, (0, 1, 2))))):
        if w != 4: A("ow_%d:", w)
        t = "ow%d" % w
        A("s_add_u32 s40, s20, %d\ns_mov_b32 s41, %d\ns_mov_b32 s42, s21\ns_mov_b32 s43, %d\ns_mov_b32 s44, 0\ns_mov_b32 s45, 0", 3072 * ag[0], 3072 * ag[0], cfg["baseB"])
        def issue_b():
            for g, sub in bg:
                A("s_add_u32 m0, s43, %d\ns_add_u32 s24, s42, %d", 3072 * g, cfg["bg_g"] * g)
                for i in sub: A("buffer_load_dwordx4 v%d, s[16:19], s24 offen offset:%d lds", cfg["vb"][i], 1024 * i)
            A("s_add_u32 s42, s42, %d", 0 if OPT["b0"] == "1" else cfg["b_stride"])
            adv(43, cfg["slotB"], NS * cfg["slotB"], 44)
            A("s_add_u32 s44, s44, 1\ns_cmp_eq_u32 s44, %d\ns_cselect_b32 s44, 0, s44", NS)
        def issue_a(skip):
            if skip: A("s_cbranch_scc1 %s", skip)
            for k in range(2):
                A("s_add_u32 m0, s41, %d\ns_add_u32 s24, s40, %d", 3072 * k, 3072 * k)
                for i in range(3): A("buffer_load_dwordx4 v2, s[12:15], s24 offen offset:%d %s lds", 1024 * i, cfg["aflag"])
            if skip: A("%s:", skip)
            A("s_add_u32 s40, s40, %d", 0 if OPT["a0"] == "1" else 18432)
            adv(41, 18432, NS * 18432, 45)
            A("s_add_u32 s45, s45, 1\ns_cmp_eq_u32 s45, %d\ns_cselect_b32 s45, 0, s45", NS)
        issue_b(); issue_b(); gate(w); issue_a(None); issue_a(None)
        stamp(A, 1)
        A("s_sub_u32 s46, 8, s30\ns_cmp_ge_u32 s46, 6\ns_cselect_b32 s25, 6, 0\ns_sub_u32 s46, s46, s25\ns_mov_b32 s26, 2\ns_waitcnt vmcnt(6)\ns_barrier\n%s_l:", t)
        issue_b()
        A("s_cmp_lt_u32 s26, %d\ns_cselect_b32 s47, 1, s46\ns_cmp_eq_u32 s47, 0", EL)
        issue_a(t + "_s")
        A("s_add_u32 s46, s46, 1\ns_cmp_eq_u32 s46, 6\ns_cselect_b32 s46, 0, s46\ns_cmp_eq_u32 s47, 0\ns_cbranch_scc1 %s_w4\ns_waitcnt vmcnt(10)\n%s_w4:\ns_waitcnt vmcnt(10)", t, t)
        A("s_cbranch_scc0 %s_b\ns_waitcnt vmcnt(4)\n%s_b:\ns_barrier\ns_add_u32 s26, s26, 1\ns_cmp_lt_u32 s26, 32\ns_cbranch_scc1 %s_l", t, t, t)
        A("s_waitcnt vmcnt(0)\ns_barrier")
        after(w)
    A("ow_e:")
    gate(6)
    A("s_add_u32 s40, s20, %d\ns_mov_b32 s41, %d\ns_mov_b32 s45, %d\ns_sub_u32 s46, %d, s30", EL * 18432, EL * 18432, EL, EL + 6)
    for _ in range(2): A("s_cmp_ge_u32 s46, 6\ns_cselect_b32 s25, 6, 0\ns_sub_u32 s46, s46, s25")
    A("s_mov_b32 s26, 0\now_el:\ns_cmp_lg_u32 s46, %d\ns_cbranch_scc1 ow_nw\ns_waitcnt vmcnt(0)\now_nw:\ns_barrier", EL % 6)
    A("s_cmp_lg_u32 s46, 0\ns_cbranch_scc1 ow_ni\ns_cmp_ge_u32 s26, %d\ns_cbranch_scc1 ow_ni", 32 - EL)
    for k in range(6):
        A("s_add_u32 m0, s41, %d\ns_add_u32 s24, s40, %d", 3072 * k, 3072 * k)
        for i in range(3): A("buffer_load_dwordx4 v2, s[12:15], s24 offen offset:%d %s lds", 1024 * i, cfg["aflag"])
    A("ow_ni:\ns_add_u32 s40, s40, %d", 0 if OPT["a0"] == "1" else 18432)
    adv(41, 18432, NS * 18432, 45)
    A("s_add_u32 s45, s45, 1\ns_cmp_eq_u32 s45, %d\ns_cselect_b32 s45, 0, s45", NS)
    A("s_add_u32 s46, s46, 1\ns_cmp_eq_u32 s46, 6\ns_cselect_b32 s46, 0, s46\ns_add_u32 s26, s26, 1\ns_cmp_lt_u32 s26, 32\ns_cbranch_scc1 ow_el")
    after(6)

def consumer(A, tag, nstage, nslot, reads, mfmas, pattern, stamps, extra=None, drain=False):
    rem = nstage % nslot
    def half(pend, mf, rd, emit):
        rd = list(rd)
        for i, m in enumerate(mf):
            use = I(m).srcab
            pend[:] = [(w, age + 1) for w, age in pend]
            last = max([k for k, (w, _) in enumerate(pend) if w & use], default=-1)
            if last >= 0:
                last = max([last] + [k for k, (_, age) in enumerate(pend) if age >= int(OPT["age"])])
                n = min(15, len(pend) - 1 - last)
                if emit: A("s_waitcnt lgkmcnt(%d)", n)
                del pend[:len(pend) - n]
            if emit: A(m)
            for _ in range(pattern[i] if i < len(pattern) else 0):
                if rd:
                    x = rd.pop(0); pend.append((I(x).w, 0))
                    if emit: A(x)
        for x in rd:
            pend.append((I(x).w, 0))
            if emit: A(x)
    pend = []
    half(pend, mfmas(0), reads(0, 1, 1), False)
    A("s_mov_b32 s26, 0\ns_barrier")
    if OPT["stamp"] == "1": stamp(A, stamps[0]); A("s_waitcnt lgkmcnt(0)")
    for x in reads(0, 0, 0): A(x)
    A("s_waitcnt lgkmcnt(0)\ns_branch %s_mid\n.p2align 6\n%s_loop:", tag, tag)
    for slot in range(nslot):
        p = list(pend)
        A("s_barrier")
        half(p, mfmas(1), reads(slot, 0, 0), True)
        if slot == 0: A("%s_mid:", tag)
        if extra: extra(slot, 0)
        half(p, mfmas(0), reads(slot, 1, 1), True)
        if extra: extra(slot, 1)
        if drain: A("s_waitcnt lgkmcnt(0)")
        if slot == (rem - 1) % nslot:
            A("s_add_u32 s26, s26, 1\ns_cmp_eq_u32 s26, %d\ns_cbranch_scc1 %s_done", (nstage + nslot - 1) // nslot, tag)
    A("s_branch %s_loop\n%s_done:", tag, tag)
    half(list(pend), mfmas(1), [], True)
    stamp(A, stamps[1])

def pat(s): return [int(c) for c in s]

def poll(A, tag, so, target, va=70, sleep="0"):
    A("v_mov_b32 v%d, s%d\ns_mov_b64 exec, 1\ns_mov_b32 s24, 0\n%s_p:", va, so, tag)
    A("buffer_load_dword v%d, v%d, s[4:7], 0 offen sc1\ns_add_u32 s24, s24, 1\ns_waitcnt vmcnt(0)\nv_readfirstlane_b32 s25, v%d", va + 1, va, va + 1)
    A("s_cmp_ge_u32 s24, 0x40000\ns_cbranch_scc1 %s_g\ns_cmp_ge_u32 s25, %d\ns_cbranch_scc1 %s_g\n%s\ns_branch %s_p\n%s_g:\ns_mov_b64 exec, -1", tag, target, tag, "s_sleep " + sleep if sleep != "0" else "", tag, tag)

def poll_all(A, tag, n, base, target, rs=4, va=70):
    A("v_and_b32 v%d, %d, v1\nv_lshlrev_b32 v%d, 7, v%d\nv_add_u32 v%d, %d, v%d\ns_mov_b32 s24, 0\n%s_p:", va, n - 1, va, va, va, base, va, tag)
    A("buffer_load_dword v%d, v%d, s[%d:%d], 0 offen sc1\ns_add_u32 s24, s24, 1\ns_waitcnt vmcnt(0)\nv_cmp_gt_u32 vcc, %d, v%d", va + 1, va, rs, rs + 3, target, va + 1)
    A("s_cmp_ge_u32 s24, 0x40000\ns_cbranch_scc1 %s_g\ns_cmp_eq_u64 vcc, 0\ns_cbranch_scc1 %s_g\ns_sleep %s\ns_branch %s_p\n%s_g:", tag, tag, OPT["gsleep"], tag, tag)

def lds_wait(A, tag, addr, target, va):
    A("v_mov_b32 v%d, %d\ns_mov_b32 s24, 0\n%s:\nds_read_b32 v%d, v%d\ns_add_u32 s24, s24, 1\ns_waitcnt lgkmcnt(0)\nv_readfirstlane_b32 s25, v%d", va, addr, tag, va + 1, va, va + 1)
    A("s_cmp_ge_u32 s24, 0x400000\ns_cbranch_scc1 %s_d\ns_cmp_ge_u32 s25, %d\ns_cbranch_scc1 %s_d\ns_sleep 2\ns_branch %s\n%s_d:", tag, target, tag, tag, tag)

def wait_ln(A, tag, g=0):
    A("s_and_b32 s24, s2, 15\ns_lshl_b32 s24, s24, 7\ns_add_u32 s62, s24, %d", F_REL + 2048 * g)
    poll(A, tag, 62, 8, sleep=OPT["psleep"])

def arrive(A, so, va=70):
    A("v_mov_b32 v%d, s%d\nv_mov_b32 v%d, 1\ns_mov_b64 exec, 1\nbuffer_atomic_add v%d, v%d, s[4:7], 0 offen sc1\ns_mov_b64 exec, -1", va, so, va + 1, va + 1, va)


def tile_ids(A, i, ft, dt, t):
    A("s_and_b32 s25, s3, 1\ns_mul_i32 s25, s25, 18\ns_add_u32 s%d, s%d, s25\ns_and_b32 s%d, s%d, 3\ns_lshr_b32 s%d, s%d, 2", t, i, dt, t, ft, t)
    A("s_lshr_b32 s25, s3, 1\ns_mul_i32 s24, s25, 9\ns_add_u32 s%d, s%d, s24\ns_mul_i32 s25, s25, 36\ns_add_u32 s%d, s%d, s25", ft, ft, t, t)

def gemm1(A):
    ln_phase(A)
    HK = int(OPT["hk"]); NM = 32 - HK
    NS, SB, BB = 4, 16384, 4 * 18432
    A("s_sub_u32 s22, s11, 18\ns_cmp_ge_u32 s11, 18\ns_cselect_b32 s22, s22, s11")
    tile_ids(A, 22, 28, 29, 27)
    A("s_lshr_b32 s24, s3, 1\ns_lshl_b32 s23, s24, 2\ns_add_u32 s23, s23, s29")
    if OPT["rot"] == "1": A("s_sub_u32 s23, s23, s24\ns_mul_i32 s23, s23, 9\ns_add_u32 s23, s23, s28")
    A("s_lshl_b32 s23, s23, 7\ns_add_u32 s23, s23, %d\ns_cmp_ge_u32 s11, 18\ns_cselect_b32 s23, 0, s23", F_H)
    A("s_cmp_ge_u32 s10, 4\ns_cbranch_scc0 g1_cons")
    A("v_lshlrev_b32 v2, 4, v1\nv_lshrrev_b32 v7, 4, v1\nv_and_b32 v8, 15, v1")
    for i in range(4):
        A("v_lshlrev_b32 v10, 1, v7\nv_xor_b32 v10, v10, v8\nv_xor_b32 v10, %d, v10\nv_add_u32 v9, %d, v7\nv_mul_u32_u24 v9, 9216, v9\nv_lshl_add_u32 v9, v10, 4, v9\nv_subrev_u32 v%d, %d, v9",
          8 * (i >> 1), 4 * i, 3 + i, 1024 * i)
    A("s_mul_i32 s20, s29, 589824\ns_lshl_b32 s21, s28, 8\ns_lshr_b32 s30, s11, 2")
    srd(A, 12, P_WS, SZ, WS_HT); srd(A, 16, P_W1, SZ_W)
    lds_wait(A, "g1go", LCNT + 28, 1, 70)
    def gate(w, tag="g1"):
        if w == 4:
            srd(A, 4, P_WS, SZ_F, WS_F)
            wait_ln(A, tag + "ln")
            stamp(A, 2)
        A("s_barrier")
    lam = int(OPT["lam1"])
    uni = lambda a, b: [([[a(0), a(1, [0])], [b(0)]], lam), ([[a(2), a(1, [1, 2])], [b(1)]], lam), ([[a(3), a(4, [0])], [b(2)]], lam), ([[a(5), a(4, [1, 2])], [b(3)]], lam)]
    skew = lambda a, b: [([[a(1), a(2, [0])], [b(0), b(1, [0])]], lam), ([[a(3), a(2, [1])], [b(1, [1, 2, 3]), b(2, [0, 1])]], lam), ([[a(0), a(4)]], NS - 2),
                         ([[a(5), a(2, [2])], [b(2, [2, 3]), b(3)]], lam)]
    skew2 = lambda a, b: [([[a(1)], [a(2), a(3)]], lam), ([[a(4), a(5, [0, 1])], [b(1)]], lam), ([[a(0), b(0)]], NS - 2), ([[b(2), a(5, [2])], [b(3)]], lam)]
    skew3 = lambda a, b: [([[a(1), a(2, [0])], [b(1)]], lam), ([[a(3), a(2, [1, 2])], [b(2)]], lam), ([[a(0), a(4), b(0)]], NS - 2), ([[a(5)], [b(3)]], lam)]
    cfg = dict(vb=(3, 4, 5, 6), bg_g=16 * 9216, bg_l=4096, baseB=BB, slotB=SB, b_stride=64 * 9216, aflag=OPT["af1"], bflag="", stamp=1)
    A("s_cmp_ge_u32 s11, 18\ns_cbranch_scc1 g1_hload")
    A("s_add_u32 s20, s20, %d\ns_add_u32 s21, s21, %d\ns_lshl_b32 s62, s27, 7\ns_add_u32 s39, s62, %d", HK * 18432, HK * 64 * 9216, F_Q)
    QOFF = [BB + NS * SB, BB + NS * SB + 9216, ((NM - 4) % 4) * 18432, ((NM - 4) % 4) * 18432 + 9216]
    def take(w):
        srd(A, 12, P_WS, SZ_Q, WS_Q)
        A("s_mul_i32 s24, s27, 36864\ns_add_u32 s24, s24, %d", 9216 * (w - 4))
        for g in range(3):
            A("s_mov_b32 m0, %d", QOFF[w - 4] + 3072 * g)
            for i in range(3): A("buffer_load_dwordx4 v2, s[12:15], s24 offen offset:%d sc1 lds", 1024 * i)
            A("s_add_u32 s24, s24, 3072")
    loaders(A, "g1l", NM, NS, dict(cfg, checks={24 - HK - 3: ln_check(A, "g1lo"), NM - 2: (lambda: A("v_mov_b32 v74, s39"), 4, lambda: poll(A, "g1q", 39, 4))}, after={NM - 2: take}),
            [uni, skew, skew2, skew3][int(OPT["plan1"])], lambda w: A("s_branch g2_load"), lambda w: gate(w, "g1m"))
    A("g1_hload:")
    for k in range(2):
        A("s_sub_u32 s22, s11, %d", 18 - 6 * (k + 1))
        tile_ids(A, 22, 31, 32, 33)
        A("s_sub_u32 s24, s32, s29\ns_mul_i32 s24, s24, 589824\ns_sub_u32 s%d, s24, %d", 50 + 2 * k, HK * 18432)
        A("s_sub_u32 s24, s31, s28\ns_lshl_b32 s24, s24, 8\ns_sub_u32 s%d, s24, %d\ns_mov_b32 s28, s31\ns_mov_b32 s29, s32", 51 + 2 * k, HK * 64 * 9216)
    A("s_mov_b32 s30, 0\ns_mov_b32 s29, 0")
    loaders(A, "g1h", 3 * HK, NS, dict(cfg, seg=HK, R=39), uni, lambda w: A("s_branch g2_load"), lambda w: gate(w, "g1h"))
    A("g1_cons:")
    ACC, FX, FY, BI = 8, 80, 124, 168
    A("v_lshrrev_b32 v144, 4, v1\nv_and_b32 v145, 15, v1\nv_mul_u32_u24 v192, 2304, v144\nv_lshl_add_u32 v192, v145, 4, v192\nv_add_u32 v3, %d, v192", 3 * 18432)
    A("v_bfe_u32 v147, v1, 2, 2\nv_and_b32 v148, 1, v144\nv_lshl_add_u32 v148, v148, 2, v147\nv_lshl_add_u32 v147, v144, 3, v147\nv_lshlrev_b32 v147, 8, v147")
    A("v_and_b32 v149, 3, v1\nv_lshl_add_u32 v147, v149, 3, v147\nv_add_u32 v147, %d, v147\ns_lshl_b32 s25, s10, 1\nv_xor_b32 v148, s25, v148", BB)
    A("v_lshl_add_u32 v4, v148, 5, v147\nv_xor_b32 v148, 1, v148\nv_lshl_add_u32 v5, v148, 5, v147\nv_lshlrev_b32 v150, 3, v144\nv_lshlrev_b32 v184, 4, v1")
    A("v_mov_b32 v2, v192")
    def reads(slot, ks, st):
        F = FY if st else FX
        o = (0 if slot == 3 else slot) * 18432 + ks * 9216
        a = ["ds_read_b128 %s, v%d offset:%d" % (vr(F + 8 + 4 * t, 4), 3 if slot == 3 else 2, o + 256 * t) for t in range(9)]
        b = ["ds_read_b64_tr_b16 %s, v%d offset:%d" % (vr(F + 4 * j + 2 * h, 2), 4 + j, slot * SB + ks * 8192 + h * 1024) for j in range(2) for h in range(2)]
        return b + a
    def mfmas(st):
        F = FY if st else FX
        return ["v_mfma_f32_16x16x32_bf16 %s, %s, %s, %s" % (vr(ACC + 8 * t + 4 * j, 4), vr(F + 4 * j, 4), vr(F + 8 + 4 * t, 4), vr(ACC + 8 * t + 4 * j, 4)) for t in range(9) for j in range(2)]
    A("s_cmp_ge_u32 s11, 18\ns_cbranch_scc1 g1_hcons")
    srd(A, 12, P_B1, 9216); srd(A, 16, P_WS, SZ_H, WS_H)
    A("s_lshl_b32 s25, s28, 8\ns_lshl_b32 s24, s10, 6\ns_add_u32 s25, s25, s24")
    A("buffer_load_dwordx2 %s, v150, s[12:15], s25 offen\nbuffer_load_dwordx2 %s, v150, s[12:15], s25 offen offset:32", vr(BI, 2), vr(BI + 2, 2))
    A("s_mul_i32 s32, s29, %d\ns_lshl_b32 s25, s28, 2\ns_add_u32 s25, s25, s10\ns_mul_i32 s25, s25, %d\ns_add_u32 s32, s32, s25", 576 * 2304, 4 * 2304)
    A("s_mov_b32 s25, %d\ns_cmp_ge_u32 s10, 2\ns_cselect_b32 s25, %d, s25\ns_and_b32 s24, s10, 1\ns_mul_i32 s24, s24, 9216\ns_add_u32 s25, s25, s24\nv_add_u32 v185, s25, v184", QOFF[0], QOFF[2])
    SEL = 172
    A("v_lshrrev_b32 v146, 2, v145\nv_cmp_eq_u32 s[34:35], v146, v144\nv_and_b32 v146, 1, v145\nv_lshlrev_b32 v146, 4, v146\nv_mov_b32 v149, 0x3f80\nv_lshlrev_b32 v146, v146, v149")
    A("v_cndmask_b32 v146, 0, v146, s[34:35]\nv_and_b32 v149, 2, v145\nv_cmp_eq_u32 s[34:35], 0, v149")
    A("v_cndmask_b32 v%d, 0, v146, s[34:35]\nv_cndmask_b32 v%d, v146, 0, s[34:35]", SEL + 2, SEL + 3)
    for r in (0, 1, 4, 5): A("v_mov_b32 v%d, 0", SEL + r)
    A("s_waitcnt vmcnt(0)")
    for i in range(4): unpack(A, ACC + 2 * i, ACC + 2 * i + 1, BI + i)
    for t in range(1, 9):
        for e in range(0, 8, 2): A("v_mov_b64 %s, %s", vr(ACC + 8 * t + e, 2), vr(ACC + e, 2))
    A("s_waitcnt lgkmcnt(0)\ns_barrier")
    def seg(slot, h):
        if slot == 0 and h == 0:
            for it, k in ((1, 7), (2, 3), (4, 4), (5, 5)):
                A("s_cmp_lg_u32 s26, %d\ns_cbranch_scc1 g1s_%d", it, k); stamp(A, k); A("s_waitcnt lgkmcnt(0)\ng1s_%d:", k)
    consumer(A, "g1c", NM, NS, reads, mfmas, pat(OPT["gap2"]), (1, 2), seg if OPT["lnst"] == "2" else None)
    A("s_barrier")
    for t in range(9): A("ds_read_b128 %s, v185 offset:%d", vr(FX + 4 * t, 4), 1024 * t)
    A("s_mul_i32 s25, s10, 9216\nv_add_u32 v3, s25, v2")
    c0 = -2 * math.sqrt(2 / math.pi) * 1.4426950408889634
    A("v_mov_b32 v4, %s\nv_mov_b32 v5, %s\nv_mov_b32 v6, %s\nv_mov_b32 v7, %s\nv_mov_b32 v186, 1.0\nv_mov_b32 v187, 1.0", hx(c0), hx(c0), hx(c0 * 0.044715), hx(c0 * 0.044715))
    for t in range(9):
        A("s_waitcnt lgkmcnt(%d)", 8 - t)
        for j in range(2): A("v_mfma_f32_16x16x32_bf16 %s, %s, %s, %s", vr(ACC + 8 * t + 4 * j, 4), vr(SEL + 2 - 2 * j, 4), vr(FX + 4 * t, 4), vr(ACC + 8 * t + 4 * j, 4))
    for t in range(9):
        a = ACC + 8 * t; T = 188 + 8 * (t & 1); O = FY + 4 * t
        for i in range(4): A("v_pk_mul_f32 %s, %s, %s", vr(T + 2 * i, 2), vr(a + 2 * i, 2), vr(a + 2 * i, 2))
        for i in range(4): A("v_pk_fma_f32 %s, %s, v[6:7], v[4:5]", vr(T + 2 * i, 2), vr(T + 2 * i, 2))
        for i in range(4): A("v_pk_mul_f32 %s, %s, %s", vr(T + 2 * i, 2), vr(T + 2 * i, 2), vr(a + 2 * i, 2))
        for i in range(8): A("v_exp_f32 v%d, v%d", T + i, T + i)
        for i in range(4): A("v_pk_add_f32 %s, %s, v[186:187]", vr(T + 2 * i, 2), vr(T + 2 * i, 2))
        for i in range(8): A("v_rcp_f32 v%d, v%d", T + i, T + i)
        for i in range(4): A("v_pk_mul_f32 %s, %s, %s", vr(T + 2 * i, 2), vr(T + 2 * i, 2), vr(a + 2 * i, 2))
        for i in range(4): A("v_cvt_pk_bf16_f32 v%d, v%d, v%d", O + i, T + 2 * i, T + 2 * i + 1)
        A("buffer_store_dwordx4 %s, v2, s[16:19], s32 offen offset:%d sc1", vr(O, 4), 256 * t)
        if OPT["keep"] == "1": A("ds_write_b128 v3, %s offset:%d", vr(O, 4), 256 * t)
    A("s_branch g2_cons\ng1_hcons:")
    srd(A, 12, P_WS, SZ_Q, WS_Q); srd(A, 4, P_WS, SZ_F, WS_F)
    A("s_mul_i32 s32, s27, 36864\ns_mul_i32 s25, s10, 9216\ns_add_u32 s32, s32, s25\ns_lshl_b32 s33, s27, 7\ns_add_u32 s33, s33, %d\ns_mov_b32 s34, -1", F_Q)
    for r in range(ACC, ACC + 72, 2): A("v_mov_b64 %s, 0", vr(r, 2))
    A("s_getpc_b64 s[36:37]\ng1_pc:\ns_add_u32 s36, s36, g1_flush-g1_pc\ns_addc_u32 s37, s37, 0\ns_waitcnt lgkmcnt(0)\ns_barrier")
    PK = 168
    def flush(zero):
        for t in range(9):
            if t % 4 == 0 and t: A("s_add_u32 s32, s32, 4096")
            for i in range(4): A("v_cvt_pk_bf16_f32 v%d, v%d, v%d", PK + 4 * t + i + (4 if t >= 4 else 0), ACC + 8 * t + 2 * i, ACC + 8 * t + 2 * i + 1)
            A("buffer_store_dwordx4 %s, v184, s[12:15], s32 offen offset:%d sc1", vr(PK + 4 * t + (4 if t >= 4 else 0), 4), 1024 * (t % 4))
            if zero:
                for e in range(0, 8, 2): A("v_mov_b64 %s, 0", vr(ACC + 8 * t + e, 2))
    def ex(slot, h):
        if h == 0:
            A("s_add_u32 s34, s34, 1\ns_cmp_lg_u32 s34, %d\ns_cbranch_scc1 g1x_%d\ns_swappc_b64 s[38:39], s[36:37]\ng1x_%d:", HK, slot, slot)
        else:
            A("s_cmp_lg_u32 s34, 2\ns_cbranch_scc1 g1y_%d\ns_cmp_eq_u32 s35, 0\ns_cbranch_scc1 g1y_%d\ns_waitcnt vmcnt(0)", slot, slot)
            arrive(A, 35, 6)
            A("g1y_%d:", slot)
    A("s_mov_b32 s35, 0")
    consumer(A, "g1d", 3 * HK, NS, reads, mfmas, pat(OPT["gap2"]), (1, 2), ex)
    A("s_barrier")
    flush(False)
    A("s_waitcnt vmcnt(0)")
    arrive(A, 33, 6)
    A("s_branch g2_cons\ng1_flush:\ns_nop 7")
    flush(True)
    A("s_add_u32 s32, s32, %d\ns_mov_b32 s35, s33\ns_add_u32 s33, s33, %d\ns_mov_b32 s34, 0\ns_nop 1\ns_setpc_b64 s[38:39]", 6 * 36864 - 8192, 6 * 128)

def gemm1_96(A):
    ln_phase(A)
    A("s_mul_i32 s28, s3, 6\ns_lshr_b32 s30, s11, 2\ns_add_u32 s28, s28, s30\ns_and_b32 s29, s11, 3")
    A("s_lshr_b32 s23, s3, 1\ns_lshl_b32 s23, s23, 2\ns_add_u32 s23, s23, s29\ns_lshl_b32 s23, s23, 7\ns_add_u32 s23, s23, %d", F_H)
    A("s_cmp_ge_u32 s10, 4\ns_cbranch_scc0 g1_cons")
    NS, SB, BB = 5, 12288, 5 * 18432
    A("v_lshlrev_b32 v2, 4, v1")
    for i in range(3):
        A("v_add_u32 v6, %d, v1\nv_mul_u32_u24 v7, 5462, v6\nv_lshrrev_b32 v7, 16, v7\nv_mul_u32_u24 v8, 12, v7\nv_sub_u32 v6, v6, v8", 64 * i)
        A("v_lshrrev_b32 v8, 2, v7\nv_and_b32 v8, 2, v8\nv_xor_b32 v6, v6, v8\nv_mul_u32_u24 v7, 9216, v7\nv_lshl_add_u32 v6, v6, 4, v7\nv_subrev_u32 v%d, %d, v6", 3 + i, 1024 * i)
    A("s_mul_i32 s20, s29, 589824\ns_mul_i32 s21, s28, 192")
    srd(A, 12, P_WS, SZ, WS_HT); srd(A, 16, P_W1, SZ_W)
    lds_wait(A, "g1go", LCNT + 28, 1, 70)
    def gate(w, tag="g1"):
        if w == 4:
            srd(A, 4, P_WS, SZ_F, WS_F)
            wait_ln(A, tag + "ln")
            stamp(A, 2)
        n = int(OPT["gpf"])
        if w in (5, 6) and n:
            A("v_lshrrev_b32 v20, 3, v1\nv_and_b32 v21, 7, v1\nv_mul_u32_u24 v22, 9216, v20\nv_lshl_add_u32 v22, v21, 7, v22")
            A("s_lshl_b32 s24, s11, 1\ns_add_u32 s24, s24, %d\ns_mul_i32 s24, s24, %d\ns_mul_i32 s25, s3, 1152\ns_add_u32 s24, s24, s25", w - 5, 8 * 9216)
            for i in range(n): A("buffer_load_dword v23, v22, s[16:19], s24 offen\ns_add_u32 s24, s24, %d", 48 * 8 * 9216)
            if w == 5:
                A("v_mul_u32_u24 v22, 9216, v1\nv_add_u32 v22, 1024, v22\ns_mul_i32 s24, s11, %d\ns_add_u32 s24, s24, s25\ns_cmp_ge_u32 s11, %d\ns_cbranch_scc1 g1_n9", 64 * 9216, 6 * n)
                A("buffer_load_dword v23, v22, s[16:19], s24 offen\ng1_n9:")
        A("s_barrier")
    lam = int(OPT["lam1"])
    if OPT["s1"] == "1":
        plan = lambda a, b: [([[a(1)], [a(2)]], lam), ([[a(3)], [a(4)]], lam), ([[a(0), b(0)]], NS - 2), ([[a(5), b(1)], [b(2), b(3)]], lam)]
    elif OPT["s1"] == "2":
        plan = lambda a, b: [([[a(1), b(0, [0])], [a(2), b(0, [1, 2])]], lam), ([[a(3), b(1, [0])], [a(4), b(1, [1, 2])]], lam), ([[a(0)]], NS - 2), ([[a(5), b(2, [0, 1])], [b(2, [2]), b(3)]], lam)]
    elif OPT["dist"] == "1":
        plan = lambda a, b: [([[a(0), a(1)], [a(2), a(3)]], lam), ([[a(4), b(0)], [b(1), b(2)]], lam), ([[a(5)], [b(3)]], lam), ([[], []], lam)]
    elif OPT["dist"] == "2":
        plan = lambda a, b: [([[a(0), b(0)], [a(1)]], lam), ([[a(2)], [a(3), b(1)]], lam), ([[a(4)], [a(5)]], lam), ([[b(2)], [b(3)]], lam)]
    elif OPT["dist"] == "4":
        plan = lambda a, b: [([[a(0), b(0, [0])], [a(1)]], lam), ([[a(2)], [a(3), b(0, [1])]], lam), ([[a(4), b(0, [2])], [a(5)]], lam), ([[b(1), b(2, [0, 1])], [b(2, [2]), b(3)]], lam)]
    elif OPT["dist"] == "5":
        plan = lambda a, b: [([[a(0), b(0, [0])], [a(1, [0]), b(1)]], lam), ([[a(2), b(0, [1])], [a(1, [1]), b(2)]], lam),
                             ([[a(3), b(0, [2])], [a(4)]], lam), ([[a(5)], [a(1, [2]), b(3)]], lam)]
    elif OPT["dist"] == "3":
        plan = lambda a, b: [([[a(0)], []], lam), ([[], [a(1)]], lam), ([[a(2)], [a(3)]], lam), ([[a(4), b(0), b(1)], [a(5), b(2), b(3)]], lam)]
    else:
        plan = lambda a, b: [([[a(0)], [a(1)]], lam), ([[a(2)], [a(3)]], lam), ([[a(4)], [a(5)]], lam), ([[b(0), b(1)], [b(2), b(3)]], lam)]
    def touch(w, first):
        if w == 7 or OPT["ht"] != "1": return
        ld = "buffer_load_dword v23, v24, s[12:15], s39 offen %s" % OPT["af1"]
        if first:
            A("v_min_u32 v24, 47, v1\nv_lshlrev_b32 v24, 7, v24\ns_and_b32 s39, s30, 1\ns_add_u32 s39, s39, 2\ns_mul_i32 s39, s39, 18432\ns_add_u32 s39, s39, s20\ns_add_u32 s39, s39, %d", 6144 * (w - 4))
            A(ld)
            A("s_add_u32 s39, s30, %s\ns_mul_i32 s39, s39, 18432\ns_add_u32 s39, s39, s20\ns_add_u32 s39, s39, %d\ns_mov_b32 s27, 0", OPT["htl"], 6144 * (w - 4))
            A(ld)
        else:
            touch.n += 1
            A("s_add_u32 s27, s27, 1\ns_cmp_lg_u32 s27, 7\ns_cbranch_scc1 g1t_%d\ns_mov_b32 s27, 1\ns_add_u32 s39, s39, %d", touch.n, 6 * 18432)
            A(ld)
            A("g1t_%d:", touch.n)
    touch.n = 0
    cfg1 = dict(checks={20: ln_check(A, "g1lo")}, touch=touch, vb=(3, 4, 5), bg_g=16 * 9216, bg_l=3072, baseB=BB, slotB=SB, b_stride=64 * 9216, aflag=OPT["af1"] + " " + OPT["nt1"], bflag=OPT["bf1"].replace("+", " "), stamp=1)
    if OPT["s1"] == "3": own_loaders(A, cfg1, gate, lambda w: A("s_branch g2_load"))
    else: loaders(A, "g1l", 32, NS, cfg1, plan, lambda w: A("s_branch g2_load"), gate)
    A("g1_cons:")
    ACC, FX, FY, VB, BI = 16, 72, 108, 6, 152
    A("v_lshrrev_b32 v144, 4, v1\nv_and_b32 v145, 15, v1")
    A("v_mul_u32_u24 v146, 2304, v144\nv_lshl_add_u32 v146, v145, 4, v146")
    A("s_lshl_b32 s25, s10, 9\nv_add_u32 v192, s25, v146\nv_add_u32 v3, 2048, v146\nv_add_u32 v4, %d, v192\nv_add_u32 v5, %d, v3", 3 * 18432, 3 * 18432)
    A("v_bfe_u32 v147, v1, 2, 2\nv_lshl_add_u32 v147, v144, 3, v147\nv_mul_u32_u24 v147, 192, v147\nv_and_b32 v148, 3, v1\nv_lshl_add_u32 v147, v148, 3, v147")
    A("v_add_u32 v147, %d, v147\nv_and_b32 v148, 1, v144\nv_lshlrev_b32 v148, 5, v148\nv_xor_b32 v149, 32, v148\nv_add_u32 v148, v148, v147\nv_add_u32 v149, v149, v147", BB)
    A("s_mul_i32 s27, s29, %d\ns_mul_i32 s25, s28, %d\ns_add_u32 s27, s27, s25\nv_lshlrev_b32 v150, 3, v144\ns_mul_i32 s30, s28, 192", 576 * 2304, 12 * 2304)
    A("v_mov_b32 v2, v192")
    srd(A, 12, P_B1, 9216); srd(A, 16, P_WS, SZ_H, WS_H)
    for u in range(3):
        modadd(A, 31, 10, u, 3)
        A("s_lshl_b32 s25, s31, 6\nv_add_u32 v%d, s25, v148\nv_add_u32 v%d, s25, v149\ns_add_u32 s25, s25, s30", VB + 2 * u, VB + 2 * u + 1)
        A("buffer_load_dwordx2 %s, v150, s[12:15], s25 offen\nbuffer_load_dwordx2 %s, v150, s[12:15], s25 offen offset:32", vr(BI + 4 * u, 2), vr(BI + 4 * u + 2, 2))
        A("s_mul_i32 s31, s31, %d\ns_add_u32 s%d, s31, s27", 4 * 2304, 32 + u)
    acc = lambda t, n: ACC + 4 * (6 * t + n) if t < 2 else ACC + 48 + 4 * n
    A("s_waitcnt vmcnt(0)")
    for n in range(6):
        for h in range(2): unpack(A, acc(0, n) + 2 * h, acc(0, n) + 2 * h + 1, BI + 2 * n + h)
    for n in range(6):
        for t in ((1, 2) if n < 2 else (1,)):
            for e in range(4): A("v_mov_b32 v%d, v%d", acc(t, n) + e, acc(0, n) + e)
    def mk(nt):
        def reads(slot, ks, st):
            F = FY if st else FX
            o = (slot % 3 if slot >= 3 else slot) * 18432 + ks * 9216
            va = 4 if slot >= 3 else 2
            a = [["ds_read_b128 %s, v%d offset:%d" % (vr(F + 24 + 4 * t, 4), va + (t == 2), o + (256 if t == 1 else 0))] if t < nt else [] for t in range(3)]
            b = [["ds_read_b64_tr_b16 %s, v%d offset:%d" % (vr(F + 4 * n + 2 * h, 2), VB + n, slot * SB + ks * 6144 + h * 768) for h in range(2)] for n in range(6)]
            if OPT["rord"] == "1": return a[0] + b[0] + b[1] + a[1] + b[2] + b[3] + a[2] + b[4] + b[5]
            return a[0] + b[0] + b[1] + b[2] + b[3] + b[4] + b[5] + a[1] + a[2]
        def mfmas(st):
            F = FY if st else FX
            order = [(0, n) for n in range(6)] + [(1, n) for n in range(6)] + ([(2, 0), (2, 1)] if nt == 3 else [])
            return ["v_mfma_f32_16x16x32_bf16 %s, %s, %s, %s" % (vr(acc(t, n), 4), vr(F + 4 * n, 4), vr(F + 24 + 4 * t, 4), vr(acc(t, n), 4)) for t, n in order]
        return reads, mfmas
    if OPT["prio"] != "0": A("s_setprio %s", OPT["prio"])
    A("s_waitcnt lgkmcnt(0)\ns_barrier\ns_cmp_eq_u32 s10, %s\ns_cbranch_scc1 g1_c3", OPT["c3"])
    consumer(A, "g1c", 32, NS, *mk(3), pat(OPT["gap1"]), (1, 2), None, OPT["drain1"] == "1")
    A("s_branch g1_epi\ng1_c3:")
    ex = None
    if OPT["ht"] == "2":
        srd(A, 36, P_WS, SZ, WS_HT)
        ld = lambda k: A("buffer_load_dword v151, v193, s[36:39], s40 offen offset:%d %s", 0, OPT["af1"])
        A("v_min_u32 v193, 47, v1\nv_lshlrev_b32 v193, 7, v193\ns_lshr_b32 s41, s11, 2\ns_mul_i32 s42, s29, 589824")
        A("s_and_b32 s40, s41, 1\ns_add_u32 s40, s40, 2\ns_mul_i32 s40, s40, 18432\ns_add_u32 s40, s40, s42")
        for k in range(3): ld(k); A("s_add_u32 s40, s40, 6144")
        A("s_min_u32 s40, s41, 4\ns_add_u32 s40, s40, %s\ns_mul_i32 s40, s40, 18432\ns_add_u32 s40, s40, s42", OPT["htl"])
        def ex(slot, h):
            k = 2 * slot + h
            if OPT["htb"] == "1":
                if k == 0:
                    for i in range(3): ld(i); A("s_add_u32 s40, s40, %d", 6144 if i < 2 else 5 * 18432 - 12288)
            elif k < 3: ld(k); A("s_add_u32 s40, s40, %d", 6144 if k < 2 else 5 * 18432 - 12288)
    consumer(A, "g1d", 32, NS, *mk(2), pat("221111111111"), (1, 2), ex, OPT["drain1"] == "1")
    A("g1_epi:\ns_barrier")
    c0 = -2 * math.sqrt(2 / math.pi) * 1.4426950408889634
    A("v_mov_b32 v4, %s\nv_mov_b32 v5, %s\nv_mov_b32 v6, %s\nv_mov_b32 v7, %s\nv_mov_b32 v8, 1.0\nv_mov_b32 v9, 1.0", hx(c0), hx(c0), hx(c0 * 0.044715), hx(c0 * 0.044715))
    units = [(t, u) for t in range(2) for u in range(3)] + [(2, 0)]
    for k, (t, u) in enumerate(units):
        a = acc(t, 2 * u); T = FX + 8 * (k & 1); O = FY + 4 * k
        if t == 2: A("s_cmp_eq_u32 s10, 3\ns_cbranch_scc1 g2_cons")
        for i in range(4): A("v_pk_mul_f32 %s, %s, %s", vr(T + 2 * i, 2), vr(a + 2 * i, 2), vr(a + 2 * i, 2))
        for i in range(4): A("v_pk_fma_f32 %s, %s, v[6:7], v[4:5]", vr(T + 2 * i, 2), vr(T + 2 * i, 2))
        for i in range(4): A("v_pk_mul_f32 %s, %s, %s", vr(T + 2 * i, 2), vr(T + 2 * i, 2), vr(a + 2 * i, 2))
        for i in range(8): A("v_exp_f32 v%d, v%d", T + i, T + i)
        for i in range(4): A("v_pk_add_f32 %s, %s, v[8:9]", vr(T + 2 * i, 2), vr(T + 2 * i, 2))
        for i in range(8): A("v_rcp_f32 v%d, v%d", T + i, T + i)
        for i in range(4): A("v_pk_mul_f32 %s, %s, %s", vr(T + 2 * i, 2), vr(T + 2 * i, 2), vr(a + 2 * i, 2))
        for i in range(4): A("v_cvt_pk_bf16_f32 v%d, v%d, v%d", O + i, T + 2 * i, T + 2 * i + 1)
        if t < 2: A("buffer_store_dwordx4 %s, v2, s[16:19], s%d offen offset:%d sc1", vr(O, 4), 32 + u, 256 * t)
        else: A("buffer_store_dwordx4 %s, v3, s[16:19], s32 offen sc1", vr(O, 4))
    A("s_branch g2_cons")

KSL, KBASE, SCR = 4352, 36864, 76032
def conv(A):
    A("s_lshl_b32 s22, s3, 3\ns_add_u32 s22, s22, s11\ns_sub_u32 s22, s22, 24")
    A("s_mov_b32 s23, 0")
    LF = SCR + 7 * 32 * KRS
    A("v_mov_b32 v190, %d\nv_mov_b32 v192, 0\nv_mov_b32 v193, 0\nds_write_b64 v190, v[192:193]\ns_waitcnt lgkmcnt(0)\ns_barrier", LF)
    A("s_cmp_eq_u32 s10, 7\ns_cbranch_scc1 cv_agent")
    A("s_load_dwordx8 s[52:59], s[0:1], %d\ns_load_dwordx2 s[60:61], s[0:1], %d", ARG["loga"], ARG["logdt"])
    A("s_lshl_b32 s42, s22, 3\ns_add_u32 s42, s42, s10\ns_mul_i32 s43, s10, %d\ns_add_u32 s43, s43, %d\ns_mov_b32 s46, s22", KSL, KBASE)
    A("s_lshr_b32 s25, s10, 1\ns_cmp_eq_u32 s25, 1\ns_cselect_b32 s41, 2, 1\ns_mov_b32 s40, 0")
    A("s_cbranch_scc0 cv_p\ns_setprio 1\ncv_p:\ns_waitcnt lgkmcnt(0)")
    for i in range(4): srd(A, 20 + 4 * i, 52 + 2 * i, 147456)
    srd(A, 36, 60, 1152); srd(A, 16, P_DSK, 1152)
    A("s_add_u32 s47, s42, 5\ns_add_u32 s45, s46, 512\ns_cmp_eq_u32 s10, 3\ns_cselect_b32 s47, s45, s47")
    for ch, r in ((42, 176), (47, 192)):
        A("s_lshl_b32 s3, s%d, 8\nv_lshlrev_b32 v2, 1, v1\nv_add_u32 v2, s3, v2", ch)
        kgen_params(A, ch, r)
        A("v_add_u32 v2, 128, v2")
        kgen_params(A, ch, r + 5)
        A("buffer_load_ushort v%d, v3, s[16:19], 0 offen", r + 10)
        if ch == 42: A("s_cmp_eq_u32 s41, 1\ns_cbranch_scc1 cv_k")
    A("cv_k:")
    if OPT["nokgen"] == "1": A("s_branch cv_kd")
    A("v_mov_b32 v12, 0\nv_mov_b32 v13, 0\nv_and_b32 v10, 7, v1\nv_lshlrev_b32 v10, 3, v10\nv_add_u32 v10, s43, v10\nds_write_b64 v10, v[12:13]")
    A("s_mul_i32 s3, s10, %d\ns_add_u32 s3, s3, %d", 32 * KRS, SCR)
    kgen_addr(A, 3)
    A("v_min_u32 v10, 23, v1\nv_lshlrev_b32 v10, 3, v10\nv_add_u32 v10, s43, v10\nds_write_b64 v10, v[12:13] offset:4160\nv_mov_b32 v10, s43")
    A("s_waitcnt vmcnt(0)\nds_write_b16 v10, v186 offset:%d", 4160 + 64)
    for i in range(5): A("v_mov_b32 v%d, v%d", 4 + i, 176 + i)
    kgen_half(A, True)
    for i in range(5): A("v_mov_b32 v%d, v%d", 4 + i, 181 + i)
    kgen_half(A, False)
    A("s_add_u32 s3, s43, 64")
    kgen_expand(A, 3, lambda r, n, va, off: A("ds_write_b%d v%d, %s offset:%d", 32 * n, va, vr(r, n), off))
    A("s_add_u32 s40, s40, 1\ns_cmp_eq_u32 s40, s41\ns_cbranch_scc1 cv_kd")
    for i in range(11): A("v_mov_b32 v%d, v%d", 176 + i, 192 + i)
    A("s_add_u32 s43, s43, %d\ns_branch cv_k\ncv_kd:", 5 * KSL)
    A("v_mov_b32 v191, 1\ns_mov_b64 exec, 1\nds_add_u32 v190, v191 offset:4\ns_mov_b64 exec, -1")
    A("s_mov_b32 s28, s42\ns_mul_i32 s29, s10, %d\ns_add_u32 s29, s29, %d\ns_mov_b32 s30, 0\ns_mov_b32 s31, s10\ns_mov_b32 s23, 0", KSL, KBASE)
    stamp(A, 7)
    srd(A, 12, P_WS, SZ, WS_XT); srd(A, 48, P_WS, SZ, WS_YC)
    def image(blk, base, rs=12, V=10):
        A("v_lshlrev_b32 v2, 4, v1\nv_add_u32 v2, %d, v2\nv_mov_b32 v4, 0\nv_mov_b32 v5, 0\nv_mov_b32 v6, 0\nv_mov_b32 v7, 0", base)
        for i in range(4): A("ds_write_b128 v2, v[4:7] offset:%d", 1024 * i)
        A("v_lshrrev_b32 v2, 3, v1\nv_lshlrev_b32 v2, 7, v2\nv_and_b32 v3, 7, v1\nv_lshrrev_b32 v14, 5, v1\nv_xor_b32 v3, v3, v14\ns_waitcnt lgkmcnt(0)")
        for j in range(4): A("v_xor_b32 v7, %d, v3\nv_lshl_add_u32 v%d, v7, 4, v2", 2 * j, V + j)
        A("s_lshl_b32 s25, s%d, 15", blk)
        for g in range(8):
            A("s_mov_b32 m0, %d", base + 4096 * (g + 1))
            for j in range(4): A("buffer_load_dwordx4 v%d, s[%d:%d], s25 offen offset:%d sc1 lds", V + j, rs, rs + 3, 1024 * j)
            A("s_add_u32 s25, s25, 4096")
        A("s_waitcnt vmcnt(0) lgkmcnt(0)")
    lds_wait(A, "cv_w", LF, 1, 2)
    VU, VK, U, KF, ACC = 4, 12, 16, 48, 80
    A("cv_ch:")
    if OPT["noconv"] == "1": A("s_branch cv_done")
    A("s_mov_b32 s34, 0\ns_mov_b32 s35, 0x80000000")
    A("v_lshrrev_b32 v13, 4, v1\nv_and_b32 v14, 3, v1\nv_bfe_u32 v15, v1, 2, 2")
    A("v_and_b32 v16, 1, v13\nv_lshrrev_b32 v17, 1, v13")
    A("v_lshlrev_b32 v18, 5, v16\nv_lshl_add_u32 v18, v14, 3, v18\nv_lshl_add_u32 v18, v17, 6, v18\nv_lshl_add_u32 v18, v15, 3, v18")
    A("v_add_u32 v18, 8, v18\nv_add_u32 v%d, s29, v18", VK)
    A("v_lshl_add_u32 v18, v16, 2, v14\nv_sub_u32 v18, v18, v17\nv_lshlrev_b32 v18, 3, v18\nv_sub_u32 v18, v18, v15")
    for km in range(4):
        for sec in range(2):
            A("v_add_u32 v20, %d, v18\nv_bfe_u32 v21, v20, 3, 3\nv_xor_b32 v21, s31, v21\nv_lshlrev_b32 v21, 4, v21\nv_and_b32 v19, 1, v20\nv_lshl_add_u32 v21, v19, 3, v21", 71 - 16 * km - 4 * sec)
            A("v_lshrrev_b32 v20, 1, v20\nv_lshl_add_u32 v21, v20, 7, v21\nv_add_u32 v%d, s30, v21", VU + 2 * km + sec)
    rdU = lambda km, d: ["ds_read_b64_tr_b16 %s, v%d offset:%d" % (vr(U + 4 * d + 2 * s, 2), VU + 2 * km + s, 4096 * d) for s in range(2)]
    rdK = lambda km, k: ["ds_read_b64_tr_b16 %s, v%d offset:%d" % (vr(KF + 4 * k + 2 * s, 2), VK, 512 * k + 128 * km + 32 * s) for s in range(2)]
    A("s_waitcnt vmcnt(0) lgkmcnt(0)")
    if OPT["stamp"] == "1": stamp(A, 1); A("s_waitcnt lgkmcnt(0)")
    pend = []
    def issue(key, ins):
        for x in ins: A(x); pend.append(key)
    def wait(keys):
        last = max([i for i, k in enumerate(pend) if k in keys], default=-1)
        if last >= 0:
            n = min(15, len(pend) - 1 - last)
            A("s_waitcnt lgkmcnt(%d)", n)
            del pend[:len(pend) - n]
    A("v_mov_b32 v15, v1")
    for i in range(8):
        issue(("K", 7 - i), rdK(0, 7 - i)); issue(("U", i), rdU(0, i))
    issue("D", ["ds_read_b64_tr_b16 %s, v%d offset:%d" % (vr(2 * s_, 2), VK, 4160 + 32 * s_) for s_ in range(2)])
    for km in range(4):
        for k in range(7, -1, -1):
            for d in range(8 - k):
                wait({("K", k), ("U", d)})
                a = vr(ACC + 16 * (k + d), 16)
                A("v_mfma_f32_32x32x16_bf16 %s, %s, %s, %s", a, vr(U + 4 * d, 4), vr(KF + 4 * k, 4), "0" if km == 0 and d == 0 else a)
                if km == 0 and k == 0:
                    wait({"D"})
                    A("v_mfma_f32_32x32x16_bf16 %s, %s, v[0:3], %s", a, vr(U + 4 * d, 4), a)
                if km < 3 and k == 0: issue(("U", d), rdU(km + 1, d))
            if km < 3: issue(("K", k), rdK(km + 1, k))
    Zr = lambda G, s: ACC + 4 * G + s
    A("v_mov_b32 v16, 0\nv_mov_b32 v1, v15")
    for s in (3, 2, 1):
        for G in range(31, -1, -1): A("v_cndmask_b32 v%d, v%d, v%d, s[34:35]", Zr(G, s), Zr(G, s), Zr(G - 1, s) if G else 16)
        for G in range(31, -1, -1): A("v_add_f32_dpp v%d, v%d, v%d wave_ror:1 row_mask:0xf bank_mask:0xf", Zr(G, s - 1), Zr(G, s), Zr(G, s - 1))
    A("v_lshlrev_b32 v17, 2, v1\ns_lshl_b32 s25, s28, 12")
    for p in range(15, -1, -1):
        A("v_cvt_pk_bf16_f32 v%d, v%d, v%d\nbuffer_store_dword v%d, v17, s[48:51], s25 offen offset:%d sc1", U + 4 + p, Zr(2 * p, 0), Zr(2 * p + 1, 0), U + 4 + p, 256 * p)
    A("s_sub_u32 s41, s41, 1\ns_cmp_eq_u32 s41, 0\ns_cbranch_scc1 cv_done")
    A("s_mov_b32 s28, s47\ns_add_u32 s29, s29, %d\ns_mov_b32 s31, 7\ns_cmp_eq_u32 s10, 2\ns_cbranch_scc1 cv_ch", 5 * KSL)
    lds_wait(A, "cv_w9", LF + 4, 7, 2)
    A("s_lshr_b32 s30, s46, 3\ns_add_u32 s30, s30, 64\ns_and_b32 s31, s46, 7")
    image(30, SCR)
    A("s_mov_b32 s30, %d\ns_branch cv_ch", SCR)
    A("cv_agent:")
    dep = int(OPT["adepth"])
    A("s_sub_u32 s11, s11, 24\ns_waitcnt lgkmcnt(0)")
    srd(A, 12, P_W1, SZ_W); srd(A, 16, P_W2, SZ_W); srd(A, 4, P_WS, SZ_F, WS_F)
    A("s_cmp_lg_u32 s2, 255\ns_cbranch_scc1 ag_nz\nv_lshlrev_b32 v8, 4, v1\nv_add_u32 v8, %d, v8", F_LN)
    for i in range(4): A("v_mov_b32 v%d, 0", 4 + i)
    for i in range(4): A("buffer_store_dwordx4 v[4:7], v8, s[4:7], 0 offen offset:%d sc1", 1024 * i)
    A("v_add_u32 v8, 4096, v8\nbuffer_store_dwordx4 v[4:7], v8, s[4:7], 0 offen sc1\nbuffer_store_dwordx4 v[4:7], v8, s[4:7], 0 offen offset:1024 sc1")
    srd(A, 40, P_DBG, 256)
    A("v_mov_b32 v9, 1\ns_waitcnt vmcnt(0)\ns_mov_b64 exec, 1\nbuffer_store_dword v9, v4, s[40:43], 0 offen sc1\ns_mov_b64 exec, -1\nag_nz:")
    if OPT["cpf"] == "1":
        A("s_getpc_b64 s[40:41]\nag_pc:\ns_sub_u32 s40, s40, ag_pc-%s\ns_subb_u32 s41, s41, 0", NAME + "_kernel")
        A("s_lshl_b32 s25, s11, 13\nv_lshl_add_u32 v4, v1, 7, s25\nv_min_u32 v4, k2_end-%s, v4", NAME + "_kernel")
        A("v_mov_b32 v7, s41\nv_add_co_u32 v6, vcc, s40, v4\nv_addc_co_u32 v7, vcc, 0, v7, vcc\nglobal_load_dword v20, v[6:7], off")
    A("s_setprio 3\nv_lshrrev_b32 v4, 3, v1\nv_and_b32 v5, 7, v1\nv_mul_u32_u24 v8, 9216, v4\nv_lshl_add_u32 v8, v5, 7, v8")
    if OPT["g1"] == "96": A("v_lshl_add_u32 v9, v4, 6, v5\nv_mul_u32_u24 v9, 9216, v9\nv_add_u32 v9, 1024, v9")
    else: A("v_lshrrev_b32 v9, 4, v1\nv_bfe_u32 v6, v1, 1, 3\nv_lshl_add_u32 v9, v9, 6, v6\nv_mul_u32_u24 v9, 9216, v9\nv_and_b32 v6, 1, v1\nv_lshl_add_u32 v9, v6, 7, v9\nv_add_u32 v9, 1024, v9")
    A("v_lshrrev_b32 v10, 4, v1\nv_lshlrev_b32 v10, 12, v10\nv_and_b32 v11, 15, v1\nv_lshl_add_u32 v10, v11, 7, v10")
    if OPT["g1"] == "96": A("s_mul_i32 s56, s3, 1152\ns_mul_i32 s25, s11, %d\ns_add_u32 s56, s56, s25", 8 * 9216)
    else: A("s_lshr_b32 s56, s3, 1\ns_mul_i32 s56, s56, 2304\ns_and_b32 s25, s3, 1\ns_lshl_b32 s25, s25, 10\ns_add_u32 s56, s56, s25\ns_mul_i32 s25, s11, %d\ns_add_u32 s56, s56, s25", 8 * 9216)
    A("s_lshr_b32 s58, s3, 1\ns_mul_i32 s58, s58, %d\ns_and_b32 s25, s3, 1\ns_lshl_b32 s25, s25, 11\ns_add_u32 s58, s58, s25\ns_lshl_b32 s25, s11, 14\ns_add_u32 s58, s58, s25", 1152 * 4096)
    A("v_lshlrev_b32 v12, 7, v1\nv_mul_u32_u24 v13, 18432, v4\nv_lshl_add_u32 v13, v5, 7, v13\nv_add_u32 v13, 8192, v13")
    A("s_lshr_b32 s57, s11, 1\ns_mul_i32 s57, s57, 589824\ns_and_b32 s25, s11, 1\ns_mul_i32 s25, s25, 9216\ns_add_u32 s57, s57, s25")
    srd(A, 36, P_WS, SZ, WS_HT)
    if OPT["noagent"] == "1": A("s_branch cv_done")
    parts = OPT["sched"].split(",")
    seq = "".join(p if p == "S" else p[0] * int(p[1:]) for p in parts[:-1]) + parts[-1] * 80 + "hwv" * 40
    nw, nv, nh, n2 = 64 * int(OPT["gp0"]) // 9, 0, 0 if "h" in OPT["sched"] else 32, min(int(OPT["agw2"]), 21 if OPT["hv"] == "1" else 36)
    w0 = nw
    assert "S" in seq
    A("s_add_u32 s56, s56, %d", nw * 64 * 9216)
    for c in seq:
        if c == "S":
            if OPT["agst"] != "1": stamp(A, 7)
            srd(A, 40, P_DBG, 256)
            poll_all(A, "aggo", 1, 0, 1, 40)
            wait_ln(A, "agln"); wait_ln(A, "aglo", 1)
            srd(A, 40, P_WS, SZ, WS_XT)
            image(22, 0, 40, 24)
            A("v_mov_b32 v191, 1\nds_write_b32 v190, v191")
            if OPT["agst"] != "1": stamp(A, 1)
        if c == "w" and nw < 32:
            if (nw - w0) % (8 if OPT["g1"] == "96" else 4) == 0: A("buffer_load_dword v20, v9, s[12:15], s56 offen\ns_waitcnt vmcnt(%d)", dep)
            A("buffer_load_dword v20, v8, s[12:15], s56 offen\ns_add_u32 s56, s56, %d\ns_waitcnt vmcnt(%d)", 64 * 9216, dep); nw += 1
            if nw == 32: stamp(A, 3)
            if OPT["agst"] == "1" and nw in (8, 16, 24): stamp(A, {8: 7, 16: 1, 24: 5}[nw])
        if c == "h" and nh < 32:
            if nh % 8 == 0: A("buffer_load_dword v20, v13, s[36:39], s57 offen %s\ns_waitcnt vmcnt(%d)", OPT["af1"], dep)
            A("buffer_load_dword v20, v12, s[36:39], s57 offen %s\ns_add_u32 s57, s57, 18432\ns_waitcnt vmcnt(%d)", OPT["af1"], dep); nh += 1
            if nh == 32: stamp(A, 5)
        if c == "v" and nv < n2:
            k = n2 - 1 - nv if OPT["w2rev"] == "1" else nv
            A("s_add_u32 s25, s58, %d\nbuffer_load_dword v20, v10, s[16:19], s25 offen\ns_waitcnt vmcnt(%d)", k * (14 if OPT["hv"] == "1" else 8) * 16384, dep); nv += 1
    assert nw == 32 and nv == n2 and nh == 32
    A("cv_done:")
    stamp(A, 2)
    A("s_setprio 0\ns_cmp_ge_u32 s10, 4\ns_cbranch_scc1 g2_load\ns_barrier\ns_branch g2_cons")

def gemm2(A):
    NS, SB, BB = 4, 16384, 4 * 18432
    rot = OPT["rot"] == "1" and OPT["g1"] == "128"
    ids = "s_bfe_u32 s27, s2, 0x20001\ns_and_b32 s28, s2, 1\ns_lshr_b32 s3, s2, 3\n" + ("s_lshl_b32 s25, s28, 1\ns_add_u32 s3, s3, s25\n" if rot else "") + \
          "s_and_b32 s29, s3, 3\ns_bfe_u32 s3, s3, 0x30002\ns_lshl_b32 s28, s28, 3\ns_add_u32 s28, s28, s3"
    A("g2_load:")
    A(ids)
    A("v_lshlrev_b32 v2, 4, v1\nv_lshrrev_b32 v7, 4, v1\nv_and_b32 v8, 15, v1")
    modadd(A, 30, 3, 0, 6)
    for i in range(4):
        A("v_add_u32 v9, %d, v7\nv_and_b32 v10, 7, v9\nv_lshlrev_b32 v10, 1, v10\nv_xor_b32 v10, v10, v8\nv_lshlrev_b32 v9, 12, v9\nv_lshl_add_u32 v9, v10, 4, v9\nv_subrev_u32 v%d, %d, v9", 4 * i, 3 + i, 1024 * i)
    A("s_mul_i32 s20, s29, %d\ns_mul_i32 s25, s27, %d\ns_add_u32 s20, s20, s25", 576 * 2304, 144 * 2304)
    A("s_mul_i32 s21, s27, %d\ns_lshl_b32 s25, s28, 8\ns_add_u32 s21, s21, s25", 1152 * 4096)
    srd(A, 12, P_WS, SZ_H, WS_H); srd(A, 16, P_W2, SZ_W); srd(A, 4, P_WS, SZ_F, WS_F)
    if rot:
        A("s_and_b32 s25, s2, 1\ns_lshl_b32 s25, s25, 2\ns_add_u32 s55, s3, s25\ns_cmp_ge_u32 s55, 9\ns_cselect_b32 s25, 9, 0\ns_sub_u32 s55, s55, s25")
        A("s_mul_i32 s25, s55, %d\ns_add_u32 s20, s20, s25\ns_lshl_b32 s25, s55, 19\ns_add_u32 s21, s21, s25", 2 * 18432)
        A("s_lshl_b32 s54, s55, 1\ns_sub_u32 s54, 18, s54\ns_mov_b32 s50, %d\ns_mov_b32 s51, %d", -18 * 18432, -18 * 64 * 4096)
        A("v_min_u32 v74, 8, v1\nv_add_u32 v74, s55, v74\nv_subrev_u32 v75, 9, v74\nv_min_u32 v74, v74, v75")
        A("s_lshl_b32 s22, s27, 2\ns_add_u32 s22, s22, s29\ns_mul_i32 s22, s22, 9\nv_add_u32 v74, s22, v74\nv_lshlrev_b32 v74, 7, v74\nv_add_u32 v73, %d, v74", F_H)
    else:
        A("s_lshl_b32 s22, s27, 2\ns_add_u32 s22, s22, s29\ns_lshl_b32 s22, s22, 7\ns_add_u32 s22, s22, %d", F_H)
    A("s_waitcnt vmcnt(0)\ns_barrier")
    def tiles_ask(): A("buffer_load_dword v72, v73, s[4:7], 0 offen sc1")
    def tiles_need(tag, need):
        A("s_mov_b32 s24, 0\n%s:\nv_cmp_ne_u32 vcc, 0, v72\ns_and_b32 s25, vcc_lo, 0x1ff\ns_or_b32 s52, s52, s25\ns_bitcmp1_b32 s52, %s\ns_cbranch_scc1 %s_d", tag, need, tag)
        A("s_add_u32 s24, s24, 1\ns_cmp_ge_u32 s24, 0x40000\ns_cbranch_scc1 %s_d", tag)
        tiles_ask()
        A("s_waitcnt vmcnt(0)\ns_branch %s\n%s_d:", tag, tag)
    def rot_look(k, name, npeel):
        A("s_cmp_eq_u32 s52, 0x1ff\ns_cbranch_scc1 %s_x", name)
        if k is None: A("s_add_u32 s53, s26, %d\ns_lshr_b32 s53, s53, 1\ns_min_u32 s53, s53, 8", npeel + 2)
        tiles_need(name, "s53" if k is None else (k >> 1) + 1)
        A("%s_x:", name)
    def rot_ask(name):
        A("s_cmp_eq_u32 s52, 0x1ff\ns_cbranch_scc1 %s", name); tiles_ask(); A("%s:", name)
    def gate(w):
        if OPT["sent"] == "1":
            srd(A, 8, P_WS, SZ_P, WS_P)
            A("s_lshl_b32 s24, s28, 2\ns_add_u32 s24, s24, s29\ns_lshl_b32 s24, s24, 2\ns_add_u32 s24, s24, s27\ns_lshl_b32 s24, s24, 2\ns_add_u32 s24, s24, %d\ns_mul_i32 s24, s24, 9216", w - 4)
            for i in range(4): A("v_mov_b32 v%d, -1", 12 + i)
            A("s_cmp_eq_u32 s27, %d\ns_cbranch_scc1 g2_np%d", w - 4, w)
            for t in range(9):
                if t % 4 == 0 and t: A("s_add_u32 s24, s24, 4096")
                A("buffer_store_dwordx4 v[12:15], v2, s[8:11], s24 offen offset:%d sc1", 1024 * (t % 4))
            A("s_waitcnt vmcnt(0)\ng2_np%d:\ns_mov_b32 s10, %d", w, w)
        if w == 7 and OPT["hv"] == "1":
            A("s_lshr_b32 s24, s2, 3\ns_sub_u32 s24, s24, 18\ns_cmp_ge_u32 s24, 6\ns_cbranch_scc1 g2_nv")
            A("v_lshrrev_b32 v20, 4, v1\nv_lshlrev_b32 v20, 12, v20\nv_and_b32 v21, 15, v1\nv_lshl_add_u32 v20, v21, 7, v20")
            A("s_add_u32 s24, s24, 8\ns_lshl_b32 s24, s24, 14\ns_mul_i32 s25, s27, %d\ns_add_u32 s24, s24, s25\ns_and_b32 s25, s2, 1\ns_lshl_b32 s25, s25, 11\ns_add_u32 s24, s24, s25\ns_mov_b32 s26, 0", 1152 * 4096)
            A("g2_v:\nbuffer_load_dword v22, v20, s[16:19], s24 offen\ns_add_u32 s24, s24, %d\ns_add_u32 s26, s26, 1\ns_waitcnt vmcnt(%s)\ns_cmp_lt_u32 s26, 20\ns_cbranch_scc1 g2_v\ng2_nv:", 14 * 16384, OPT["hdepth"])
        A("s_barrier")
        if w == 4:
            if OPT["st2"] == "1": stamp(A, 7)
            if OPT["st2"] == "1": A("s_waitcnt vmcnt(0)"); stamp(A, 1)
            if rot:
                A("s_cmp_lg_u32 s23, 0\ns_cselect_b32 s52, 1, 0\nv_mov_b32 v72, 0")
                tiles_need("g2h", 0)
                tiles_ask()
            else: poll(A, "g2h", 22, 12 if OPT["g1"] == "96" else 9)
            if OPT["st2"] == "1": stamp(A, 2)
        A("s_barrier")
    lam = int(OPT["lam2"])
    if OPT["dist2"] == "0": plan = lambda a, b: [([[a(1)], [a(2), a(3)]], lam), ([[a(4), a(5)], [b(1)]], lam), ([[a(0), b(0)]], NS - 2), ([[b(2)], [b(3)]], lam)]
    elif OPT["dist2"] == "1": plan = lambda a, b: [([[a(1)], [a(2), a(3)]], lam), ([[a(4), a(5, [0, 1])], [b(1)]], lam), ([[a(0), b(0)]], NS - 2), ([[b(2), a(5, [2])], [b(3)]], lam)]
    else: plan = lambda a, b: [([[a(0), a(1, [0])], [b(0)]], lam), ([[a(2), a(1, [1, 2])], [b(1)]], lam), ([[a(3), a(4, [0])], [b(2)]], lam), ([[a(5), a(4, [1, 2])], [b(3)]], lam)]
    loaders(A, "g2l", 18, NS, dict(rot=(rot_look, rot_ask) if rot else None, checks={17: (lambda: A("v_and_b32 v74, 15, v1\nv_lshlrev_b32 v74, 7, v74\nv_add_u32 v74, %d, v74", F_ALL), 16, lambda: poll_all(A, "g2y", 16, F_ALL, 16))}, vb=(3, 4, 5, 6), bg_g=16 * 4096, bg_l=4096, baseB=BB, slotB=SB, b_stride=64 * 4096, aflag=OPT["af2"] + " " + OPT["nt2"], bflag=OPT["bf2"].replace("+", " "), stamp=4), plan,
            lambda w: A("s_branch g2_l0" if w == 4 else "s_branch g2_help"), gate)
    def fin_setup(nt, sv=10):
        A("s_lshl_b32 s33, s28, 2\ns_add_u32 s33, s33, s29\ns_lshl_b32 s33, s33, 2")
        srd(A, 12, P_WS, SZ_P, WS_P); srd(A, 52, P_WS, SZ, WS_YC); srd(A, 36, P_B2, 4096); srd(A, 40, P_OUT, SZ)
        A("v_lshlrev_b32 v184, 4, v1\nv_lshrrev_b32 v189, 4, v1\nv_and_b32 v190, 15, v1\ns_lshl_b32 s3, s27, 4\nv_add_u32 v190, s3, v190")
        A("s_lshl_b32 s3, s28, 7\nv_add_u32 v186, s3, v190\nv_lshlrev_b32 v187, 1, v186\nv_mul_u32_u24 v185, 1152, v186")
        A("s_mul_i32 s30, s29, 144\ns_lshl_b32 s3, s%d, 5\ns_add_u32 s30, s30, s3\ns_mov_b32 s44, %d", sv, 64 * 1152)
        A("v_lshlrev_b32 v189, %d, v189\nv_add_u32 v189, s30, v189\nv_lshl_add_u32 v185, v189, 1, v185", 1 + nt)
        A("v_lshlrev_b32 v186, 12, v189\nv_lshl_add_u32 v186, v190, 2, v186\ns_lshl_b32 s3, s28, 8\nv_add_u32 v186, s3, v186")
        A("s_add_u32 s23, s33, s27\ns_mul_i32 s31, s23, %d\ns_lshl_b32 s34, s10, 11\ns_add_u32 s31, s31, s34\ns_lshl_b32 s23, s23, 7", 4 * 9216)
        A("s_lshl_b32 s34, s%d, 12\nv_add_u32 v188, s34, v184", sv)
        for k in range(1, 4):
            A("s_add_u32 s3, s27, %d\ns_and_b32 s3, s3, 3\ns_mul_i32 s3, s3, 9216\ns_add_u32 s%d, s3, s31", k, 44 + k)
        A("s_add_u32 s49, s33, s10\ns_lshl_b32 s48, s49, 2\ns_add_u32 s48, s48, s27\ns_mul_i32 s48, s48, 9216\ns_lshl_b32 s49, s49, 7")
    A("g2_cons:")
    A(ids)
    ACC, FX, FY = 8, 80, 124
    A("v_lshrrev_b32 v6, 4, v1\nv_and_b32 v7, 15, v1\nv_mul_u32_u24 v76, 2304, v6\nv_lshl_add_u32 v76, v7, 4, v76\nv_add_u32 v77, %d, v76", 3 * 18432)
    A("v_lshrrev_b32 v6, 2, v1\nv_and_b32 v7, 7, v6\nv_lshlrev_b32 v6, 8, v6\nv_and_b32 v8, 3, v1\nv_lshl_add_u32 v6, v8, 3, v6\nv_add_u32 v6, %d, v6", BB)
    A("v_xor_b32 v7, s10, v7\nv_lshl_add_u32 v4, v7, 5, v6\nv_xor_b32 v7, 4, v7\nv_lshl_add_u32 v5, v7, 5, v6")
    srd(A, 4, P_WS, SZ_F, WS_F)
    A("s_waitcnt vmcnt(0) lgkmcnt(0)\ns_barrier")
    if OPT["lnst"] == "0": stamp(A, 3)
    A("s_cmp_lg_u32 s10, 1\ns_cbranch_scc1 g2_c\ns_cmp_eq_u32 s23, 0\ns_cbranch_scc1 g2_c")
    arrive(A, 23, 168)
    A("g2_c:\ns_barrier\nv_mov_b32 v2, v76\nv_mov_b32 v3, v77")
    A("s_cmp_lg_u32 s10, 0\ns_cbranch_scc1 g2_na\ns_and_b32 s22, s2, 15\ns_lshl_b32 s22, s22, 7\ns_add_u32 s22, s22, %d", F_ALL)
    arrive(A, 22, 168)
    A("g2_na:")
    for r in range(ACC, ACC + 72, 2): A("v_mov_b64 %s, 0", vr(r, 2))
    fin_setup(2)
    A("s_waitcnt lgkmcnt(0)")
    def reads(slot, ks, st):
        F = FY if st else FX
        o = (0 if slot == 3 else slot) * 18432 + ks * 9216
        a = ["ds_read_b128 %s, v%d offset:%d" % (vr(F + 8 + 4 * t, 4), 3 if slot == 3 else 2, o + 256 * t) for t in range(9)]
        b = ["ds_read_b64_tr_b16 %s, v%d offset:%d" % (vr(F + 4 * j + 2 * h, 2), 4 + j, slot * SB + ks * 8192 + h * 4096) for j in range(2) for h in range(2)]
        return b + a
    def mfmas(st):
        F = FY if st else FX
        return ["v_mfma_f32_16x16x32_bf16 %s, %s, %s, %s" % (vr(ACC + 8 * t + 4 * j, 4), vr(F + 8 + 4 * t, 4), vr(F + 4 * j, 4), vr(ACC + 8 * t + 4 * j, 4)) for t in range(9) for j in range(2)]
    consumer(A, "g2c", 18, NS, reads, mfmas, pat(OPT["gap2"]), (4, 5) if OPT["lnst"] == "0" else (6, 6))
    OWN = 2 * 18432
    RES = 3 * 18432
    Y, B, B2, T = 148, 156, 164, 166
    def residual(nt, dst):
        nd = 4 * nt; w = "x4" if nt == 2 else "x2"
        A("s_load_dwordx2 s[16:17], s[0:1], %d\ns_mov_b32 s18, %d\ns_mov_b32 s19, 0x20000\ns_waitcnt lgkmcnt(0)", ARG["x"], SZ)
        A("buffer_load_dword%s %s, v185, s[16:19], 0 offen\nbuffer_load_dword%s %s, v185, s[16:19], s44 offen", w, vr(B, 2 * nt), w, vr(B + 4, 2 * nt))
        A("buffer_load_ushort v%d, v187, s[36:39], 0 offen\nbuffer_load_ushort v%d, v187, s[36:39], 0 offen offset:128\ns_mov_b32 s3, 0", B2, B2 + 1)
        for e in range(nd): A("buffer_load_dword v%d, v186, s[52:55], s3 offen sc1\ns_add_u32 s3, s3, 4096", Y + e)
        A("s_waitcnt vmcnt(0)")
        res = lambda j, e: dst + 4 * (2 * (e >> 2) + j) + (e & 3)
        for j in range(2):
            A("v_lshlrev_b32 v%d, 16, v%d", B2 + j, B2 + j)
            for e in range(0, nd, 2):
                unpack(A, res(j, e), res(j, e) + 1, B + 4 * j + e // 2)
                A("v_pk_add_f32 %s, %s, %s op_sel:[0,%d] op_sel_hi:[1,%d]", vr(res(j, e), 2), vr(res(j, e), 2), vr(B2, 2), j, j)
        for e in range(nd):
            unpack(A, T, T + 1, Y + e)
            A("v_add_f32 v%d, v%d, v%d\nv_add_f32 v%d, v%d, v%d", res(0, e), res(0, e), T, res(1, e), res(1, e), T + 1)
    def body(nt):
        nd = 4 * nt; P, R, Q = 168, 124, 24
        w = "x4" if nt == 2 else "x2"
        sent = OPT["sent"] == "1"
        def fetch(tag):
            if sent: A("s_mov_b32 s24, 0\n%s:", tag)
            for q in range(3):
                for i in range(nt): A("buffer_load_dwordx4 %s, v184, s[12:15], s%d offen offset:%d sc1", vr(R + 8 * q + 4 * i, 4), 45 + q, 1024 * i)
        def verify(tag):
            regs_ = [R + 8 * q + i for q in range(3) for i in range(4 * nt)]
            A("s_waitcnt vmcnt(0)\nv_max3_u32 v%d, v%d, v%d, v%d", T, *regs_[:3])
            A("v_max3_u32 v%d, v%d, v%d, v%d", T + 1, *regs_[3:6])
            for k in range(6, len(regs_), 2): A("v_max3_u32 v%d, v%d, v%d, v%d", T + (k >> 1 & 1), T + (k >> 1 & 1), regs_[k], regs_[k + 1])
            A("v_max_u32 v%d, v%d, v%d\nv_cmp_eq_u32 vcc, -1, v%d\ns_add_u32 s24, s24, 1", T, T, T + 1, T)
            A("s_cmp_ge_u32 s24, 0x10000\ns_cbranch_scc1 %s_ok\ns_cmp_lg_u64 vcc, 0\ns_cbranch_scc1 %s\n%s_ok:", tag, tag, tag)
        if nt == 2:
            A("s_cmp_eq_u32 s10, s27\ns_cbranch_scc1 g2_own")
            for t in range(9):
                if t % 4 == 0 and t: A("s_add_u32 s48, s48, 4096")
                for i in range(4): A("v_cvt_pk_bf16_f32 v%d, v%d, v%d", FX + 4 * t + i, ACC + 8 * t + 2 * i, ACC + 8 * t + 2 * i + 1)
                A("buffer_store_dwordx4 %s, v184, s[12:15], s48 offen offset:%d sc1", vr(FX + 4 * t, 4), 1024 * (t % 4))
            if not sent:
                A("s_waitcnt vmcnt(0)")
                arrive(A, 49)
            if OPT["st2"] == "1": stamp(A, 7)
            A("s_branch g2_fin\ng2_own:")
            for tl in range(18): A("ds_write_b128 v184, %s offset:%d", vr(ACC + 4 * tl, 4), OWN + 1024 * tl)
            A("g2_fin:\ns_waitcnt lgkmcnt(0)")
        else:
            fin_setup(1)
            residual(1, Q)
            if OPT["st2"] == "1": stamp(A, 3)
            if sent: fetch("g2x"); verify("g2x")
            else: poll(A, "g2x", 23, 3)
            if OPT["st2"] == "1": stamp(A, 5)
        A("s_barrier")
        if nt == 2 and OPT["st2"] == "1": stamp(A, 1); A("s_waitcnt lgkmcnt(0)")
        if nt == 2 or not sent: fetch("g2z")
        for i in range(2 * nt): A("ds_read_b128 %s, v188 offset:%d", vr(P + 4 * i, 4), OWN + 1024 * i)
        if nt == 2:
            for i in range(4): A("ds_read_b128 %s, v188 offset:%d", vr(Q + 4 * i, 4), RES + 1024 * i)
        A("s_waitcnt lgkmcnt(0)")
        for i in range(4 * nt): A("v_pk_add_f32 %s, %s, %s", vr(Q + 2 * i, 2), vr(P + 2 * i, 2), vr(Q + 2 * i, 2))
        if nt == 2 and sent: verify("g2z")
        for q in range(3):
            if not sent: A("s_waitcnt vmcnt(%d)", (2 - q) * nt)
            for i in range(4 * nt): unpack(A, 8 + 2 * i, 9 + 2 * i, R + 8 * q + i)
            for i in range(4 * nt): A("v_pk_add_f32 %s, %s, %s", vr(Q + 2 * i, 2), vr(Q + 2 * i, 2), vr(8 + 2 * i, 2))
        if nt == 2 and OPT["st2"] == "1": stamp(A, 2)
        src = lambda j, e: Q + 4 * (2 * (e >> 2) + j) + (e & 3)
        for j in range(2):
            for e in range(nd // 2): A("v_cvt_pk_bf16_f32 v%d, v%d, v%d", P + 4 * j + e, src(j, 2 * e), src(j, 2 * e) + 1)
            A("buffer_store_dword%s %s, v185, s[40:43], %s offen %s", w, vr(P + 4 * j, 2 * nt), "s44" if j else "0", OPT["osc1"])
        endpgm(A, 1)
    body(2)
    A("g2_l0:")
    body(1)
    A("g2_help:\ns_sub_u32 s50, s10, 5\ng2_hl:")
    fin_setup(2, 50)
    residual(2, 24)
    for i in range(4): A("ds_write_b128 v188, %s offset:%d", vr(24 + 4 * i, 4), RES + 1024 * i)
    A("s_add_u32 s50, s50, 3\ns_cmp_eq_u32 s50, 3\ns_cbranch_scc1 g2_hl\ns_waitcnt lgkmcnt(0)\ns_barrier")
    endpgm(A, 1)

def k2(A):
    head(A, NAME + "_kernel")
    A("s_cmp_ge_u32 s2, 256\ns_cbranch_scc1 k2_end")
    A("s_load_dwordx16 s[84:99], s[0:1], 56\ns_load_dwordx2 s[%d:%d], s[0:1], %d\ns_load_dwordx2 s[%d:%d], s[0:1], %d", P_X, P_X + 1, ARG["x"], P_DSK, P_DSK + 1, ARG["dsk"])
    wave_id(A, 10); stamp_init(A, 10)
    A("s_and_b32 s3, s2, 7\ns_lshr_b32 s11, s2, 3\ns_cmp_ge_u32 s11, 24\ns_cbranch_scc1 k2_cv")
    (gemm1_96 if OPT["g1"] == "96" else gemm1)(A)
    A("k2_cv:")
    conv(A)
    gemm2(A)
    A("k2_end:\ns_endpgm")

def build():
    out = ["; S4D convolution + token-mixing MLP, generated instruction stream"]
    out.append("; @launch grid=(256,1,1) block=(512,1,1) lds=%d" % LDS_SIZE)
    out.append('.amdgcn_target "amdgcn-amd-amdhsa--gfx950"\n.text')
    A = Asm(); k2(A)
    t, n = A.text()
    sys.stderr.write("%d lines, %d nops inserted\n" % (len(A.l), n))
    out.append(t)
    out.append('.section .rodata,"a"')
    out.append(kd(NAME + "_kernel", 208))
    return "\n".join(out), None

if __name__ == "__main__":
    for a in sys.argv[2:]:
        k, v = a.split("=", 1)
        assert k in OPT, k
        OPT[k] = v
    t = build()[0]
    open(sys.argv[1], "w").write(t)
```
